```python
import torch

def _softmax(x, axis=-1):
    return torch.softmax(x, dim=axis)
def _gelu(x):
    return torch.nn.functional.gelu(x, approximate="tanh")
def _silu(x):
    return torch.nn.functional.silu(x)
def _sigmoid(x):
    return torch.sigmoid(x)
def _layernorm(x, axis=-1, eps=1e-5):
    m = x.mean(dim=axis, keepdim=True)
    v = x.var(dim=axis, keepdim=True, unbiased=False)
    return (x - m) / torch.sqrt(v + eps)
def _scatter_add(tgt, idx, src, axis=0):
    return tgt.clone().index_add_(axis, idx, src)
def _segment_sum(src, seg, n):
    out = torch.zeros((n,) + src.shape[1:], dtype=src.dtype)
    return out.index_add_(0, seg, src)
def _pad(x, pw):
    flat = tuple(v for pair in reversed(pw) for v in pair)
    return torch.nn.functional.pad(x, flat)

kernel_name = 'gated_mix__grouped_kv_mqa__spectral_gfnet__prompt'

def setup_inputs():

    _w = (lambda a: (lambda t: t.to(torch.bfloat16) if t.is_floating_point() else t)(torch.as_tensor(a)))
    def _A_setup():
        B, S, D, H = 1, 2048, 640, 32
        Dh = D // H
        return {
            "x": _w((lambda *s: torch.randn(*s, dtype=torch.bfloat16) * 0.05)(B, S, D)),
            "wq": _w((lambda *s: torch.randn(*s, dtype=torch.bfloat16) * 0.8)(D, H * Dh)),
            "wk": _w((lambda *s: torch.randn(*s, dtype=torch.bfloat16) * 0.8)(D, Dh)),
            "wv": _w((lambda *s: torch.randn(*s, dtype=torch.bfloat16) * 0.05)(D, Dh)),
            "wo": _w((lambda *s: torch.randn(*s, dtype=torch.bfloat16) * 0.05)(H * Dh, D)),
        }
    _A_in = _A_setup()

    def _B_setup():
        B, S, D = 1, 2048, 640
        Df = D // 2 + 1
        return {
            "x": _w((lambda *s: torch.randn(*s, dtype=torch.bfloat16) * 0.05)(B, S, D)),
            "w_r": _w((lambda *s: torch.randn(*s, dtype=torch.bfloat16) * 0.8)(S, Df) * 0.02),
            "w_i": _w((lambda *s: torch.randn(*s, dtype=torch.bfloat16) * 0.8)(S, Df) * 0.02),
        }
    _B_in = _B_setup()

    return {
        "A_x": _A_in["x"],
        "A_wq": _A_in["wq"],
        "A_wk": _A_in["wk"],
        "A_wv": _A_in["wv"],
        "A_wo": _A_in["wo"],
        "B_x": _B_in["x"],
        "B_w_r": _B_in["w_r"],
        "B_w_i": _B_in["w_i"],
        "gate_w": _w((lambda *s: torch.randn(*s, dtype=torch.bfloat16) * 0.05)(640) * 16.0),
    }

def reference(A_x, A_wq, A_wk, A_wv, A_wo, B_x, B_w_r, B_w_i, gate_w):
    def _A_ref(x, wq, wk, wv, wo):
        B, S, D = x.shape
        H = 32
        Dh = D // H
        q = (lambda x, *d: x.permute(*d))((x @ wq).reshape(B, S, H, Dh), 0, 2, 1, 3)
        k = x @ wk
        v = x @ wv
        scores = torch.einsum("bhqd,bkd->bhqk", q, k) * (Dh ** -0.5)
        p = _softmax(scores, axis=-1)
        o = torch.einsum("bhqk,bkd->bhqd", p, v)
        return (lambda x, *d: x.permute(*d))(o, 0, 2, 1, 3).reshape(B, S, H * Dh) @ wo

    def _B_ref(x, w_r, w_i):
        B, S, D = x.shape
        X = (lambda x, axes=(-2,-1): torch.fft.rfft2(x.float(), dim=axes))(x, axes=(-2, -1))
        W = w_r + 1j * w_i
        X = X * W
        y = (lambda x, s, axes=(-2,-1): torch.fft.irfft2(x, s=s, dim=axes).to(torch.bfloat16))(X, (S, D), axes=(-2, -1))
        return y

    x = A_x
    g = _sigmoid((x * gate_w).sum(-1, keepdims=True))
    a = _A_ref(x, A_wq, A_wk, A_wv, A_wo)
    b = _B_ref(x, B_w_r, B_w_i)
    return g * a + (1 - g) * b
```

```python
HDR = open('gated_mix__grouped_kv_mqa__spectral_gfnet__prompt.s.ref').read().split('\n')
HDR = [l for l in HDR if l.startswith(';') and '@launch' not in l and 'Override' not in l and 'grid=ceil' not in l]

class Kern:
    def __init__(self, name, grid, block, lds, vgpr=256, sgpr=102, accum=None):
        self.name=name; self.grid=grid; self.block=block; self.lds=lds
        self.vgpr=vgpr; self.sgpr=sgpr; self.accum=accum
        self.L=[]
        self.nlab=0
    def __call__(self, s):
        for l in s.split('\n'):
            l=l.strip()
            if l: self.L.append('  '+l if not l.endswith(':') else l)
    def c(self, s): self.L.append('  ; '+s)
    def label(self, base='L'):
        self.nlab+=1
        return f'{self.name}_{base}{self.nlab}'
    def text(self):
        return f'.globl {self.name}\n.p2align 8\n.type {self.name},@function\n{self.name}:\n'+'\n'.join(self.L)+'\n'
    def desc(self):
        acc = self.accum if self.accum is not None else ((self.vgpr+3)//4*4)
        return f""".p2align 6
.amdhsa_kernel {self.name}
  .amdhsa_next_free_vgpr {self.vgpr}
  .amdhsa_next_free_sgpr {self.sgpr}
  .amdhsa_accum_offset {acc}
  .amdhsa_group_segment_fixed_size 0
  .amdhsa_kernarg_size 96
  .amdhsa_user_sgpr_count 2
  .amdhsa_user_sgpr_kernarg_segment_ptr 1
  .amdhsa_system_sgpr_workgroup_id_x 1
  .amdhsa_float_denorm_mode_32 3
  .amdhsa_float_denorm_mode_16_64 3
.end_amdhsa_kernel
"""

def emit(kerns, path, launches=None, single=False):
    s='\n'.join(HDR)+'\n'
    if single:
        k=kerns[0]
        s+=f'; @launch grid=({k.grid},1,1) block=({k.block},1,1) lds={k.lds}\n'
    else:
        for k in (launches or kerns):
            s+=f'; @launch kernel={k.name} grid=({k.grid},1,1) block=({k.block},1,1) lds={k.lds}\n'
    s+='.amdgcn_target "amdgcn-amd-amdhsa--gfx950"\n.text\n'
    for k in kerns: s+=k.text()
    s+='.section .rodata,"a"\n'
    for k in kerns: s+=k.desc()
    open(path,'w').write(s)

KA=dict(x=0,wq=8,wk=16,wv=24,wo=32,bx=40,wr=48,wi=56,gw=64,out=72,dbg=80,ws=88)
SIZES=dict(x=2048*640*2,wq=640*640*2,wk=640*20*2,wv=640*20*2,wo=640*640*2,wr=2048*321*2,wi=2048*321*2,gw=640*2,out=2048*640*2,dbg=256,ws=268435456)

def load_srd(k, sreg, name, tmp_pair=None, size=None):
    k(f's_load_dwordx2 s[{sreg}:{sreg+1}], s[0:1], {KA[name]}')
def fin_srd(k, sreg, name, size=None):
    k(f's_mov_b32 s{sreg+2}, {size if size is not None else SIZES[name]}')
    k(f's_mov_b32 s{sreg+3}, 0x20000')
```

```python
from asmgen import *
import math
def f2u(x):
    import struct
    return struct.unpack('<I',struct.pack('<f',x))[0]

WS_FX=0x2000; WS_FY=0x3000; WS_FB=0x4000; WS_FW=0x6000
WS_X1=0x400000; WS_WT=0x700000; WS_Y1=0xA00000; WS_B=0xD00000
S_X=4; S_WR=24; S_WI=28; S_WS=40; S_WAVE=44; S_TAG=47

def lanef(k, vk, vh, vkf, vhf):
    k(f'v_and_b32 v{vk}, 31, v1'); k(f'v_lshrrev_b32 v{vh}, 5, v1')
    k(f'v_cvt_f32_u32 v{vkf}, v{vk}'); k(f'v_cvt_f32_u32 v{vhf}, v{vh}')

def trig_pair(k, dst_c, dst_s, varg, negs=False):
    if dst_c is not None: k(f'v_cos_f32 v{dst_c}, v{varg}')
    if dst_s is not None:
        k(f'v_sin_f32 v{dst_s}, v{varg}')

def gen_perm_table(k, vidxf, vhf, scale, base16, dstc, dsts, tmp, negs=False, natural=False):
    a=tmp; ah=tmp+1
    k(f'v_mul_f32 v{a}, {f2u(scale):#x}, v{vidxf}')
    k(f'v_mul_f32 v{ah}, v{a}, v{vhf}')
    k(f'v_mul_f32 v{ah}, {"8.0" if False else hex(f2u(8.0 if natural else 4.0))}, v{ah}')
    for j in range(8):
        m = base16 + (j if natural else 8*(j>>2)+(j&3))
        arg=tmp+2+j
        k(f'v_fmamk_f32 v{arg}, v{a}, {f2u(float(m)):#x}, v{ah}')
    for j in range(8):
        arg=tmp+2+j
        k(f'v_cos_f32 v{tmp+10+j}, v{arg}')
    for j in range(8):
        arg=tmp+2+j
        k(f'v_sin_f32 v{arg}, v{arg}')
    k('s_nop 0')
    for j in range(4):
        k(f'v_cvt_pk_bf16_f32 v{dstc+j}, v{tmp+10+2*j}, v{tmp+11+2*j}')
        n='-' if negs else ''
        k(f'v_cvt_pk_bf16_f32 v{dsts+j}, {n}v{tmp+2+2*j}, {n}v{tmp+3+2*j}')

def gen_tables(k, L_T):
    lanef(k,3,4,5,6)
    k(f's_lshr_b32 s48, s{S_WAVE}, 2'); k('s_lshl_b32 s48, s48, 5'); k('v_add_u32 v7, s48, v3'); k('v_cvt_f32_u32 v7, v7')
    k(f'v_mul_f32 v8, {f2u(1/64):#x}, v7')
    k(f's_and_b32 s49, s{S_WAVE}, 3'); k('s_lshl_b32 s49, s49, 2')
    k('v_add_u32 v9, s49, v4'); k('v_cvt_f32_u32 v9, v9'); k('v_mul_f32 v9, 4.0, v9'); k('v_mul_f32 v9, v8, v9')
    def frag(a, ah, dc, ds_, tmp):
        for j in range(8):
            m=8*(j>>2)+(j&3)
            k(f'v_fmamk_f32 v{tmp+j}, v{a}, {f2u(float(m)):#x}, v{ah}')
        for j in range(8): k(f'v_cos_f32 v{tmp+8+j}, v{tmp+j}')
        for j in range(8): k(f'v_sin_f32 v{tmp+j}, v{tmp+j}')
        k('s_nop 0')
        for j in range(4):
            k(f'v_cvt_pk_bf16_f32 v{dc+j}, v{tmp+8+2*j}, v{tmp+9+2*j}')
            k(f'v_cvt_pk_bf16_f32 v{ds_+j}, v{tmp+2*j}, v{tmp+1+2*j}')
    frag(8,9,12,16,20)
    k(f's_lshl_b32 s48, s{S_WAVE}, 11'); k(f's_add_u32 s48, s48, {L_T}'); k('v_lshlrev_b32 v10, 4, v1'); k('v_add_u32 v11, s48, v10')
    k('ds_write_b128 v11, v[12:15]'); k('ds_write_b128 v11, v[16:19] offset:1024')
    lab=k.label('t32')
    k(f's_cmp_ge_u32 s{S_WAVE}, 2'); k(f's_cbranch_scc1 {lab}')
    k(f'v_mul_f32 v8, {f2u(1/32):#x}, v5')
    k(f's_lshl_b32 s49, s{S_WAVE}, 2'); k('v_add_u32 v9, s49, v4'); k('v_cvt_f32_u32 v9, v9'); k('v_mul_f32 v9, 4.0, v9'); k('v_mul_f32 v9, v8, v9')
    frag(8,9,12,16,20)
    k(f's_lshl_b32 s48, s{S_WAVE}, 11'); k(f's_add_u32 s48, s48, {L_T+16384}'); k('v_add_u32 v11, s48, v10')
    k('ds_write_b128 v11, v[12:15]'); k('ds_write_b128 v11, v[16:19] offset:1024')
    k(f'{lab}:')

def set_flag(k, base, idx_sgpr):
    k(f's_lshl_b32 s54, s{idx_sgpr}, 2'); k(f's_add_u32 s54, s54, {base}')
    k(f'v_mov_b32 v5, s{S_TAG}'); k('v_mov_b32 v6, 0')
    k('s_mov_b64 s[56:57], exec'); k('s_mov_b64 exec, 1')
    k(f'buffer_store_dword v5, v6, s[{S_WS}:{S_WS+3}], s54 offen sc1')
    k('s_mov_b64 exec, s[56:57]')

def row_fft(k, L_ST):
    k.c('==== row FFT duty')
    k('s_lshr_b32 s48, s2, 6'); k('s_and_b32 s49, s2, 63')
    k('s_lshr_b32 s50, s48, 1'); k('s_and_b32 s51, s48, 1')
    k('s_lshl_b32 s50, s50, 4'); k('s_lshl_b32 s51, s51, 2'); k('s_add_u32 s50, s50, s51')
    magic=(2**32+79)//80
    for c in range(640): assert (c*magic)>>32==c//80
    k(f's_mov_b32 s52, {magic}')
    for i in range(10):
        k(f'v_add_u32 v3, {64*i}, v1')
        k('v_mul_hi_u32 v4, v3, s52')
        k('v_mul_u32_u24 v5, 80, v4'); k('v_sub_u32 v5, v3, v5')
        k('v_lshrrev_b32 v6, 2, v4'); k('v_lshlrev_b32 v6, 3, v6'); k('v_and_b32 v4, 3, v4'); k('v_add3_u32 v4, v4, v6, s50')
        k('v_lshlrev_b32 v4, 6, v4'); k('v_add_u32 v4, s49, v4'); k('v_mul_u32_u24 v4, 1280, v4'); k('v_lshl_add_u32 v4, v5, 4, v4')
        k(f's_mov_b32 m0, {L_ST+1024*i}'); k('s_nop 0')
        k(f'buffer_load_dwordx4 v4, s[{S_X}:{S_X+3}], 0 offen lds')
    VK,VH,VKF,VHF=3,4,5,6
    lanef(k,VK,VH,VKF,VHF)
    B1C=16; B1S=24
    TC=32; TS=44
    A2R=56; A2I=62
    TMP=70
    for tau in range(2):
        gen_perm_table(k,VKF,VHF,1/32,16*tau,B1C+4*tau,B1S+4*tau,TMP,negs=True,natural=True)
    k(f'v_mul_f32 v{TMP}, {f2u(1/640):#x}, v{VKF}'); k(f'v_mul_f32 v{TMP+1}, v{TMP}, v{VHF}'); k(f'v_mul_f32 v{TMP+1}, 4.0, v{TMP+1}')
    for g in range(3):
        for i in range(4):
            r=4*g+i
            k(f'v_fmamk_f32 v{TMP+2}, v{TMP}, {f2u(float(8*g+i)):#x}, v{TMP+1}')
            k(f'v_cos_f32 v{TC+r}, v{TMP+2}'); k(f'v_sin_f32 v{TS+r}, v{TMP+2}')
    k(f'v_lshrrev_b32 v8, 3, v{VK}'); k('v_lshlrev_b32 v8, 2, v8'); k(f'v_bfe_u32 v9, v{VK}, 2, 1'); k('v_lshl_add_u32 v8, v9, 1, v8'); k(f'v_bfe_u32 v9, v{VK}, 1, 1'); k('v_add_u32 v8, v8, v9')
    k('v_cvt_f32_u32 v10, v8'); k(f'v_mul_f32 v10, {f2u(1/20):#x}, v10')
    k(f'v_and_b32 v9, 1, v{VK}')
    k('v_cmp_ge_u32 s[58:59], 10, v8')
    k('v_cmp_eq_u32 s[60:61], 0, v9')
    k(f'v_mul_f32 v11, v10, v{VHF}'); k('v_mul_f32 v11, 4.0, v11')
    k(f'v_cmp_eq_u32 s[62:63], 0, v{VH}')
    vals=[(0,j,8*(j>>2)+(j&3)) for j in range(8)]+[(1,j,16+j) for j in range(4)]
    for idx,(tau,j,m) in enumerate(vals):
        k(f'v_fmamk_f32 v{TMP}, v10, {f2u(float(m)):#x}, v11')
        k(f'v_cos_f32 v{TMP+1}, v{TMP}'); k(f'v_sin_f32 v{TMP+2}, v{TMP}'); k('s_nop 0')
        k(f'v_cndmask_b32 v{TMP+4+idx}, -v{TMP+2}, v{TMP+1}, s[60:61]')
        k(f'v_cndmask_b32 v{TMP+16+idx}, v{TMP+1}, v{TMP+2}, s[60:61]')
        k(f'v_cndmask_b32 v{TMP+4+idx}, 0, v{TMP+4+idx}, s[58:59]'); k(f'v_cndmask_b32 v{TMP+16+idx}, 0, v{TMP+16+idx}, s[58:59]')
        if tau==1:
            k(f'v_cndmask_b32 v{TMP+4+idx}, 0, v{TMP+4+idx}, s[62:63]'); k(f'v_cndmask_b32 v{TMP+16+idx}, 0, v{TMP+16+idx}, s[62:63]')
    for j in range(6):
        k(f'v_cvt_pk_bf16_f32 v{A2R+j}, v{TMP+4+2*j}, v{TMP+5+2*j}'); k(f'v_cvt_pk_bf16_f32 v{A2I+j}, v{TMP+16+2*j}, v{TMP+17+2*j}')
    k('v_and_b32 v8, 15, v1'); k('v_lshrrev_b32 v9, 2, v8'); k(f'v_lshl_add_u32 v9, v{VH}, 3, v9'); k('v_mul_u32_u24 v9, 40, v9')
    k('v_and_b32 v8, 3, v8'); k('v_lshl_add_u32 v9, v8, 3, v9'); k('v_bfe_u32 v8, v1, 4, 1'); k('v_lshl_add_u32 v9, v8, 5, v9'); k(f'v_add_u32 v12, {L_ST}, v9')
    k(f'v_cmp_eq_u32 s[62:63], 0, v{VH}')
    XA=100
    DR=108; DI=124
    TR=140; TI=146
    D2=152
    OUT=184
    k('s_waitcnt vmcnt(0)')
    for j in range(8):
        for tau in range(2):
            for q in range(2):
                k(f'ds_read_b64_tr_b16 v[{XA+4*tau+2*q}:{XA+4*tau+2*q+1}], v12 offset:{j*1280+tau*640+q*160}')
        k('s_waitcnt lgkmcnt(0)')
        for tau in range(2):
            c='0' if tau==0 else f'v[{DR}:{DR+15}]'
            k(f'v_mfma_f32_32x32x16_bf16 v[{DR}:{DR+15}], v[{XA+4*tau}:{XA+4*tau+3}], v[{B1C+4*tau}:{B1C+4*tau+3}], {c}')
        for tau in range(2):
            c='0' if tau==0 else f'v[{DI}:{DI+15}]'
            k(f'v_mfma_f32_32x32x16_bf16 v[{DI}:{DI+15}], v[{XA+4*tau}:{XA+4*tau+3}], v[{B1S+4*tau}:{B1S+4*tau+3}], {c}')
        k('s_nop 15')
        for r in range(12):
            k(f'v_mul_f32 v{TMP+r}, v{DR+r}, v{TC+r}'); k(f'v_fmac_f32 v{TMP+r}, v{DI+r}, v{TS+r}')
            k(f'v_mul_f32 v{TMP+12+r}, v{DI+r}, v{TC+r}'); k(f'v_fma_f32 v{TMP+12+r}, -v{DR+r}, v{TS+r}, v{TMP+12+r}')
        for jj in range(6):
            k(f'v_cvt_pk_bf16_f32 v{TR+jj}, v{TMP+2*jj}, v{TMP+2*jj+1}'); k(f'v_cvt_pk_bf16_f32 v{TI+jj}, v{TMP+12+2*jj}, v{TMP+13+2*jj}')
        for jj in (4,5):
            k(f'v_cndmask_b32 v{TR+jj}, 0, v{TR+jj}, s[62:63]'); k(f'v_cndmask_b32 v{TI+jj}, 0, v{TI+jj}, s[62:63]')
        k('s_nop 1')
        d=D2+16*(j&1)
        k(f'v_mfma_f32_32x32x16_bf16 v[{d}:{d+15}], v[{A2R}:{A2R+3}], v[{TR}:{TR+3}], 0')
        k(f'v_mfma_f32_32x32x16_bf16 v[{d}:{d+15}], v[{A2I}:{A2I+3}], v[{TI}:{TI+3}], v[{d}:{d+15}]')
        k(f'v_mfma_f32_32x32x8_bf16 v[{d}:{d+15}], v[{A2R+4}:{A2R+5}], v[{TR+4}:{TR+5}], v[{d}:{d+15}]')
        k(f'v_mfma_f32_32x32x8_bf16 v[{d}:{d+15}], v[{A2I+4}:{A2I+5}], v[{TI+4}:{TI+5}], v[{d}:{d+15}]')
        if j&1:
            k('s_nop 15')
            p=j>>1
            for r in range(12):
                k(f'v_cvt_pk_bf16_f32 v{OUT+4*r+p}, v{D2+r}, v{D2+16+r}')
    k(f'v_lshl_add_u32 v8, v{VH}, 6, v{VK}'); k('v_lshlrev_b32 v8, 13, v8')
    k('s_lshl_b32 s50, s49, 7'); k('s_lshl_b32 s51, s48, 4'); k('s_add_u32 s50, s50, s51'); k(f's_add_u32 s50, s50, {WS_X1}')
    for g in range(3):
        for i in range(4):
            r=4*g+i; m=i>>1; c=i&1
            if g==2 and i==0: k('s_mov_b32 exec_lo, -1'); k('s_mov_b32 exec_hi, 1')
            if g==2 and i==2: k('s_mov_b64 exec, 0xffffffff')
            k(f's_add_u32 s51, s50, {(4*g+m)*262144}')
            k(f'buffer_store_dwordx4 v[{OUT+4*r}:{OUT+4*r+3}], v8, s[{S_WS}:{S_WS+3}], s51 offen offset:{c*64} sc1')
    k('s_mov_b64 exec, -1')
    k('s_waitcnt vmcnt(0)')
    k('s_mov_b32 s60, s2'); set_flag(k,WS_FX,60)

def w_transpose(k):
    k.c('==== W transpose duty')
    k('s_and_b32 s48, s2, 31'); k('s_lshr_b32 s49, s2, 5')
    k('s_lshl_b32 s50, s49, 8'); k('s_add_u32 s50, s50, s48')
    k('s_mul_i32 s50, s50, 642')
    k('s_lshl_b32 s51, s49, 10'); k('s_lshl_b32 s52, s48, 5'); k('s_add_u32 s51, s51, s52'); k(f's_add_u32 s51, s51, {WS_WT}')
    for p in range(6):
        k(f'v_add_u32 v3, {64*p}, v1'); k('v_lshlrev_b32 v4, 1, v3')
        base=16+16*p
        for jj in range(8):
            k(f's_add_u32 s52, s50, {jj*32*642}')
            k(f'buffer_load_ushort v{base+jj}, v4, s[{S_WR}:{S_WR+3}], s52 offen')
            k(f'buffer_load_ushort v{base+8+jj}, v4, s[{S_WI}:{S_WI+3}], s52 offen')
    k('s_waitcnt vmcnt(0)')
    for p in range(6):
        base=16+16*p
        for jj in range(8): k(f'v_lshl_or_b32 v{base+jj}, v{base+8+jj}, 16, v{base+jj}')
        k(f'v_add_u32 v3, {64*p}, v1'); k('v_lshlrev_b32 v4, 13, v3')
        if p==5: k('s_mov_b64 exec, 1')
        k(f'buffer_store_dwordx4 v[{base}:{base+3}], v4, s[{S_WS}:{S_WS+3}], s51 offen sc1')
        k(f'buffer_store_dwordx4 v[{base+4}:{base+7}], v4, s[{S_WS}:{S_WS+3}], s51 offen offset:16 sc1')
    k('s_mov_b64 exec, -1')
    k('s_waitcnt vmcnt(0)')
    k('s_mov_b32 s60, s2'); set_flag(k,WS_FW,60)

def col_fft(k, L_T, s_col):
    k.c('==== column FFT duty')
    VK,VH,VKF,VHF=3,4,5,6
    lanef(k,VK,VH,VKF,VHF)
    XF=16
    XN=48
    WW=64
    D=96
    TF=160
    TB=208
    TW=224
    WS=f's[{S_WS}:{S_WS+3}]'
    k(f's_lshl_b32 s48, s{s_col}, 13')
    k(f'v_lshlrev_b32 v8, 7, v{VK}'); k(f'v_lshl_add_u32 v8, v{VH}, 4, v8')
    for u in range(2):
        k(f's_add_u32 s49, s48, {WS_X1+u*4096}')
        for c in range(2):
            for tau in range(2):
                r=XF+16*u+8*c+4*tau
                k(f'buffer_load_dwordx4 v[{r}:{r+3}], v8, {WS}, s49 offen offset:{c*64+tau*32} sc1')
    k(f'v_lshlrev_b32 v9, 5, v{VK}'); k(f'v_lshl_add_u32 v9, v{VH}, 4, v9')
    for tg in range(8):
        k(f's_add_u32 s49, s48, {WS_WT+tg*1024}')
        k(f'buffer_load_dwordx4 v[{WW+4*tg}:{WW+4*tg+3}], v9, {WS}, s49 offen sc1')
    k(f'v_lshlrev_b32 v10, 4, v1'); k(f'v_add_u32 v10, {L_T}, v10')
    T32=16384
    for tau in range(2):
        k(f'ds_read_b128 v[{TB+4*tau}:{TB+4*tau+3}], v10 offset:{T32+tau*2048}')
        k(f'ds_read_b128 v[{TB+8+4*tau}:{TB+8+4*tau+3}], v10 offset:{T32+tau*2048+1024}')
    k(f'v_mul_f32 v11, {f2u(1/2048):#x}, v{VKF}'); k(f'v_mul_f32 v12, v11, v{VHF}'); k('v_mul_f32 v12, 4.0, v12')
    k('s_waitcnt vmcnt(8) lgkmcnt(0)')
    k('s_mov_b32 s50, 0x80008000')
    for u in range(2):
        for tau in range(2):
            for j in range(4): k(f'v_xor_b32 v{XN+8*u+4*tau+j}, s50, v{XF+16*u+4*tau+j}')
    k('s_nop 1')
    def mf(d, a, b, first):
        c='0' if first else f'v[{d}:{d+15}]'
        k(f'v_mfma_f32_32x32x16_bf16 v[{d}:{d+15}], v[{a}:{a+3}], v[{b}:{b+3}], {c}')
    for u in range(2):
        dre=D+32*u; dim=dre+16
        for tau in range(2):
            xr=XF+16*u+4*tau; xi=XF+16*u+8+4*tau; xn=XN+8*u+4*tau; C=TB+4*tau; S=TB+8+4*tau
            mf(dre,xr,C,tau==0); mf(dim,xi,C,tau==0); mf(dre,xi,S,False); mf(dim,xn,S,False)
    def twiddle_pack(nreg_tiles, argfn, postscale=None):
        for a in range(2):
            dre=D+32*a; dim=dre+16
            for g in range(4):
                for i in range(4):
                    r=4*g+i
                    argfn(a,g,i,TW+i)
                for i in range(4):
                    k(f'v_cos_f32 v{TW+4+i}, v{TW+i}')
                for i in range(4):
                    k(f'v_sin_f32 v{TW+i}, v{TW+i}')
                for i in range(4):
                    r=4*g+i
                    k(f'v_mul_f32 v{TW+8+i}, v{dre+r}, v{TW+4+i}'); k(f'v_mul_f32 v{TW+12+i}, v{dim+r}, v{TW+4+i}')
                    k(f'v_fmac_f32 v{TW+8+i}, v{dim+r}, v{TW+i}'); k(f'v_fma_f32 v{TW+12+i}, -v{dre+r}, v{TW+i}, v{TW+12+i}')
                st=2*a+(g>>1); o=2*(g&1)
                for jj in range(2):
                    k(f'v_cvt_pk_bf16_f32 v{TF+4*st+o+jj}, v{TW+8+2*jj}, v{TW+9+2*jj}')
                    k(f'v_cvt_pk_bf16_f32 v{TF+16+4*st+o+jj}, v{TW+12+2*jj}, v{TW+13+2*jj}')
                    k(f'v_cvt_pk_bf16_f32 v{TF+32+4*st+o+jj}, -v{TW+8+2*jj}, -v{TW+9+2*jj}')
    k('s_nop 15')
    twiddle_pack(2, lambda a,g,i,dst: k(f'v_fmamk_f32 v{dst}, v11, {f2u(float(32*a+8*g+i)):#x}, v12'))
    def stage64(data_is_A):
        seq=[(t,tau) for t in range(2) for tau in range(4)]
        def rd(n):
            t,tau=seq[n]; b=n&1
            k(f'ds_read_b128 v[{TB+8*b}:{TB+8*b+3}], v10 offset:{(t*4+tau)*2048}')
            k(f'ds_read_b128 v[{TB+8*b+4}:{TB+8*b+7}], v10 offset:{(t*4+tau)*2048+1024}')
        rd(0)
        for n,(t,tau) in enumerate(seq):
            if n+1<8:
                rd(n+1); k('s_waitcnt lgkmcnt(2)')
            else: k('s_waitcnt lgkmcnt(0)')
            b=n&1; C=TB+8*b; S=C+4
            dre=D+32*t; dim=dre+16
            re=TF+4*tau; im=TF+16+4*tau; rn=TF+32+4*tau
            if data_is_A:
                mf(dre,re,C,tau==0); mf(dim,im,C,tau==0); mf(dre,im,S,False); mf(dim,rn,S,False)
            else:
                mf(dre,C,re,tau==0); mf(dim,C,im,tau==0); mf(dre,S,im,False); mf(dim,S,rn,False)
    k('s_nop 1')
    stage64(False)
    k('s_waitcnt vmcnt(0)')
    k('s_nop 15')
    for t in range(2):
        dre=D+32*t; dim=dre+16
        for g in range(4):
            w=WW+4*(4*t+g)
            for i in range(4):
                k(f'v_lshlrev_b32 v{TW+i}, 16, v{w+i}'); k(f'v_and_b32 v{TW+4+i}, 0xffff0000, v{w+i}')
            for i in range(4):
                r=4*g+i
                k(f'v_mul_f32 v{TW+8+i}, v{dre+r}, v{TW+i}'); k(f'v_mul_f32 v{TW+12+i}, v{dre+r}, v{TW+4+i}')
                k(f'v_fma_f32 v{TW+8+i}, -v{dim+r}, v{TW+4+i}, v{TW+8+i}'); k(f'v_fmac_f32 v{TW+12+i}, v{dim+r}, v{TW+i}')
            st=2*t+(g>>1); o=2*(g&1)
            for jj in range(2):
                k(f'v_cvt_pk_bf16_f32 v{TF+4*st+o+jj}, v{TW+8+2*jj}, v{TW+9+2*jj}')
                k(f'v_cvt_pk_bf16_f32 v{TF+16+4*st+o+jj}, -v{TW+12+2*jj}, -v{TW+13+2*jj}')
                k(f'v_cvt_pk_bf16_f32 v{TF+32+4*st+o+jj}, -v{TW+8+2*jj}, -v{TW+9+2*jj}')
    k('s_nop 1')
    stage64(True)
    k('s_nop 15')
    k(f'v_add_f32 v13, {f2u(32/2048):#x}, v11'); k(f'v_mul_f32 v14, v13, v{VHF}'); k('v_mul_f32 v14, 4.0, v14')
    twiddle_pack(2, lambda a,g,i,dst: k(f'v_fmamk_f32 v{dst}, v{11 if a==0 else 13}, {f2u(float(8*g+i)):#x}, v{12 if a==0 else 14}'))
    for tau in range(2):
        k(f'ds_read_b128 v[{TB+4*tau}:{TB+4*tau+3}], v10 offset:{T32+tau*2048}')
        k(f'ds_read_b128 v[{TB+8+4*tau}:{TB+8+4*tau+3}], v10 offset:{T32+tau*2048+1024}')
    k('s_waitcnt lgkmcnt(0)')
    for u in range(2):
        dre=D+32*u; dim=dre+16
        for sg in range(2):
            C=TB+4*sg; S=TB+8+4*sg; st=2*u+sg
            re=TF+4*st; im=TF+16+4*st; rn=TF+32+4*st
            mf(dre,C,re,sg==0); mf(dim,C,im,sg==0); mf(dre,S,im,False); mf(dim,S,rn,False)
    k(f's_mov_b32 s50, {f2u(2.0/(2048*640)):#x}'); k(f's_mov_b32 s51, {f2u(1.0/(2048*640)):#x}')
    k(f's_cmp_eq_u32 s{s_col}, 0'); k('s_cselect_b32 s50, s51, s50'); k(f's_cmp_eq_u32 s{s_col}, 320'); k('s_cselect_b32 s50, s51, s50')
    k('s_nop 15')
    k(f'v_lshlrev_b32 v8, 7, v{VK}'); k(f'v_lshl_add_u32 v8, v{VH}, 5, v8')
    for u in range(2):
        dre=D+32*u; dim=dre+16
        k(f's_add_u32 s49, s48, {WS_Y1+u*4096}')
        for tau in range(2):
            ob=TF+8*(2*u+tau)
            for j in range(8):
                r=4*(2*tau+(j>>2))+(j&3)
                k(f'v_mul_f32 v{TW+(j&1)*2}, s50, v{dre+r}'); k(f'v_mul_f32 v{TW+(j&1)*2+1}, s50, v{dim+r}')
                k(f'v_cvt_pk_bf16_f32 v{ob+j}, v{TW+(j&1)*2}, -v{TW+(j&1)*2+1}')
            k(f'buffer_store_dwordx4 v[{ob}:{ob+3}], v8, {WS}, s49 offen offset:{tau*64} sc1')
            k(f'buffer_store_dwordx4 v[{ob+4}:{ob+7}], v8, {WS}, s49 offen offset:{tau*64+16} sc1')
    k('s_waitcnt vmcnt(0)')

def row_ifft(k, L_ST):
    k.c('==== row iFFT duty')
    WS=f's[{S_WS}:{S_WS+3}]'
    VK,VH,VKF,VHF=3,4,5,6
    lanef(k,VK,VH,VKF,VHF)
    k('s_lshr_b32 s48, s2, 6'); k('s_and_b32 s49, s2, 63')
    k('s_lshl_b32 s50, s49, 7'); k('s_lshl_b32 s51, s48, 5'); k('s_add_u32 s50, s50, s51'); k(f's_add_u32 s50, s50, {WS_Y1}')
    LD=100
    for p in range(6):
        k(f'v_add_u32 v8, {64*p}, v1'); k('v_lshlrev_b32 v8, 13, v8')
        if p==5: k('s_mov_b64 exec, 1')
        k(f'buffer_load_dwordx4 v[{LD+8*p}:{LD+8*p+3}], v8, {WS}, s50 offen sc1')
        k(f'buffer_load_dwordx4 v[{LD+8*p+4}:{LD+8*p+7}], v8, {WS}, s50 offen offset:16 sc1')
    k('s_mov_b64 exec, -1')
    B1R=16; B1I=22
    TC=28; TS=44
    BC=60; BS=68
    TMP=150
    k(f'v_mul_f32 v10, {f2u(1/20):#x}, v{VKF}')
    k(f'v_cmp_gt_u32 s[58:59], 20, v{VK}')
    k(f'v_cmp_eq_u32 s[62:63], 0, v{VH}')
    k(f'v_mul_f32 v11, v10, v{VHF}')
    vals=[(0,j) for j in range(8)]+[(1,j) for j in range(4)]
    for idx,(st,j) in enumerate(vals):
        if st==0:
            k(f'v_mul_f32 v12, 4.0, v11'); m=(j>>1)
        else:
            k(f'v_mul_f32 v12, 2.0, v11'); m=8+(j>>1)
        c=j&1
        k(f'v_fmamk_f32 v{TMP}, v10, {f2u(float(m)):#x}, v12')
        k(f'v_cos_f32 v{TMP+1}, v{TMP}'); k(f'v_sin_f32 v{TMP+2}, v{TMP}'); k('s_nop 0')
        if c==0:
            k(f'v_mov_b32 v{TMP+4+idx}, v{TMP+1}'); k(f'v_mov_b32 v{TMP+16+idx}, v{TMP+2}')
        else:
            k(f'v_sub_f32 v{TMP+4+idx}, 0, v{TMP+2}'); k(f'v_mov_b32 v{TMP+16+idx}, v{TMP+1}')
        k(f'v_cndmask_b32 v{TMP+4+idx}, 0, v{TMP+4+idx}, s[58:59]'); k(f'v_cndmask_b32 v{TMP+16+idx}, 0, v{TMP+16+idx}, s[58:59]')
        if st==1 and (j>>1)==1:
            k(f'v_cndmask_b32 v{TMP+4+idx}, 0, v{TMP+4+idx}, s[62:63]'); k(f'v_cndmask_b32 v{TMP+16+idx}, 0, v{TMP+16+idx}, s[62:63]')
    for j in range(6):
        k(f'v_cvt_pk_bf16_f32 v{B1R+j}, v{TMP+4+2*j}, v{TMP+5+2*j}'); k(f'v_cvt_pk_bf16_f32 v{B1I+j}, v{TMP+16+2*j}, v{TMP+17+2*j}')
    k(f'v_mul_f32 v10, {f2u(1/640):#x}, v{VKF}'); k(f'v_mul_f32 v11, v10, v{VHF}'); k('v_mul_f32 v11, 4.0, v11')
    for g in range(4):
        for i in range(4):
            r=4*g+i
            k(f'v_fmamk_f32 v{TMP}, v10, {f2u(float(8*g+i)):#x}, v11')
            k(f'v_cos_f32 v{TC+r}, v{TMP}'); k(f'v_sin_f32 v{TS+r}, v{TMP}')
    for sg in range(2):
        gen_perm_table(k,VKF,VHF,1/32,16*sg,BC+4*sg,BS+4*sg,TMP,negs=True,natural=False)
    k('s_waitcnt vmcnt(0)')
    k(f'v_mul_u32_u24 v8, 48, v{VK}'); k(f'v_lshl_add_u32 v8, v{VH}, 2, v8'); k(f'v_add_u32 v8, {L_ST}, v8')
    for p in range(6):
        if p==5: k('s_mov_b64 exec, 1')
        for j in range(8):
            k(f'ds_write_b32 v8, v{LD+8*p+j} offset:{j*1536+p*8}')
    k('s_mov_b64 exec, -1')
    k(f'v_mul_u32_u24 v9, 48, v{VK}'); k(f'v_add_u32 v9, {L_ST}, v9'); k(f'v_lshl_add_u32 v12, v{VH}, 3, v9'); k(f'v_lshl_add_u32 v9, v{VH}, 4, v9')
    k(f'v_cmp_eq_u32 s[58:59], 0, v{VK}'); k('s_or_b64 s[58:59], s[58:59], s[62:63]')
    k('s_lshr_b32 s50, s48, 1'); k('s_and_b32 s51, s48, 1'); k('s_lshl_b32 s50, s50, 4'); k('s_lshl_b32 s51, s51, 2'); k('s_add_u32 s50, s50, s51')
    k(f'v_mul_u32_u24 v13, 40, v{VK}'); k(f'v_lshl_add_u32 v13, v{VH}, 3, v13')
    YA=80; YB=84
    UR=100; UI=116
    VR=132; VI=140
    DO=200
    k('s_waitcnt lgkmcnt(0)')
    for j in range(8):
        k(f'ds_read_b128 v[{YA}:{YA+3}], v9 offset:{j*1536}')
        k(f'ds_read_b64 v[{YB}:{YB+1}], v12 offset:{j*1536+32}')
        k('s_waitcnt lgkmcnt(0)')
        k(f'v_cndmask_b32 v{YB}, 0, v{YB}, s[58:59]'); k(f'v_cndmask_b32 v{YB+1}, 0, v{YB+1}, s[62:63]')
        k('s_nop 1')
        k(f'v_mfma_f32_32x32x16_bf16 v[{UR}:{UR+15}], v[{YA}:{YA+3}], v[{B1R}:{B1R+3}], 0')
        k(f'v_mfma_f32_32x32x16_bf16 v[{UI}:{UI+15}], v[{YA}:{YA+3}], v[{B1I}:{B1I+3}], 0')
        k(f'v_mfma_f32_32x32x8_bf16 v[{UR}:{UR+15}], v[{YB}:{YB+1}], v[{B1R+4}:{B1R+5}], v[{UR}:{UR+15}]')
        k(f'v_mfma_f32_32x32x8_bf16 v[{UI}:{UI+15}], v[{YB}:{YB+1}], v[{B1I+4}:{B1I+5}], v[{UI}:{UI+15}]')
        k('s_nop 15')
        for r in range(16):
            t=TMP+2*(r&1)
            k(f'v_mul_f32 v{TMP+4+r}, v{UR+r}, v{TC+r}'); k(f'v_mul_f32 v{TMP+20+r}, v{UR+r}, v{TS+r}')
            k(f'v_fma_f32 v{TMP+4+r}, -v{UI+r}, v{TS+r}, v{TMP+4+r}'); k(f'v_fmac_f32 v{TMP+20+r}, v{UI+r}, v{TC+r}')
        for jj in range(8):
            k(f'v_cvt_pk_bf16_f32 v{VR+jj}, v{TMP+4+2*jj}, v{TMP+5+2*jj}'); k(f'v_cvt_pk_bf16_f32 v{VI+jj}, v{TMP+20+2*jj}, v{TMP+21+2*jj}')
        k('s_nop 1')
        k(f'v_mfma_f32_32x32x16_bf16 v[{DO}:{DO+15}], v[{VR}:{VR+3}], v[{BC}:{BC+3}], 0')
        k(f'v_mfma_f32_32x32x16_bf16 v[{DO}:{DO+15}], v[{VI}:{VI+3}], v[{BS}:{BS+3}], v[{DO}:{DO+15}]')
        k(f'v_mfma_f32_32x32x16_bf16 v[{DO}:{DO+15}], v[{VR+4}:{VR+7}], v[{BC+4}:{BC+7}], v[{DO}:{DO+15}]')
        k(f'v_mfma_f32_32x32x16_bf16 v[{DO}:{DO+15}], v[{VI+4}:{VI+7}], v[{BS+4}:{BS+7}], v[{DO}:{DO+15}]')
        k('s_nop 15')
        ob=220+6*(j&1)
        for jj in range(6): k(f'v_cvt_pk_bf16_f32 v{ob+jj}, v{DO+2*jj}, v{DO+2*jj+1}')
        k(f's_add_u32 s51, s50, {8*(j>>2)+(j&3)}'); k('s_lshl_b32 s51, s51, 6'); k('s_add_u32 s51, s51, s49'); k('s_mul_i32 s51, s51, 1280'); k(f's_add_u32 s51, s51, {WS_B}')
        k(f'buffer_store_dwordx2 v[{ob}:{ob+1}], v13, {WS}, s51 offen sc1')
        k(f'buffer_store_dwordx2 v[{ob+2}:{ob+3}], v13, {WS}, s51 offen offset:16 sc1')
        k('s_mov_b64 exec, 0xffffffff')
        k(f'buffer_store_dwordx2 v[{ob+4}:{ob+5}], v13, {WS}, s51 offen offset:32 sc1')
        k('s_mov_b64 exec, -1')
    k('s_waitcnt vmcnt(0)')
    k('s_mov_b32 s60, s2'); set_flag(k,WS_FB,60)
```

```python
import sys, math
from asmgen import *
import fft

NAME='gated_mix__grouped_kv_mqa__spectral_gfnet__prompt_kernel'
WS_EPOCH=0
WS_FKV=0x1000; WS_FX=0x2000; WS_FY=0x3000; WS_FB=0x4000; WS_FO=0x5000; WS_FY2=0x7000
WS_KV=0x10000
WS_G=0x50000
WS_KM=0x52000
WS_TS=0x60000
WS_O=0x100000
WS_X1=0x400000
WS_WT=0x700000
WS_Y1=0xA00000
WS_B=0xD00000
WS_SIZE=0x1000000
XS=1296
L_X=0; L_W=82944; SLOT=25600; L_SP=159744
L_GW=L_SP
L_MISC=L_SP+2048
L_RED=L_X
L_Q1=0; L_Q2=8192; L_O=12288; OT=21*256
L_WO=61440
LDS_TOTAL=163840
S_X=4; S_WQ=8; S_WK=12; S_WV=16; S_WO=20; S_WR=24; S_WI=28; S_GW=32; S_OUT=36; S_WS=40
S_WAVE=44; S_RB=45; S_HG=46; S_TAG=47
S_T0=48
S_TS=64
S_TSBASE=68
CSCALE = (20**-0.5)*1.4426950408889634
def f2u(x):
    import struct
    return struct.unpack('<I',struct.pack('<f',x))[0]

class G(Kern):
    def __init__(s, opts):
        super().__init__(NAME,256,512,LDS_TOTAL,vgpr=256,sgpr=102)
        s.o=opts
        s.nts=0
    def ts(s, idx):
        if not s.o.get('ts'): return
        s(f's_memrealtime s[{S_TS}:{S_TS+1}]')
        s('s_waitcnt lgkmcnt(0)')
        s(f'v_writelane_b32 v255, s{S_TS}, {idx}')
    def tc(s, idx):
        if not s.o.get('ts'): return
        s(f's_memtime s[{S_TS}:{S_TS+1}]')
        s('s_waitcnt lgkmcnt(0)')
        s(f'v_writelane_b32 v255, s{S_TS}, {idx}')
    def ts_flush(s):
        if not s.o.get('ts'): return
        s(f's_lshl_b32 s{S_TS}, s2, 3'); s(f's_add_u32 s{S_TS}, s{S_TS}, s{S_WAVE}'); s(f's_lshl_b32 s{S_TS}, s{S_TS}, 6')
        s(f's_add_u32 s{S_TS}, s{S_TS}, {WS_TS}')
        s('v_mbcnt_lo_u32_b32 v254, -1, 0'); s('v_mbcnt_hi_u32_b32 v254, -1, v254')
        s('v_lshlrev_b32 v253, 2, v254'); s(f'v_add_u32 v253, s{S_TS}, v253')
        s('v_cmp_gt_u32 vcc, 16, v254')
        s(f's_and_saveexec_b64 s[{S_TS+2}:{S_TS+3}], vcc')
        s(f'buffer_store_dword v255, v253, s[{S_WS}:{S_WS+3}], 0 offen')
        s(f's_mov_b64 exec, s[{S_TS+2}:{S_TS+3}]')

def prologue(k):
    k('s_cmp_ge_u32 s2, 256')
    k(f's_cbranch_scc1 {NAME}_end')
    k('s_load_dwordx8 s[48:55], s[0:1], 0')
    k('s_load_dwordx2 s[56:57], s[0:1], 32')
    k('s_load_dwordx4 s[60:63], s[0:1], 48')
    k('s_load_dwordx4 s[64:67], s[0:1], 64')
    k('s_load_dwordx2 s[68:69], s[0:1], 88')
    k('v_and_b32 v1, 63, v0')
    k('v_lshrrev_b32 v2, 6, v0')
    k('s_and_b32 s46, s2, 7')
    k('s_lshr_b32 s45, s2, 3')
    k('v_readfirstlane_b32 s44, v2')
    k('s_waitcnt lgkmcnt(0)')
    for (sr,src,name) in [(S_X,48,'x'),(S_WQ,50,'wq'),(S_WK,52,'wk'),(S_WV,54,'wv'),(S_WO,56,'wo'),(S_WR,60,'wr'),(S_WI,62,'wi'),(S_GW,64,'gw'),(S_OUT,66,'out'),(S_WS,68,'ws')]:
        k(f's_mov_b32 s{sr}, s{src}'); k(f's_mov_b32 s{sr+1}, s{src+1}')
        k(f's_mov_b32 s{sr+2}, {WS_SIZE if name=="ws" else SIZES[name]}'); k(f's_mov_b32 s{sr+3}, 0x20000')
    k(f's_load_dword s{S_TAG}, s[{S_WS}:{S_WS+1}], {WS_EPOCH}')
    k('v_mov_b32 v255, 0') if k.o.get('ts') else None
    k.ts(0)

def dma_x(k):
    k.c('DMA x block')
    magic=(2**32+80)//81
    for c in range(5184): assert (c*magic)>>32==c//81
    k(f's_mov_b32 s48, {magic}')
    k(f's_mul_i32 s49, s{S_RB}, {64*1280}')
    for m in range(11):
        lab=k.label()
        k(f's_add_u32 s50, s{S_WAVE}, {8*m}')
        if m==10:
            k('s_cmp_ge_u32 s50, 81'); k(f's_cbranch_scc1 {lab}')
        k('s_lshl_b32 s51, s50, 6')
        k('v_add_u32 v3, s51, v1')
        k('v_mul_hi_u32 v4, v3, s48')
        k('v_mul_u32_u24 v5, 81, v4')
        k('v_sub_u32 v5, v3, v5')
        k('v_min_u32 v5, 79, v5')
        k('v_mul_u32_u24 v4, 1280, v4')
        k('v_lshlrev_b32 v5, 4, v5')
        k('v_add3_u32 v4, v4, v5, s49')
        k(f's_lshl_b32 m0, s50, 10')
        k('s_nop 0')
        k(f'buffer_load_dwordx4 v4, s[{S_X}:{S_X+3}], 0 offen lds')
        if m==10: k(f'{lab}:')

def wq_addrs(k):
    k('s_mov_b32 s48, 0xCCCCCCCD')
    k(f's_mul_i32 s49, s{S_HG}, 160')
    for m in range(4):
        k(f's_add_u32 s50, s{S_WAVE}, {8*m}')
        k('s_lshl_b32 s51, s50, 6')
        k('v_add_u32 v3, s51, v1')
        k('v_mul_hi_u32 v4, v3, s48')
        k('v_lshrrev_b32 v4, 3, v4')
        k('v_mul_u32_u24 v5, 10, v4')
        k('v_sub_u32 v5, v3, v5')
        k('v_mul_u32_u24 v4, 1280, v4')
        k('v_lshlrev_b32 v5, 4, v5')
        k(f'v_add3_u32 v{8+m}, v4, v5, s49')

def dma_wchunk(k, srd, chunk, slot):
    k(f's_mov_b32 s52, {chunk*160*1280}')
    for m in range(4):
        lab=k.label()
        k(f's_add_u32 s50, s{S_WAVE}, {8*m}')
        if m==3:
            k('s_cmp_ge_u32 s50, 25'); k(f's_cbranch_scc1 {lab}')
        k('s_lshl_b32 s51, s50, 10')
        k(f's_add_u32 m0, s51, {L_W+slot*SLOT}')
        k('s_nop 0')
        k(f'buffer_load_dwordx4 v{8+m}, s[{srd}:{srd+3}], s52 offen lds')
        if m==3: k(f'{lab}:')

def dma_linear(k, srd, nbytes, ldsbase):
    n=(nbytes+1023)//1024
    k('v_lshlrev_b32 v3, 4, v1')
    for m in range((n+7)//8):
        lab=k.label()
        k(f's_add_u32 s50, s{S_WAVE}, {8*m}')
        need = (8*m+8>n)
        if need:
            k(f's_cmp_ge_u32 s50, {n}'); k(f's_cbranch_scc1 {lab}')
        k('s_lshl_b32 s51, s50, 10')
        k(f's_add_u32 m0, s51, {ldsbase}')
        k('s_nop 0')
        k(f'buffer_load_dwordx4 v3, s[{srd}:{srd+3}], s51 offen lds')
        if need: k(f'{lab}:')

def wave_max32(k, v, tmp):
    for sh in (1,2,4,8):
        k('s_nop 1')
        k(f'v_max_f32_dpp v{v}, v{v}, v{v} row_shr:{sh} row_mask:0xf bank_mask:0xf')
    k('s_nop 1')
    k(f'v_max_f32_dpp v{v}, v{v}, v{v} row_bcast:15 row_mask:0xa bank_mask:0xf')

def kv_proj(k):
    k.c('==== K/V projection')
    k(f's_and_b32 s48, s{S_WAVE}, 1')
    k(f's_bfe_u32 s49, s{S_WAVE}, 0x10001')
    k(f's_lshr_b32 s50, s{S_WAVE}, 2')
    k('v_and_b32 v3, 31, v1'); k('v_lshrrev_b32 v4, 5, v1')
    k('s_lshl_b32 s51, s48, 5'); k('v_add_u32 v5, s51, v3'); k(f'v_mul_u32_u24 v5, {XS}, v5')
    k('v_lshlrev_b32 v6, 4, v4'); k('s_mul_i32 s51, s50, 640'); k('v_add3_u32 v12, v5, v6, s51')
    k(f'v_add_u32 v14, s51, v6'); k(f'v_add_u32 v14, {L_GW}, v14')
    k('v_and_b32 v5, 15, v1'); k('v_lshrrev_b32 v6, 2, v5'); k('v_lshl_add_u32 v6, v4, 3, v6'); k('v_mul_u32_u24 v6, 40, v6')
    k('v_and_b32 v5, 3, v5'); k('v_lshlrev_b32 v5, 3, v5'); k('v_bfe_u32 v7, v1, 4, 1'); k('v_lshlrev_b32 v7, 5, v7'); k('v_add3_u32 v6, v6, v5, v7')
    k(f's_mul_i32 s51, s49, {SLOT}'); k('s_mul_i32 s52, s50, 12800'); k('s_add_u32 s51, s51, s52'); k(f's_add_u32 s51, s51, {L_W}')
    k('v_add_u32 v13, s51, v6')
    ACC=16; GA=32; XF=48; WF=64; GF=80
    labV=k.label('V'); labJ=k.label('J')
    k('s_cmp_eq_u32 s49, 1'); k(f's_cbranch_scc1 {labV}')
    for isV in (0,1):
        if isV: k(f'{labV}:')
        def rd(t):
            b=t&1
            k(f'ds_read_b128 v[{XF+4*b}:{XF+4*b+3}], v12 offset:{32*t}')
            k(f'ds_read_b64_tr_b16 v[{WF+4*b}:{WF+4*b+1}], v13 offset:{640*t}')
            k(f'ds_read_b64_tr_b16 v[{WF+4*b+2}:{WF+4*b+3}], v13 offset:{640*t+160}')
            if not isV: k(f'ds_read_b128 v[{GF+4*b}:{GF+4*b+3}], v14 offset:{32*t}')
        nrd=3 if isV else 4
        rd(0)
        for t in range(20):
            if t+1<20:
                rd(t+1); k(f's_waitcnt lgkmcnt({nrd})')
            else: k('s_waitcnt lgkmcnt(0)')
            b=t&1
            c='0' if t==0 else f'v[{ACC}:{ACC+15}]'
            X=f'v[{XF+4*b}:{XF+4*b+3}]'; W=f'v[{WF+4*b}:{WF+4*b+3}]'
            if isV: k(f'v_mfma_f32_32x32x16_bf16 v[{ACC}:{ACC+15}], {X}, {W}, {c}')
            else:
                k(f'v_mfma_f32_32x32x16_bf16 v[{ACC}:{ACC+15}], {W}, {X}, {c}')
                cg='0' if t==0 else f'v[{GA}:{GA+15}]'
                k(f'v_mfma_f32_32x32x16_bf16 v[{GA}:{GA+15}], v[{GF+4*b}:{GF+4*b+3}], {X}, {cg}')
        if not isV: k(f's_branch {labJ}')
    k(f'{labJ}:')
    k('s_nop 15')
    k('s_barrier')
    k(f's_and_b32 s51, s{S_WAVE}, 3'); k(f's_mul_i32 s51, s51, {17*256}'); k(f's_add_u32 s51, s51, {L_W}')
    k('v_lshlrev_b32 v5, 2, v1'); k('v_add_u32 v5, s51, v5')
    labR=k.label('R'); labE=k.label('E')
    k('s_cmp_eq_u32 s50, 0'); k(f's_cbranch_scc1 {labR}')
    for r in range(16): k(f'ds_write_b32 v5, v{ACC+r} offset:{256*r}')
    k(f'ds_write_b32 v5, v{GA} offset:{256*16}')
    k('s_waitcnt lgkmcnt(0)')
    k('s_barrier')
    k(f's_branch {labE}')
    k(f'{labR}:')
    k('s_barrier')
    for r in range(16): k(f'ds_read_b32 v{XF+r}, v5 offset:{256*r}')
    k(f'ds_read_b32 v{GF}, v5 offset:{256*16}')
    k('s_waitcnt lgkmcnt(0)')
    for r in range(16): k(f'v_add_f32 v{ACC+r}, v{ACC+r}, v{XF+r}')
    k(f'v_add_f32 v{GA}, v{GA}, v{GF}')
    k(f's_lshl_b32 s51, s{S_RB}, 1'); k('s_add_u32 s51, s51, s48'); k('s_lshl_b32 s52, s51, 12'); k(f's_add_u32 s52, s52, {WS_KV}')
    labFV=k.label('FV')
    k('s_cmp_eq_u32 s49, 1'); k(f's_cbranch_scc1 {labFV}')
    for j in range(6): k(f'v_cvt_pk_bf16_f32 v{48+j}, v{ACC+2*j}, v{ACC+2*j+1}')
    k('v_cmp_gt_u32 vcc, 32, v1')
    k('s_nop 1')
    k('v_cndmask_b32 v52, 0, v52, vcc'); k('v_cndmask_b32 v53, 0, v53, vcc')
    k('v_lshlrev_b32 v6, 4, v1'); k('v_lshlrev_b32 v7, 3, v1')
    k(f'buffer_store_dwordx4 v[48:51], v6, s[{S_WS}:{S_WS+3}], s52 offen sc1')
    k(f'buffer_store_dwordx2 v[52:53], v7, s[{S_WS}:{S_WS+3}], s52 offen offset:3072 sc1')
    k(f'v_mul_f32 v54, v{ACC}, v{ACC}')
    for r in range(1,8): k(f'v_fmac_f32 v54, v{ACC+r}, v{ACC+r}')
    k(f'v_mul_f32 v55, v{ACC+8}, v{ACC+8}')
    for r in range(9,12): k(f'v_fmac_f32 v55, v{ACC+r}, v{ACC+r}')
    k('v_cndmask_b32 v55, 0, v55, vcc')
    k('v_add_f32 v54, v54, v55')
    k('v_mov_b32 v55, v54')
    k('s_nop 1')
    k('v_permlane32_swap_b32 v54, v55')
    k('s_nop 1')
    k('v_add_f32 v54, v54, v55')
    wave_max32(k,54,55)
    k(f'v_mul_f32 v56, {f2u(-1.4426950408889634):#x}, v{GA}')
    k('v_exp_f32 v56, v56'); k('s_nop 0'); k('v_add_f32 v56, 1.0, v56'); k('v_rcp_f32 v56, v56')
    k('v_readlane_b32 s53, v54, 31')
    k('s_lshl_b32 s54, s51, 7'); k(f's_add_u32 s54, s54, {WS_G}')
    k('v_lshlrev_b32 v7, 2, v1')
    k('v_mov_b32 v57, s53')
    k(f's_lshl_b32 s55, s51, 3'); k(f's_add_u32 s55, s55, {WS_KM}')
    k('s_mov_b64 s[56:57], exec')
    k('s_mov_b64 exec, 0xffffffff')
    k(f'buffer_store_dword v56, v7, s[{S_WS}:{S_WS+3}], s54 offen sc1')
    k('s_mov_b64 exec, 1')
    k(f'buffer_store_dword v57, v7, s[{S_WS}:{S_WS+3}], s55 offen sc1')
    k('s_mov_b64 exec, s[56:57]')
    k(f's_branch {labE}')
    k(f'{labFV}:')
    for j in range(8): k(f'v_cvt_pk_bf16_f32 v{48+j}, v{ACC+2*j}, v{ACC+2*j+1}')
    k('v_and_b32 v7, 31, v1'); k('v_cmp_eq_u32 vcc, 20, v7'); k('v_mov_b32 v6, 0x3f803f80')
    k('s_nop 0')
    for j in range(8): k(f'v_cndmask_b32 v{48+j}, v{48+j}, v6, vcc')
    k('v_lshlrev_b32 v6, 4, v1')
    k(f'buffer_store_dwordx4 v[48:51], v6, s[{S_WS}:{S_WS+3}], s52 offen offset:1024 sc1')
    k(f'buffer_store_dwordx4 v[52:55], v6, s[{S_WS}:{S_WS+3}], s52 offen offset:2048 sc1')
    k(f'v_and_b32 v56, 0x7fffffff, v{ACC}')
    for r in range(1,16): k(f'v_max_f32 v56, v56, abs(v{ACC+r})')
    k('v_cmp_gt_u32 vcc, 20, v7'); k('s_nop 1'); k('v_cndmask_b32 v56, 0, v56, vcc')
    k('v_mov_b32 v57, v56'); k('s_nop 1'); k('v_permlane32_swap_b32 v56, v57'); k('s_nop 1'); k('v_max_f32 v56, v56, v57')
    wave_max32(k,56,57)
    k('s_nop 0')
    k('v_readlane_b32 s53, v56, 31')
    k(f's_lshl_b32 s55, s51, 3'); k(f's_add_u32 s55, s55, {WS_KM+4}')
    k('v_mov_b32 v57, s53'); k('v_mov_b32 v7, 0')
    k('s_mov_b64 s[56:57], exec'); k('s_mov_b64 exec, 1')
    k(f'buffer_store_dword v57, v7, s[{S_WS}:{S_WS+3}], s55 offen sc1')
    k('s_mov_b64 exec, s[56:57]')
    k(f'{labE}:')
    k('s_waitcnt vmcnt(0)')
    k('s_barrier')
    labP=k.label('P')
    k(f's_cmp_lg_u32 s{S_WAVE}, 0'); k(f's_cbranch_scc1 {labP}')
    k(f's_add_u32 s53, s{S_TAG}, 0')
    k('v_mov_b32 v5, s53'); k(f's_lshl_b32 s54, s{S_RB}, 2'); k(f's_add_u32 s54, s54, {WS_FKV}'); k('v_mov_b32 v6, 0')
    k('s_mov_b64 s[56:57], exec'); k('s_mov_b64 exec, 1')
    k(f'buffer_store_dword v5, v6, s[{S_WS}:{S_WS+3}], s54 offen sc1')
    k('s_mov_b64 exec, s[56:57]')
    k(f'{labP}:')

def q_proj_setup(k):
    k(f's_and_b32 s48, s{S_WAVE}, 1')
    k(f's_lshr_b32 s49, s{S_WAVE}, 1')
    k('v_and_b32 v3, 31, v1'); k('v_lshrrev_b32 v4, 5, v1')
    k('s_lshl_b32 s51, s48, 5'); k('v_add_u32 v5, s51, v3'); k(f'v_mul_u32_u24 v5, {XS}, v5')
    k('v_lshl_add_u32 v12, v4, 4, v5')
    k('v_and_b32 v5, 15, v1'); k('v_lshrrev_b32 v6, 2, v5'); k('v_lshl_add_u32 v6, v4, 3, v6'); k('v_mul_u32_u24 v6, 160, v6')
    k('v_and_b32 v5, 3, v5'); k('v_lshlrev_b32 v5, 3, v5'); k('v_bfe_u32 v7, v1, 4, 1'); k('v_lshlrev_b32 v7, 5, v7'); k('v_add3_u32 v6, v6, v5, v7')
    k('s_mul_i32 s51, s49, 40'); k(f's_add_u32 s51, s51, {L_W}'); k('v_add_u32 v13, s51, v6')
    k(f'v_add_u32 v14, {2*SLOT}, v13')

def q_proj_chunk(k, chunk, slot):
    ACC=16; XF=48; WF=64
    va = 14 if slot==2 else 13
    so = 0 if slot==2 else slot*SLOT
    def rd(tt):
        t=chunk*10+tt; b=tt&1
        k(f'ds_read_b128 v[{XF+4*b}:{XF+4*b+3}], v12 offset:{32*t}')
        k(f'ds_read_b64_tr_b16 v[{WF+4*b}:{WF+4*b+1}], v{va} offset:{so+2560*tt}')
        k(f'ds_read_b64_tr_b16 v[{WF+4*b+2}:{WF+4*b+3}], v{va} offset:{so+2560*tt+640}')
    rd(0)
    for tt in range(10):
        if tt+1<10:
            rd(tt+1); k('s_waitcnt lgkmcnt(3)')
        else: k('s_waitcnt lgkmcnt(0)')
        b=tt&1
        c='0' if (chunk==0 and tt==0) else f'v[{ACC}:{ACC+15}]'
        k(f'v_mfma_f32_32x32x16_bf16 v[{ACC}:{ACC+15}], v[{WF+4*b}:{WF+4*b+3}], v[{XF+4*b}:{XF+4*b+3}], {c}')

def q_finalize(k):
    ACC=16
    k('s_nop 15')
    k(f's_mov_b32 s50, {f2u(CSCALE):#x}')
    for r in range(12): k(f'v_mul_f32 v{ACC+r}, s50, v{ACC+r}')
    for j in range(6): k(f'v_cvt_pk_bf16_f32 v{48+j}, v{ACC+2*j}, v{ACC+2*j+1}')
    k('v_cmp_gt_u32 vcc, 32, v1')
    k(f'v_mul_f32 v54, v{ACC}, v{ACC}')
    for r in range(1,8): k(f'v_fmac_f32 v54, v{ACC+r}, v{ACC+r}')
    k(f'v_mul_f32 v55, v{ACC+8}, v{ACC+8}')
    for r in range(9,12): k(f'v_fmac_f32 v55, v{ACC+r}, v{ACC+r}')
    k('v_cndmask_b32 v55, 0, v55, vcc')
    k('v_cndmask_b32 v52, 0, v52, vcc'); k('v_cndmask_b32 v53, 0, v53, vcc')
    k('v_add_f32 v54, v54, v55'); k('v_mov_b32 v55, v54'); k('s_nop 1')
    k('v_permlane32_swap_b32 v54, v55'); k('s_nop 1'); k('v_add_f32 v54, v54, v55')
    wave_max32(k,54,55)


def poll_flags(k, off_sgpr_or_imm, nlanes, per_lane_dwords=1, vtmp=5):
    lab=k.label('poll')
    k('s_mov_b64 s[56:57], exec')
    if nlanes<64:
        k(f's_mov_b64 exec, {hex((1<<nlanes)-1)}')
    k(f'v_lshlrev_b32 v{vtmp}, {2+int(math.log2(per_lane_dwords))}, v1')
    k(f'{lab}:')
    if per_lane_dwords==1:
        k(f'buffer_load_dword v{vtmp+1}, v{vtmp}, s[{S_WS}:{S_WS+3}], {off_sgpr_or_imm} offen sc1')
        k('s_waitcnt vmcnt(0)')
        k(f'v_cmp_ne_u32 vcc, s{S_TAG}, v{vtmp+1}')
    else:
        assert per_lane_dwords==4 and (vtmp+2)%2==0
        k(f'buffer_load_dwordx4 v[{vtmp+2}:{vtmp+5}], v{vtmp}, s[{S_WS}:{S_WS+3}], {off_sgpr_or_imm} offen sc1')
        k('s_waitcnt vmcnt(0)')
        for j in range(4): k(f'v_xor_b32 v{vtmp+2+j}, s{S_TAG}, v{vtmp+2+j}')
        k(f'v_or_b32 v{vtmp+2}, v{vtmp+2}, v{vtmp+3}'); k(f'v_or_b32 v{vtmp+4}, v{vtmp+4}, v{vtmp+5}'); k(f'v_or_b32 v{vtmp+2}, v{vtmp+2}, v{vtmp+4}')
        k(f'v_cmp_ne_u32 vcc, 0, v{vtmp+2}')
    done=k.label('polld')
    k(f's_cbranch_vccz {done}')
    k('s_sleep 2')
    k(f's_branch {lab}')
    k(f'{done}:')
    k('s_mov_b64 exec, s[56:57]')

def set_flag(k, base, idx_sgpr):
    k(f's_lshl_b32 s54, s{idx_sgpr}, 2'); k(f's_add_u32 s54, s54, {base}')
    k(f'v_mov_b32 v5, s{S_TAG}'); k('v_mov_b32 v6, 0')
    k('s_mov_b64 s[56:57], exec'); k('s_mov_b64 exec, 1')
    k(f'buffer_store_dword v5, v6, s[{S_WS}:{S_WS+3}], s54 offen sc1')
    k('s_mov_b64 exec, s[56:57]')

def dma_wfull(k, srd, ldsbase):
    for chunk in range(4):
        k(f's_mov_b32 s52, {chunk*160*1280}')
        for m in range(4):
            lab=k.label()
            k(f's_add_u32 s50, s{S_WAVE}, {8*m}')
            if m==3:
                k('s_cmp_ge_u32 s50, 25'); k(f's_cbranch_scc1 {lab}')
            k('s_lshl_b32 s51, s50, 10')
            k(f's_add_u32 m0, s51, {ldsbase+chunk*SLOT}')
            k('s_nop 0')
            k(f'buffer_load_dwordx4 v{8+m}, s[{srd}:{srd+3}], s52 offen lds')
            if m==3: k(f'{lab}:')

K1=24; K2=56; VV=72; SS=136; PP=168; OO=176; Q1=208; Q2=216
VOA=220; VQ1A=221; VQ2A=222
S_IT=70; S_QT=71

def flush_O(k, O):
    T=224
    idx=0
    for g in range(3):
        for i in range(4):
            k(f'v_cvt_f64_f32 v[{T+2*idx}:{T+2*idx+1}], v{O+4*g+i}')
            idx+=1
    idx=0
    for g in range(3):
        for i in range(4):
            if g==2 and i==1: k('s_mov_b64 exec, 0xffffffff')
            k(f'ds_add_f64 v{VOA}, v[{T+2*idx}:{T+2*idx+1}] offset:{(8*g+i)*256}')
            idx+=1
    k('s_mov_b64 exec, -1')

def attn_qtile(k, par, first, slow=False):
    S=lambda b: SS+16*b
    O=OO+16*par; Oprev=OO+16*(1-par)
    q1=f'v[{Q1+4*par}:{Q1+4*par+3}]'; q2=f'v[{Q2+2*par}:{Q2+2*par+1}]'
    def smfma(t, half):
        b=t&1
        if half==0: k(f'v_mfma_f32_32x32x16_bf16 v[{S(b)}:{S(b)+15}], v[{K1+4*t}:{K1+4*t+3}], {q1}, 0')
        else: k(f'v_mfma_f32_32x32x8_bf16 v[{S(b)}:{S(b)+15}], v[{K2+2*t}:{K2+2*t+1}], {q2}, v[{S(b)}:{S(b)+15}]')
    def pv(t, s):
        c='0' if (t==0 and s==0) else f'v[{O}:{O+15}]'
        k(f'v_mfma_f32_32x32x16_bf16 v[{O}:{O+15}], v[{VV+8*t+4*s}:{VV+8*t+4*s+3}], v[{PP+4*s}:{PP+4*s+3}], {c}')
    k('s_waitcnt lgkmcnt(0)')
    smfma(0,0); smfma(0,1)
    if not first: flush_O(k, Oprev)
    k(f's_add_u32 s48, s{S_QT}, 1'); k('s_and_b32 s48, s48, 7')
    k('s_lshl_b32 s49, s48, 10'); k(f'v_add_u32 v3, s49, v{VQ1A}')
    k('s_lshl_b32 s49, s48, 9'); k(f'v_add_u32 v4, s49, v{VQ2A}')
    k(f'ds_read_b128 v[{Q1+4*(1-par)}:{Q1+4*(1-par)+3}], v3')
    k(f'ds_read_b64 v[{Q2+2*(1-par)}:{Q2+2*(1-par)+1}], v4')
    k(f's_mul_i32 s49, s{S_QT}, {OT}')
    k(f'v_add_u32 v{VOA}, s49, v{VOA+3}')
    if first: k('s_nop 3')
    for t in range(8):
        b=t&1; s0=S(b); sp=S(1-b)
        E=lambda r: k(f'v_exp_f32 v{s0+r}, v{s0+r}')
        C=lambda j: k(f'v_cvt_pk_bf16_f32 v{PP+j}, v{s0+2*j}, v{s0+2*j+1}')
        Cp=lambda j: k(f'v_cvt_pk_bf16_f32 v{PP+j}, v{sp+2*j}, v{sp+2*j+1}')
        order=k.o.get('order','B')
        E(0); E(1)
        if t>0: Cp(6)
        E(2)
        if t>0: Cp(7)
        if t<7: smfma(t+1,0)
        E(3); E(4); C(0); E(5)
        if t>0: pv(t-1,1)
        E(6); C(1); E(7); E(8)
        if t<7: smfma(t+1,1)
        C(2); E(9); E(10); C(3); E(11); E(12)
        pv(t,0)
        C(4); E(13); E(14); C(5); E(15)
    s0=S(1)
    k('s_nop 0')
    k(f'v_cvt_pk_bf16_f32 v{PP+6}, v{s0+12}, v{s0+13}')
    k(f'v_cvt_pk_bf16_f32 v{PP+7}, v{s0+14}, v{s0+15}')
    k('s_nop 1')
    pv(7,1)
    k(f's_mov_b32 s{S_QT}, s48')

def attn_flush_last(k, par):
    O=OO+16*par
    k('s_nop 15')
    flush_O(k,O)

def build(opts):
    k=G(opts)
    prologue(k)
    isKV=k.label('KV'); join=k.label('JQ')
    dma_x(k)
    wq_addrs(k)
    k(f's_cmp_eq_u32 s{S_HG}, 0'); k(f's_cbranch_scc1 {isKV}')
    for c,sl in ((0,2),(1,0),(2,1)): dma_wchunk(k,S_WQ,c,sl)
    k('s_waitcnt lgkmcnt(0)'); k(f's_add_u32 s{S_TAG}, s{S_TAG}, 1')
    k(f's_branch {join}')
    k(f'{isKV}:')
    dma_linear(k,S_WK,25600,L_W); dma_linear(k,S_WV,25600,L_W+SLOT); dma_linear(k,S_GW,1280,L_GW)
    dma_wchunk(k,S_WQ,0,2)
    k('s_waitcnt lgkmcnt(0)'); k(f's_add_u32 s{S_TAG}, s{S_TAG}, 1')
    k('s_waitcnt vmcnt(3)'); k('s_barrier')
    k.ts(1)
    kv_proj(k)
    k.ts(2)
    dma_wchunk(k,S_WQ,1,0); dma_wchunk(k,S_WQ,2,1)
    k(f'{join}:')
    q_proj_setup(k)
    k('s_waitcnt vmcnt(6)'); k('s_barrier')
    k.ts(3)
    q_proj_chunk(k,0,2)
    k('s_barrier')
    dma_wchunk(k,S_WQ,3,2)
    k('s_waitcnt vmcnt(6)'); k('s_barrier')
    q_proj_chunk(k,1,0)
    k('s_waitcnt vmcnt(3)'); k('s_barrier')
    q_proj_chunk(k,2,1)
    k('s_waitcnt vmcnt(0)'); k('s_barrier')
    q_proj_chunk(k,3,2)
    q_finalize(k)
    k('s_nop 1')
    k('v_readlane_b32 s50, v54, 31')
    k('s_barrier')
    k.ts(4)
    k(f's_and_b32 s48, s{S_WAVE}, 1'); k(f's_lshr_b32 s49, s{S_WAVE}, 1')
    k(f's_lshl_b32 s51, s{S_WAVE}, 10'); k('v_lshlrev_b32 v3, 4, v1'); k(f'v_add_u32 v{VQ1A}, {L_Q1}, v3'); k(f'v_add_u32 v3, s51, v{VQ1A}')
    k('ds_write_b128 v3, v[48:51]')
    k(f's_lshl_b32 s51, s{S_WAVE}, 9'); k('v_lshlrev_b32 v4, 3, v1'); k(f'v_add_u32 v{VQ2A}, {L_Q2}, v4'); k(f'v_add_u32 v4, s51, v{VQ2A}')
    k('ds_write_b64 v4, v[52:53]')
    LM=55296
    k(f's_lshl_b32 s51, s{S_WAVE}, 2'); k(f's_add_u32 s51, s51, {LM}'); k('v_mov_b32 v5, s51'); k('v_mov_b32 v6, s50')
    k('ds_write_b32 v5, v6')
    k('v_mov_b32 v16, 0'); k('v_mov_b32 v17, 0'); k('v_mov_b32 v18, 0'); k('v_mov_b32 v19, 0')
    k('v_lshlrev_b32 v5, 4, v0'); k(f'v_add_u32 v5, {L_O}, v5')
    for j in range(5): k(f'ds_write_b128 v5, v[16:19] offset:{8192*j}')
    k('v_cmp_gt_u32 vcc, 128, v0'); k('s_and_saveexec_b64 s[56:57], vcc'); k(f'ds_write_b128 v5, v[16:19] offset:{8192*5}'); k('s_mov_b64 exec, s[56:57]')
    if opts.get('dumpq'):
        k(f's_lshl_b32 s51, s2, 14'); k(f's_lshl_b32 s52, s{S_WAVE}, 11'); k('s_add_u32 s51, s51, s52'); k(f's_add_u32 s51, s51, {WS_X1}')
        k('v_lshlrev_b32 v5, 4, v1'); k(f'buffer_store_dwordx4 v[48:51], v5, s[{S_WS}:{S_WS+3}], s51 offen')
        k('v_lshlrev_b32 v5, 3, v1'); k(f'buffer_store_dwordx2 v[52:53], v5, s[{S_WS}:{S_WS+3}], s51 offen offset:1024')
    dma_wfull(k,S_WO,L_WO)
    lab=k.label('np')
    k(f's_cmp_lg_u32 s{S_WAVE}, 0'); k(f's_cbranch_scc1 {lab}')
    k(f's_mov_b32 s53, {WS_FKV}')
    poll_flags(k,'s53',32)
    k(f'{lab}:')
    k('s_waitcnt lgkmcnt(0)')
    k('s_barrier')
    k.ts(5)
    k('v_lshlrev_b32 v3, 4, v1'); k('v_lshlrev_b32 v4, 3, v1')
    k(f's_lshl_b32 s48, s{S_WAVE}, 15'); k(f's_add_u32 s48, s48, {WS_KV}')
    for t in range(8):
        k(f'buffer_load_dwordx4 v[{K1+4*t}:{K1+4*t+3}], v3, s[{S_WS}:{S_WS+3}], s48 offen sc1')
        k(f'buffer_load_dwordx2 v[{K2+2*t}:{K2+2*t+1}], v4, s[{S_WS}:{S_WS+3}], s48 offen offset:3072 sc1')
        k(f'buffer_load_dwordx4 v[{VV+8*t}:{VV+8*t+3}], v3, s[{S_WS}:{S_WS+3}], s48 offen offset:1024 sc1')
        k(f'buffer_load_dwordx4 v[{VV+8*t+4}:{VV+8*t+7}], v3, s[{S_WS}:{S_WS+3}], s48 offen offset:2048 sc1')
        k('s_add_u32 s48, s48, 4096')
    k('v_lshlrev_b32 v5, 3, v1'); k(f's_mov_b32 s48, {WS_KM}')
    k(f'buffer_load_dwordx2 v[6:7], v5, s[{S_WS}:{S_WS+3}], s48 offen sc1')
    k(f'v_mov_b32 v5, {LM}'); k('ds_read_b128 v[12:15], v5'); k('ds_read_b128 v[16:19], v5 offset:16')
    k('v_and_b32 v8, 31, v1'); k('v_lshrrev_b32 v9, 5, v1'); k('v_lshlrev_b32 v8, 3, v8'); k('v_lshl_add_u32 v8, v9, 10, v8'); k(f'v_add_u32 v{VOA+3}, {L_O}, v8')
    k('s_waitcnt vmcnt(0) lgkmcnt(0)')
    k.ts(6); k.tc(10)
    k('v_max_f32 v12, v12, v13'); k('v_max_f32 v14, v14, v15'); k('v_max_f32 v16, v16, v17'); k('v_max_f32 v18, v18, v19')
    k('v_max_f32 v12, v12, v14'); k('v_max_f32 v16, v16, v18'); k('v_max_f32 v12, v12, v16')
    for v in (6,7):
        k(f'v_mov_b32 v10, v{v}'); k('s_nop 1'); k(f'v_permlane32_swap_b32 v{v}, v10'); k('s_nop 1'); k(f'v_max_f32 v{v}, v{v}, v10')
        wave_max32(k,v,10)
    k('s_nop 0')
    k('v_readlane_b32 s48, v6, 31'); k('v_readlane_b32 s49, v7, 31')
    k('s_nop 1')
    k('v_mul_f32 v12, s48, v12')
    if opts.get('dbg'):
        pass
    k(f's_mov_b32 s{S_QT}, s{S_WAVE}')
    k(f's_lshl_b32 s49, s{S_QT}, 10'); k(f'v_add_u32 v3, s49, v{VQ1A}'); k(f's_lshl_b32 s49, s{S_QT}, 9'); k(f'v_add_u32 v4, s49, v{VQ2A}')
    k(f'ds_read_b128 v[{Q1}:{Q1+3}], v3'); k(f'ds_read_b64 v[{Q2}:{Q2+1}], v4')
    attn_qtile(k,0,True)
    attn_qtile(k,1,False)
    k(f's_mov_b32 s{S_IT}, 0')
    lp=k.label('attn')
    k(f'{lp}:')
    attn_qtile(k,0,False)
    attn_qtile(k,1,False)
    k(f's_add_u32 s{S_IT}, s{S_IT}, 1'); k(f's_cmp_lt_u32 s{S_IT}, 3'); k(f's_cbranch_scc1 {lp}')
    k.tc(11); k.ts(12)
    attn_flush_last(k,1)
    k('s_waitcnt vmcnt(0) lgkmcnt(0)')
    k('s_barrier')
    k.ts(7)
    def norm_task(tau_sgpr):
        k('v_lshrrev_b32 v3, 5, v1'); k(f'v_mul_u32_u24 v3, {OT}, v3'); k('v_and_b32 v4, 31, v1'); k('v_lshl_add_u32 v3, v4, 3, v3'); k(f'v_add_u32 v3, {L_O}, v3')
        for a in range(2):
            k(f's_lshl_b32 s50, s{tau_sgpr}, 1'); k(f's_add_u32 s50, s50, {a}')
            k('s_mul_i32 s51, s50, 52'); k('s_lshr_b32 s51, s51, 8')
            k('s_mul_i32 s52, s51, 5'); k('s_sub_u32 s52, s50, s52')
            k(f's_mul_i32 s51, s51, {2*OT}')
            k('v_add_u32 v4, s51, v3')
            k(f'ds_read_b64 v[{32+2*a}:{33+2*a}], v4 offset:{20*256}')
            k('s_lshl_b32 s52, s52, 10'); k('v_add_u32 v4, s52, v4')
            for i in range(4): k(f'ds_read_b64 v[{40+8*a+2*i}:{41+8*a+2*i}], v4 offset:{256*i}')
        k('s_waitcnt lgkmcnt(0)')
        for a in range(2):
            k(f'v_cvt_f32_f64 v{12+a}, v[{32+2*a}:{33+2*a}]')
            for i in range(4): k(f'v_cvt_f32_f64 v{16+4*a+i}, v[{40+8*a+2*i}:{41+8*a+2*i}]')
        k('v_rcp_f32 v12, v12'); k('v_rcp_f32 v13, v13'); k('s_nop 0')
        for a in range(2):
            for i in range(4): k(f'v_mul_f32 v{16+4*a+i}, v{16+4*a+i}, v{12+a}')
        for j in range(4): k(f'v_cvt_pk_bf16_f32 v{24+j}, v{16+2*j}, v{17+2*j}')
        k(f's_mul_i32 s50, s{S_HG}, 10'); k(f's_add_u32 s50, s50, s{tau_sgpr}')
        k('s_lshr_b32 s51, s50, 2'); k('s_and_b32 s52, s50, 3'); k('s_lshl_b32 s51, s51, 10'); k('s_lshl_b32 s52, s52, 8'); k('s_add_u32 s51, s51, s52')
        k(f's_mul_i32 s52, s{S_RB}, {4*20*1024}'); k('s_add_u32 s51, s51, s52'); k(f's_add_u32 s51, s51, {WS_O}')
        k('v_lshrrev_b32 v5, 4, v1'); k(f'v_mul_u32_u24 v5, {20*1024}, v5'); k('v_and_b32 v6, 15, v1'); k('v_lshl_add_u32 v5, v6, 4, v5')
        k(f'buffer_store_dwordx4 v[24:27], v5, s[{S_WS}:{S_WS+3}], s51 offen sc1')
    k(f's_mov_b32 s60, s{S_WAVE}')
    norm_task(60)
    lab=k.label('n2')
    k(f's_cmp_ge_u32 s{S_WAVE}, 2'); k(f's_cbranch_scc1 {lab}')
    k(f's_add_u32 s60, s{S_WAVE}, 8')
    norm_task(60)
    k(f'{lab}:')
    k('s_waitcnt vmcnt(0)'); k('s_barrier')
    lab=k.label('nf')
    k(f's_cmp_lg_u32 s{S_WAVE}, 0'); k(f's_cbranch_scc1 {lab}')
    k('s_mov_b32 s60, s2'); set_flag(k,WS_FO,60)
    k(f's_lshl_b32 s53, s{S_RB}, 5'); k(f's_add_u32 s53, s53, {WS_FO}')
    poll_flags(k,'s53',8)
    k(f'{lab}:')
    k('s_barrier')
    k.ts(8)
    if not opts.get('nob'):
        fft.gen_tables(k,0)
        k('s_waitcnt lgkmcnt(0)'); k('s_barrier')
        L={i:k.label(f'duty{i}_') for i in range(6)}
        for i in range(5):
            k(f's_cmp_eq_u32 s{S_WAVE}, {i}'); k(f's_cbranch_scc1 {L[i]}')
        k(f's_branch {L[5]}')
        k(f'{L[0]}:'); fft.row_fft(k,20480); k(f's_branch {L[5]}')
        k(f'{L[1]}:'); fft.w_transpose(k); k(f's_branch {L[5]}')
        k(f'{L[2]}:')
        k(f's_mov_b32 s53, {WS_FX}'); poll_flags(k,'s53',64,4,vtmp=4)
        k(f's_mov_b32 s53, {fft.WS_FW}'); poll_flags(k,'s53',64,4,vtmp=4)
        k('s_mov_b32 s61, s2'); fft.col_fft(k,0,61)
        k('s_mov_b32 s60, s2'); set_flag(k,WS_FY,60)
        k(f's_branch {L[5]}')
        k(f'{L[3]}:')
        lab=k.label('nc2')
        k('s_cmp_ge_u32 s2, 65'); k(f's_cbranch_scc1 {lab}')
        k(f's_mov_b32 s53, {WS_FX}'); poll_flags(k,'s53',64,4,vtmp=4)
        k(f's_mov_b32 s53, {fft.WS_FW}'); poll_flags(k,'s53',64,4,vtmp=4)
        k('s_add_u32 s61, s2, 256'); fft.col_fft(k,0,61)
        k(f'{lab}:')
        k('s_mov_b32 s60, s2'); set_flag(k,WS_FY2,60)
        k(f's_branch {L[5]}')
        k(f'{L[4]}:')
        k(f's_mov_b32 s53, {WS_FY}'); poll_flags(k,'s53',64,4,vtmp=4)
        k(f's_mov_b32 s53, {WS_FY2}'); poll_flags(k,'s53',64,4,vtmp=4)
        fft.row_ifft(k,32768)
        k(f's_lshr_b32 s48, s{S_RB}, 4'); k('s_lshl_b32 s48, s48, 1'); k(f's_bfe_u32 s49, s{S_RB}, 0x10002'); k('s_add_u32 s48, s48, s49')
        k('s_lshl_b32 s53, s48, 8'); k(f's_add_u32 s53, s53, {WS_FB}')
        poll_flags(k,'s53',64)
        k(f'{L[5]}:')
        k('s_barrier')
        k.ts(13)
    OF=16; AC=64; AF=96
    k(f's_and_b32 s48, s{S_WAVE}, 3'); k(f's_lshr_b32 s49, s{S_WAVE}, 2')
    k(f's_lshl_b32 s50, s{S_RB}, 2'); k('s_add_u32 s50, s50, s48'); k('s_mul_i32 s50, s50, 20'); k('s_mul_i32 s51, s49, 10'); k('s_add_u32 s50, s50, s51'); k('s_lshl_b32 s50, s50, 10'); k(f's_add_u32 s50, s50, {WS_O}')
    k('v_lshlrev_b32 v3, 4, v1')
    for t in range(10):
        k(f'buffer_load_dwordx4 v[{OF+4*t}:{OF+4*t+3}], v3, s[{S_WS}:{S_WS+3}], s50 offen sc1')
        k('s_add_u32 s50, s50, 1024')
    k(f's_lshl_b32 s50, s{S_RB}, 6'); k('s_lshl_b32 s51, s48, 4'); k('s_add_u32 s50, s50, s51')
    k('v_and_b32 v4, 15, v1'); k('v_add_u32 v4, s50, v4')
    k('v_lshlrev_b32 v5, 2, v4'); k(f's_mov_b32 s52, {WS_G}')
    k(f'buffer_load_dword v8, v5, s[{S_WS}:{S_WS+3}], s52 offen sc1')
    k('v_and_b32 v5, 15, v1'); k('v_lshrrev_b32 v6, 2, v5'); k('v_lshrrev_b32 v7, 4, v1'); k('v_lshl_add_u32 v6, v7, 3, v6'); k('v_mul_u32_u24 v6, 160, v6')
    k('v_and_b32 v5, 3, v5'); k('v_lshl_add_u32 v6, v5, 3, v6'); k('s_mul_i32 s51, s49, 51200'); k(f's_add_u32 s51, s51, {L_WO}'); k('v_add_u32 v9, s51, v6')
    def rdA(t):
        b=t&1
        for mu in range(5):
            k(f'ds_read_b64_tr_b16 v[{AF+20*b+4*mu}:{AF+20*b+4*mu+1}], v9 offset:{t*5120+mu*32}')
            k(f'ds_read_b64_tr_b16 v[{AF+20*b+4*mu+2}:{AF+20*b+4*mu+3}], v9 offset:{t*5120+mu*32+640}')
    rdA(0)
    for t in range(10):
        if t+1<10:
            rdA(t+1); k(f's_waitcnt vmcnt({1+9-t}) lgkmcnt(10)')
        else: k('s_waitcnt vmcnt(1) lgkmcnt(0)')
        b=t&1
        for mu in range(5):
            c='0' if t==0 else f'v[{AC+4*mu}:{AC+4*mu+3}]'
            k(f'v_mfma_f32_16x16x32_bf16 v[{AC+4*mu}:{AC+4*mu+3}], v[{AF+20*b+4*mu}:{AF+20*b+4*mu+3}], v[{OF+4*t}:{OF+4*t+3}], {c}')
    k('s_nop 9')
    k(f's_mul_i32 s51, s48, {5*1024}'); k('v_lshlrev_b32 v5, 4, v1'); k('v_add_u32 v5, s51, v5')
    labA=k.label('ra'); labB=k.label('rb')
    k('s_cmp_eq_u32 s49, 0'); k(f's_cbranch_scc1 {labA}')
    for mu in range(5): k(f'ds_write_b128 v5, v[{AC+4*mu}:{AC+4*mu+3}] offset:{1024*mu}')
    k('s_waitcnt lgkmcnt(0)'); k('s_barrier'); k(f's_branch {labB}')
    k(f'{labA}:')
    k('s_barrier')
    for mu in range(5): k(f'ds_read_b128 v[{AF+4*mu}:{AF+4*mu+3}], v5 offset:{1024*mu}')
    k('s_waitcnt vmcnt(0) lgkmcnt(0)')
    for r in range(20): k(f'v_add_f32 v{AC+r}, v{AC+r}, v{AF+r}')
    k('v_mul_u32_u24 v5, 1280, v4'); k('v_lshrrev_b32 v6, 4, v1'); k('v_lshl_add_u32 v5, v6, 3, v5'); k(f's_mul_i32 s51, s{S_HG}, 160')
    if not opts.get('nob'):
        k(f's_add_u32 s52, s51, {WS_B}')
        for mu in range(5): k(f'buffer_load_dwordx2 v[{AF+20+2*mu}:{AF+21+2*mu}], v5, s[{S_WS}:{S_WS+3}], s52 offen offset:{32*mu} sc1')
        k('s_waitcnt vmcnt(0)')
        k('v_sub_f32 v9, 1.0, v8')
        for mu in range(5):
            for jj in range(2):
                w=AF+20+2*mu+jj
                k(f'v_lshlrev_b32 v10, 16, v{w}'); k(f'v_and_b32 v11, 0xffff0000, v{w}')
                k(f'v_mul_f32 v10, v10, v9'); k('v_mul_f32 v11, v11, v9')
                k(f'v_fma_f32 v{AC+4*mu+2*jj}, v{AC+4*mu+2*jj}, v8, v10'); k(f'v_fma_f32 v{AC+4*mu+2*jj+1}, v{AC+4*mu+2*jj+1}, v8, v11')
    else:
        for r in range(20): k(f'v_mul_f32 v{AC+r}, v{AC+r}, v8')
    for j in range(10): k(f'v_cvt_pk_bf16_f32 v{AF+j}, v{AC+2*j}, v{AC+2*j+1}')
    for mu in range(5): k(f'buffer_store_dwordx2 v[{AF+2*mu}:{AF+2*mu+1}], v5, s[{S_OUT}:{S_OUT+3}], s51 offen offset:{32*mu}')
    k(f'{labB}:')
    k.ts(9)
    lab=k.label('ep')
    k('s_cmp_lg_u32 s2, 0'); k(f's_cbranch_scc1 {lab}')
    k(f's_cmp_lg_u32 s{S_WAVE}, 7'); k(f's_cbranch_scc1 {lab}')
    k(f's_mov_b32 s53, {WS_FX}')
    poll_flags(k,'s53',64,4,vtmp=4)
    k('s_mov_b32 s60, 0'); set_flag(k,WS_EPOCH,60)
    k(f'{lab}:')
    k.ts_flush()
    k(f'{NAME}_end:')
    k('s_endpgm')
    return k

if __name__=='__main__':
    opts={}
    for a in sys.argv[2:]: opts[a]=True
    k=build(opts)
    emit([k],sys.argv[1],single=True)
```

```python
from asmgen import *
import tables as T
WS_FX=0x2000; WS_FY=0x3000; WS_FB=0x4000; WS_FW=0x6000; WS_FY2=0x7000
WS_X1=0x400000; WS_WT=0x700000; WS_Y1=0xA00000; WS_B=0xD00000
S_X=4; S_WR=24; S_WI=28; S_WS=40; S_WAVE=44; S_TAG=47; S_TBL=72
WS=f's[{S_WS}:{S_WS+3}]'

class TL:
    def __init__(s,k,va): s.k=k; s.va=va; s.center=None; s.n=0
    def load(s,dst,name):
        k=s.k; idx=T.FR[name]
        if s.center is None or not (-4<=idx-s.center<=3):
            c=idx+4 if idx+4<len(T.order) else idx
            k(f'v_lshlrev_b32 v{s.va}, 4, v1')
            k(f'v_add_u32 v{s.va}, {c*1024}, v{s.va}')
            k(f'v_mov_b32 v{s.va+1}, s{S_TBL+1}')
            k(f'v_add_co_u32 v{s.va}, vcc, s{S_TBL}, v{s.va}')
            k(f'v_addc_co_u32 v{s.va+1}, vcc, 0, v{s.va+1}, vcc')
            s.center=c
        k(f'global_load_dwordx4 v[{dst}:{dst+3}], v[{s.va}:{s.va+1}], off offset:{(idx-s.center)*1024}')
        s.n+=1

def set_flag(k, base, idx_sgpr):
    k(f's_lshl_b32 s54, s{idx_sgpr}, 2'); k(f's_add_u32 s54, s54, {base}')
    k(f'v_mov_b32 v5, s{S_TAG}'); k('v_mov_b32 v6, 0')
    k('s_mov_b64 s[56:57], exec'); k('s_mov_b64 exec, 1')
    k(f'buffer_store_dword v5, v6, {WS}, s54 offen sc1')
    k('s_mov_b64 exec, s[56:57]')

def pk(k, op, d, a, b, c=None, nega=False):
    n=' neg_lo:[1,0,0] neg_hi:[1,0,0]' if nega else ''
    if op=='mul':
        n=' neg_lo:[1,0] neg_hi:[1,0]' if nega else ''
        k(f'v_pk_mul_f32 v[{d}:{d+1}], v[{a}:{a+1}], v[{b}:{b+1}]{n}')
    else: k(f'v_pk_fma_f32 v[{d}:{d+1}], v[{a}:{a+1}], v[{b}:{b+1}], v[{c}:{c+1}]{n}')

def cmul_fwd(k, tre, tim, dr, di, c, s):
    pk(k,'mul',tre,dr,c); pk(k,'mul',tim,di,c); pk(k,'fma',tre,di,s,tre); pk(k,'fma',tim,dr,s,tim,nega=True)
def cmul_inv(k, tre, tim, dr, di, c, s):
    pk(k,'mul',tre,dr,c); pk(k,'mul',tim,di,c); pk(k,'fma',tre,di,s,tre,nega=True); pk(k,'fma',tim,dr,s,tim)

def row_fft_issue(k, L_ST):
    k.c('==== row FFT issue')
    k('s_lshr_b32 s48, s2, 6'); k('s_and_b32 s49, s2, 63')
    k('s_lshr_b32 s50, s48, 1'); k('s_and_b32 s51, s48, 1')
    k('s_lshl_b32 s50, s50, 4'); k('s_lshl_b32 s51, s51, 2'); k('s_add_u32 s50, s50, s51')
    magic=(2**32+79)//80
    k(f's_mov_b32 s52, {magic}')
    for i in range(10):
        k(f'v_add_u32 v3, {64*i}, v1')
        k('v_mul_hi_u32 v4, v3, s52')
        k('v_mul_u32_u24 v5, 80, v4'); k('v_sub_u32 v5, v3, v5')
        k('v_lshrrev_b32 v6, 2, v4'); k('v_lshlrev_b32 v6, 3, v6'); k('v_and_b32 v4, 3, v4'); k('v_add3_u32 v4, v4, v6, s50')
        k('v_lshlrev_b32 v4, 6, v4'); k('v_add_u32 v4, s49, v4'); k('v_mul_u32_u24 v4, 1280, v4'); k('v_lshl_add_u32 v4, v5, 4, v4')
        k(f's_mov_b32 m0, {L_ST+1024*i}'); k('s_nop 0')
        k(f'buffer_load_dwordx4 v4, s[{S_X}:{S_X+3}], 0 offen lds')
    tl=TL(k,98)
    B1C,B1S,TC,TS,A2R,A2I,A2X=100,108,116,128,140,144,148
    for tau in range(2): tl.load(B1C+4*tau,f'r_b1c{tau}'); tl.load(B1S+4*tau,f'r_b1s{tau}')
    for g in range(3): tl.load(TC+4*g,f'r_tc{g}'); tl.load(TS+4*g,f'r_ts{g}')
    tl.load(A2R,'r_a2r0'); tl.load(A2I,'r_a2i0'); tl.load(A2X,'r_a2x1')
    return 10+tl.n

def row_fft_compute(k, L_ST, nyounger):
    k.c('==== row FFT compute')
    B1C,B1S,TC,TS,A2R,A2I,A2X=100,108,116,128,140,144,148
    k('v_and_b32 v3, 31, v1'); k('v_lshrrev_b32 v4, 5, v1')
    k('v_and_b32 v8, 15, v1'); k('v_lshrrev_b32 v9, 2, v8'); k('v_lshl_add_u32 v9, v4, 3, v9'); k('v_mul_u32_u24 v9, 40, v9')
    k('v_and_b32 v8, 3, v8'); k('v_lshl_add_u32 v9, v8, 3, v9'); k('v_bfe_u32 v8, v1, 4, 1'); k('v_lshl_add_u32 v9, v8, 5, v9'); k(f'v_add_u32 v97, {L_ST}, v9')
    k('v_cmp_eq_u32 s[62:63], 0, v4')
    XA=152
    DR=168; DI=184
    TM=200
    TR=224; TI=230
    D2=64
    OUT=16
    k(f's_waitcnt vmcnt({nyounger})')
    def rd(j):
        b=XA+8*(j&1)
        for tau in range(2):
            for q in range(2):
                k(f'ds_read_b64_tr_b16 v[{b+4*tau+2*q}:{b+4*tau+2*q+1}], v97 offset:{j*1280+tau*640+q*160}')
    def st1(j):
        b=XA+8*(j&1)
        k(f'v_mfma_f32_32x32x16_bf16 v[{DR}:{DR+15}], v[{b}:{b+3}], v[{B1C}:{B1C+3}], 0')
        k(f'v_mfma_f32_32x32x16_bf16 v[{DI}:{DI+15}], v[{b}:{b+3}], v[{B1S}:{B1S+3}], 0')
        k(f'v_mfma_f32_32x32x16_bf16 v[{DR}:{DR+15}], v[{b+4}:{b+7}], v[{B1C+4}:{B1C+7}], v[{DR}:{DR+15}]')
        k(f'v_mfma_f32_32x32x16_bf16 v[{DI}:{DI+15}], v[{b+4}:{b+7}], v[{B1S+4}:{B1S+7}], v[{DI}:{DI+15}]')
    rd(0); rd(1)
    k('s_waitcnt lgkmcnt(4)')
    st1(0)
    for j in range(8):
        if j==0: k('s_nop 15')
        for r in range(0,12,2): cmul_fwd(k,TM+r,TM+12+r,DR+r,DI+r,TC+r,TS+r)
        if j+1<8:
            k('s_waitcnt lgkmcnt(0)')
            st1(j+1)
            if j+2<8: rd(j+2)
        if j>=2 and j%2==0:
            p=(j-2)>>1
            for r in range(12): k(f'v_cvt_pk_bf16_f32 v{OUT+4*r+p}, v{D2+r}, v{D2+16+r}')
        for jj in range(6):
            k(f'v_cvt_pk_bf16_f32 v{TR+jj}, v{TM+2*jj}, v{TM+2*jj+1}'); k(f'v_cvt_pk_bf16_f32 v{TI+jj}, v{TM+12+2*jj}, v{TM+13+2*jj}')
        for jj in (4,5):
            k(f'v_cndmask_b32 v{TR+jj}, 0, v{TR+jj}, s[62:63]'); k(f'v_cndmask_b32 v{TI+jj}, 0, v{TI+jj}, s[62:63]')
        k('s_nop 1')
        d=D2+16*(j&1)
        k(f'v_mfma_f32_32x32x16_bf16 v[{d}:{d+15}], v[{A2R}:{A2R+3}], v[{TR}:{TR+3}], 0')
        k(f'v_mfma_f32_32x32x16_bf16 v[{d}:{d+15}], v[{A2I}:{A2I+3}], v[{TI}:{TI+3}], v[{d}:{d+15}]')
        k(f'v_mfma_f32_32x32x8_bf16 v[{d}:{d+15}], v[{A2X}:{A2X+1}], v[{TR+4}:{TR+5}], v[{d}:{d+15}]')
        k(f'v_mfma_f32_32x32x8_bf16 v[{d}:{d+15}], v[{A2X+2}:{A2X+3}], v[{TI+4}:{TI+5}], v[{d}:{d+15}]')
    k('s_nop 15')
    for r in range(12): k(f'v_cvt_pk_bf16_f32 v{OUT+4*r+3}, v{D2+r}, v{D2+16+r}')
    k('s_lshr_b32 s48, s2, 6'); k('s_and_b32 s49, s2, 63')
    k('v_lshl_add_u32 v8, v4, 6, v3'); k('v_lshlrev_b32 v8, 13, v8')
    k('s_lshl_b32 s50, s49, 7'); k('s_lshl_b32 s51, s48, 4'); k('s_add_u32 s50, s50, s51'); k(f's_add_u32 s50, s50, {WS_X1}')
    for g in range(3):
        for i in range(4):
            r=4*g+i; m=i>>1; c=i&1
            if g==2 and i==0: k('s_mov_b32 exec_lo, -1'); k('s_mov_b32 exec_hi, 1')
            if g==2 and i==2: k('s_mov_b32 exec_hi, 0')
            k(f's_add_u32 s51, s50, {(4*g+m)*262144}')
            k(f'buffer_store_dwordx4 v[{OUT+4*r}:{OUT+4*r+3}], v8, {WS}, s51 offen offset:{c*64} sc1')
    k('s_mov_b64 exec, -1')
    k('s_waitcnt vmcnt(0)')
    k('s_mov_b32 s60, s2'); set_flag(k,WS_FX,60)

def w_transpose_issue(k):
    k.c('==== W transpose issue')
    k('s_and_b32 s48, s2, 31'); k('s_lshr_b32 s49, s2, 5')
    k('s_lshl_b32 s50, s49, 8'); k('s_add_u32 s50, s50, s48')
    k('s_mul_i32 s50, s50, 642')
    n=0
    for p in range(6):
        k(f'v_add_u32 v3, {64*p}, v1'); k('v_lshlrev_b32 v4, 1, v3')
        base=100+16*p
        if p==5: k('s_mov_b64 exec, 1')
        for jj in range(8):
            k(f's_add_u32 s52, s50, {jj*32*642}')
            k(f'buffer_load_ushort v{base+jj}, v4, s[{S_WR}:{S_WR+3}], s52 offen')
            k(f'buffer_load_ushort v{base+8+jj}, v4, s[{S_WI}:{S_WI+3}], s52 offen')
            n+=2
        if p==2: k('s_waitcnt vmcnt(8)')
    k('s_mov_b64 exec, -1')
    return n
def w_transpose_finish(k, nyounger):
    k.c('==== W transpose finish')
    k('s_and_b32 s48, s2, 31'); k('s_lshr_b32 s49, s2, 5')
    k('s_lshl_b32 s51, s49, 10'); k('s_lshl_b32 s52, s48, 5'); k('s_add_u32 s51, s51, s52'); k(f's_add_u32 s51, s51, {WS_WT}')
    k(f's_waitcnt vmcnt({nyounger})')
    for p in range(6):
        base=100+16*p
        if p in (0,5):
            k('s_mov_b64 exec, 1')
            for jj in range(16):
                k(f'v_lshlrev_b32 v3, 16, v{base+jj}'); k('v_mul_f32 v3, 0.5, v3'); k(f'v_cvt_pk_bf16_f32 v{base+jj}, v3, 0'); k(f'v_and_b32 v{base+jj}, 0xffff, v{base+jj}')
            if p==0: k('s_mov_b64 exec, -1')
        for jj in range(8): k(f'v_lshl_or_b32 v{base+jj}, v{base+8+jj}, 16, v{base+jj}')
        k(f'v_add_u32 v3, {64*p}, v1'); k('v_lshlrev_b32 v4, 13, v3')
        k(f'buffer_store_dwordx4 v[{base}:{base+3}], v4, {WS}, s51 offen sc1')
        k(f'buffer_store_dwordx4 v[{base+4}:{base+7}], v4, {WS}, s51 offen offset:16 sc1')
    k('s_mov_b64 exec, -1')
    k('s_waitcnt vmcnt(0)')
    k('s_mov_b32 s60, s2'); set_flag(k,WS_FW,60)

def col_fft(k, s_col):
    k.c('==== column FFT duty')
    XF=16
    WW=48
    D=80
    TF=144
    TB=176
    TW=212
    k('v_and_b32 v3, 31, v1'); k('v_lshrrev_b32 v4, 5, v1')
    k(f's_lshl_b32 s48, s{s_col}, 13')
    k('v_lshlrev_b32 v8, 7, v3'); k('v_lshl_add_u32 v8, v4, 4, v8')
    for u in range(2):
        k(f's_add_u32 s49, s48, {WS_X1+u*4096}')
        for c in range(2):
            for tau in range(2):
                r=XF+16*u+8*c+4*tau
                k(f'buffer_load_dwordx4 v[{r}:{r+3}], v8, {WS}, s49 offen offset:{c*64+tau*32} sc1')
    tl=TL(k,10)
    for tau in range(2):
        for x,nm in enumerate('csn'): tl.load(TB+12*tau+4*x,f'c_t32{nm}{tau}')
    k('v_lshlrev_b32 v9, 5, v3'); k('v_lshl_add_u32 v9, v4, 4, v9')
    for tg in range(8):
        k(f's_add_u32 s49, s48, {WS_WT+tg*1024}')
        k(f'buffer_load_dwordx4 v[{WW+4*tg}:{WW+4*tg+3}], v9, {WS}, s49 offen sc1')
    def mf(d, a, b, first):
        c='0' if first else f'v[{d}:{d+15}]'
        k(f'v_mfma_f32_32x32x16_bf16 v[{d}:{d+15}], v[{a}:{a+3}], v[{b}:{b+3}], {c}')
    def twl(prefix,n):
        a,g=n>>2,n&3; b=TW+8*(n&1)
        tl.load(b,f'{prefix}c{a}{g}'); tl.load(b+4,f'{prefix}s{a}{g}')
    twl('c_w1',0); twl('c_w1',1)
    k('s_waitcnt vmcnt(12)')
    for u in range(2):
        dre=D+32*u; dim=dre+16
        for tau in range(2):
            xr=XF+16*u+4*tau; xi=XF+16*u+8+4*tau; C=TB+12*tau; S=C+4; N=C+8
            mf(dre,xr,C,tau==0); mf(dim,xi,C,tau==0); mf(dre,xi,S,False); mf(dim,xr,N,False)
    TT=TW+16
    def twiddle_pack(prefix, pre2=None):
        for n in range(8):
            a,g=n>>2,n&3; b=TW+8*(n&1)
            dre=D+32*a; dim=dre+16
            k(f's_waitcnt vmcnt({(2 if n<7 else 0)+pend[0]})')
            for i in (0,2): cmul_fwd(k,TT+i,TT+4+i,dre+4*g+i,dim+4*g+i,b+i,b+4+i)
            st=2*a+(g>>1); o=2*(g&1)
            for jj in range(2):
                k(f'v_cvt_pk_bf16_f32 v{TF+4*st+o+jj}, v{TT+2*jj}, v{TT+2*jj+1}')
                k(f'v_cvt_pk_bf16_f32 v{TF+16+4*st+o+jj}, v{TT+4+2*jj}, v{TT+5+2*jj}')
            if n+2<8: twl(prefix,n+2)
    pend=[0]
    k('s_nop 15')
    twiddle_pack('c_w1')
    def t64l(n):
        t,tau=n>>2,n&3; b=TB+12*(n%3)
        for x,nm in enumerate('csn'): tl.load(b+4*x,f'c_t64{nm}{t}{tau}')
    def stage64(data_is_A):
        t64l(0); t64l(1)
        for n in range(8):
            t,tau=n>>2,n&3; b=TB+12*(n%3)
            if n+2<8:
                t64l(n+2); k('s_waitcnt vmcnt(6)')
            elif n+1<8: k('s_waitcnt vmcnt(3)')
            else: k('s_waitcnt vmcnt(0)')
            C=b; S=b+4; N=b+8
            dre=D+32*t; dim=dre+16
            re=TF+4*tau; im=TF+16+4*tau
            if data_is_A:
                mf(dre,re,C,tau==0); mf(dim,im,C,tau==0); mf(dre,im,S,False); mf(dim,re,N,False)
            else:
                mf(dre,C,re,tau==0); mf(dim,C,im,tau==0); mf(dre,S,im,False); mf(dim,N,re,False)
    k('s_nop 1')
    stage64(False)
    k('s_nop 15')
    for t in range(2):
        dre=D+32*t; dim=dre+16
        for g in range(4):
            w=WW+4*(4*t+g)
            for i in range(4):
                k(f'v_lshlrev_b32 v{TW+i}, 16, v{w+i}'); k(f'v_and_b32 v{TW+4+i}, 0xffff0000, v{w+i}')
            for i in (0,2):
                r=4*g+i
                pk(k,'mul',TT+i,dre+r,TW+i); pk(k,'mul',TT+4+i,dre+r,TW+4+i)
                pk(k,'fma',TT+i,dim+r,TW+4+i,TT+i,nega=True); pk(k,'fma',TT+4+i,dim+r,TW+i,TT+4+i)
            st=2*t+(g>>1); o=2*(g&1)
            for jj in range(2):
                k(f'v_cvt_pk_bf16_f32 v{TF+4*st+o+jj}, v{TT+2*jj}, v{TT+2*jj+1}')
                k(f'v_cvt_pk_bf16_f32 v{TF+16+4*st+o+jj}, -v{TT+4+2*jj}, -v{TT+5+2*jj}')
    k('s_nop 1')
    stage64(True)
    twl('c_w2',0); twl('c_w2',1)
    k('s_nop 15')
    twiddle_pack('c_w2')
    for tau in range(2):
        for x,nm in enumerate('csn'): tl.load(TB+12*tau+4*x,f'c_t32{nm}{tau}')
    k('s_waitcnt vmcnt(0)')
    for u in range(2):
        dre=D+32*u; dim=dre+16
        for sg in range(2):
            C=TB+12*sg; S=C+4; N=C+8; st=2*u+sg
            re=TF+4*st; im=TF+16+4*st
            mf(dre,C,re,sg==0); mf(dim,C,im,sg==0); mf(dre,S,im,False); mf(dim,N,re,False)
    k('s_nop 15')
    k('v_lshlrev_b32 v8, 7, v3'); k('v_lshl_add_u32 v8, v4, 5, v8')
    for u in range(2):
        dre=D+32*u; dim=dre+16
        k(f's_add_u32 s49, s48, {WS_Y1+u*4096}')
        for tau in range(2):
            ob=XF+8*(2*u+tau)
            for j in range(8):
                r=4*(2*tau+(j>>2))+(j&3)
                k(f'v_cvt_pk_bf16_f32 v{ob+j}, v{dre+r}, -v{dim+r}')
            k(f'buffer_store_dwordx4 v[{ob}:{ob+3}], v8, {WS}, s49 offen offset:{tau*64} sc1')
            k(f'buffer_store_dwordx4 v[{ob+4}:{ob+7}], v8, {WS}, s49 offen offset:{tau*64+16} sc1')
    k('s_waitcnt vmcnt(0)')

def row_ifft(k, L_ST):
    k.c('==== row iFFT duty')
    k('v_and_b32 v3, 31, v1'); k('v_lshrrev_b32 v4, 5, v1')
    k('s_lshr_b32 s48, s2, 6'); k('s_and_b32 s49, s2, 63')
    k('s_lshl_b32 s50, s49, 7'); k('s_lshl_b32 s51, s48, 5'); k('s_add_u32 s50, s50, s51'); k(f's_add_u32 s50, s50, {WS_Y1}')
    LD=16
    for p in range(6):
        k(f'v_add_u32 v8, {64*p}, v1'); k('v_lshlrev_b32 v8, 13, v8')
        if p==5: k('s_mov_b64 exec, 1')
        k(f'buffer_load_dwordx4 v[{LD+8*p}:{LD+8*p+3}], v8, {WS}, s50 offen sc1')
        k(f'buffer_load_dwordx4 v[{LD+8*p+4}:{LD+8*p+7}], v8, {WS}, s50 offen offset:16 sc1')
    k('s_mov_b64 exec, -1')
    B1R,B1I,B1X=64,68,72
    TC,TS=76,92
    BC,BS=108,116
    tl=TL(k,10)
    tl.load(B1R,'i_b1r0'); tl.load(B1I,'i_b1i0'); tl.load(B1X,'i_b1x1')
    for g in range(4): tl.load(TC+4*g,f'i_tc{g}'); tl.load(TS+4*g,f'i_ts{g}')
    for sg in range(2): tl.load(BC+4*sg,f'c_t32c{sg}'); tl.load(BS+4*sg,f'c_t32n{sg}')
    k(f'v_mul_u32_u24 v8, 48, v3'); k(f'v_lshl_add_u32 v8, v4, 2, v8'); k(f'v_add_u32 v8, {L_ST}, v8')
    k(f'v_mul_u32_u24 v9, 48, v3'); k(f'v_add_u32 v9, {L_ST}, v9'); k(f'v_lshl_add_u32 v12, v4, 3, v9'); k(f'v_lshl_add_u32 v9, v4, 4, v9')
    k(f'v_cmp_eq_u32 s[62:63], 0, v4'); k(f'v_cmp_eq_u32 s[58:59], 0, v3'); k('s_or_b64 s[58:59], s[58:59], s[62:63]')
    k('s_lshr_b32 s50, s48, 1'); k('s_and_b32 s51, s48, 1'); k('s_lshl_b32 s50, s50, 4'); k('s_lshl_b32 s51, s51, 2'); k('s_add_u32 s50, s50, s51')
    k(f'v_mul_u32_u24 v13, 40, v3'); k(f'v_lshl_add_u32 v13, v4, 3, v13')
    YA=124
    UR=136; UI=152
    TM=168
    VR=200; VI=208
    DO=216
    OB=232
    k('s_waitcnt vmcnt(0)')
    for half in range(2):
        for p in range(6):
            if p==5: k('s_mov_b64 exec, 1')
            for j in range(4):
                k(f'ds_write_b32 v8, v{LD+8*p+4*half+j} offset:{j*1536+p*8}')
        k('s_mov_b64 exec, -1')
        k('s_waitcnt lgkmcnt(0)')
        def rd(j):
            b=YA+6*(j&1)
            k(f'ds_read_b128 v[{b}:{b+3}], v9 offset:{j*1536}')
            k(f'ds_read_b64 v[{b+4}:{b+5}], v12 offset:{j*1536+32}')
        def st1(j):
            b=YA+6*(j&1)
            k(f'v_cndmask_b32 v{b+4}, 0, v{b+4}, s[58:59]'); k(f'v_cndmask_b32 v{b+5}, 0, v{b+5}, s[62:63]')
            k(f'v_mfma_f32_32x32x16_bf16 v[{UR}:{UR+15}], v[{b}:{b+3}], v[{B1R}:{B1R+3}], 0')
            k(f'v_mfma_f32_32x32x16_bf16 v[{UI}:{UI+15}], v[{b}:{b+3}], v[{B1I}:{B1I+3}], 0')
            k(f'v_mfma_f32_32x32x8_bf16 v[{UR}:{UR+15}], v[{b+4}:{b+5}], v[{B1X}:{B1X+1}], v[{UR}:{UR+15}]')
            k(f'v_mfma_f32_32x32x8_bf16 v[{UI}:{UI+15}], v[{b+4}:{b+5}], v[{B1X+2}:{B1X+3}], v[{UI}:{UI+15}]')
        def out(j, jg):
            ob=OB+6*(j&1)
            for jj in range(6): k(f'v_cvt_pk_bf16_f32 v{ob+jj}, v{DO+2*jj}, v{DO+2*jj+1}')
            k(f's_add_u32 s51, s50, {8*(jg>>2)+(jg&3)}'); k('s_lshl_b32 s51, s51, 6'); k('s_add_u32 s51, s51, s49'); k('s_mul_i32 s51, s51, 1280'); k(f's_add_u32 s51, s51, {WS_B}')
            k(f'buffer_store_dwordx2 v[{ob}:{ob+1}], v13, {WS}, s51 offen sc1')
            k(f'buffer_store_dwordx2 v[{ob+2}:{ob+3}], v13, {WS}, s51 offen offset:16 sc1')
            k('s_mov_b32 exec_hi, 0')
            k(f'buffer_store_dwordx2 v[{ob+4}:{ob+5}], v13, {WS}, s51 offen offset:32 sc1')
            k('s_mov_b64 exec, -1')
        rd(0); rd(1)
        k('s_waitcnt lgkmcnt(2)')
        st1(0)
        for j in range(4):
            if j==0: k('s_nop 15')
            for r in range(0,16,2): cmul_inv(k,TM+r,TM+16+r,UR+r,UI+r,TC+r,TS+r)
            if j+1<4:
                k('s_waitcnt lgkmcnt(0)')
                st1(j+1)
                if j+2<4: rd(j+2)
            if j>0: out(j-1, 4*half+j-1)
            for jj in range(8):
                k(f'v_cvt_pk_bf16_f32 v{VR+jj}, v{TM+2*jj}, v{TM+2*jj+1}'); k(f'v_cvt_pk_bf16_f32 v{VI+jj}, v{TM+16+2*jj}, v{TM+17+2*jj}')
            k('s_nop 1')
            k(f'v_mfma_f32_32x32x16_bf16 v[{DO}:{DO+15}], v[{VR}:{VR+3}], v[{BC}:{BC+3}], 0')
            k(f'v_mfma_f32_32x32x16_bf16 v[{DO}:{DO+15}], v[{VI}:{VI+3}], v[{BS}:{BS+3}], v[{DO}:{DO+15}]')
            k(f'v_mfma_f32_32x32x16_bf16 v[{DO}:{DO+15}], v[{VR+4}:{VR+7}], v[{BC+4}:{BC+7}], v[{DO}:{DO+15}]')
            k(f'v_mfma_f32_32x32x16_bf16 v[{DO}:{DO+15}], v[{VI+4}:{VI+7}], v[{BS+4}:{BS+7}], v[{DO}:{DO+15}]')
        k('s_nop 15')
        out(3, 4*half+3)
    k('s_waitcnt vmcnt(0)')
    k('s_mov_b32 s60, s2'); set_flag(k,WS_FB,60)
```

```python
from asmgen import *
import tables as T
from fft2 import TL, pk, cmul_fwd, cmul_inv, set_flag
WS_FX=0x2000; WS_FY=0x3000; WS_FB=0x4000; WS_FY2=0x7000
WS_XW=0x400000; PL=5184; XB=2*PL; XWB=2*XB; RS=1296; WS_Y1=0xA00000; WS_B=0xD00000
S_X=4; S_WR=24; S_WI=28; S_WS=40; S_WAVE=44; S_TAG=47; S_TBL=72
WS=f's[{S_WS}:{S_WS+3}]'
RC=100
B1C,B1S,TC,TS,A2R,A2I,A2X=RC,RC+8,RC+16,RC+28,RC+40,RC+44,RC+48
WL=160

def row_ops(k, L_RST, L_RC):
    ops=[]
    def setup_row():
        k('s_lshr_b32 s48, s2, 6'); k('s_and_b32 s49, s2, 63')
        k('s_lshr_b32 s50, s48, 1'); k('s_and_b32 s51, s48, 1'); k('s_lshl_b32 s50, s50, 4'); k('s_lshl_b32 s51, s51, 2'); k('s_add_u32 s50, s50, s51')
        k(f's_lshr_b32 s51, s{S_WAVE}, 2'); k('s_lshl_b32 s51, s51, 3'); k('s_add_u32 s50, s50, s51'); k(f's_and_b32 s51, s{S_WAVE}, 3'); k('s_add_u32 s50, s50, s51')
        k('s_lshl_b32 s50, s50, 6'); k('s_add_u32 s50, s50, s49'); k('s_mul_i32 s87, s50, 1280')
        k('v_lshlrev_b32 v99, 4, v1')
    def r0():
        setup_row()
        k(f's_mul_i32 s51, s{S_WAVE}, 1280'); k(f's_add_u32 m0, s51, {L_RST}'); k('s_nop 0')
        k(f'buffer_load_dwordx4 v99, s[{S_X}:{S_X+3}], s87 offen lds')
    def r1():
        k(f's_mul_i32 s51, s{S_WAVE}, 1280'); k(f's_add_u32 m0, s51, {L_RST+1024}'); k('s_add_u32 s50, s87, 1024'); k('s_mov_b64 exec, 0xffff')
        k(f'buffer_load_dwordx4 v99, s[{S_X}:{S_X+3}], s50 offen lds'); k('s_mov_b64 exec, -1')
    ops+= [('R',r0),('R',r1)]
    def cst(m):
        def f():
            k(f's_add_u32 s48, s{S_WAVE}, {8*m}'); k(f's_min_u32 s48, s48, 12'); k('s_lshl_b32 s48, s48, 10')
            k('v_add_u32 v4, s48, v99')
            k(f'v_mov_b32 v5, s{S_TBL+1}'); k(f'v_add_co_u32 v4, vcc, s{S_TBL}, v4'); k('v_addc_co_u32 v5, vcc, 0, v5, vcc')
            k(f's_add_u32 m0, s48, {L_RC}'); k('s_nop 0')
            k('global_load_lds_dwordx4 v[4:5], off')
        return f
    ops+= [('C',cst(0)),('C',cst(1))]
    def wsetup():
        k('s_and_b32 s48, s2, 31'); k('s_lshr_b32 s49, s2, 5'); k('s_lshl_b32 s50, s49, 8'); k('s_add_u32 s50, s50, s48'); k('s_mul_i32 s88, s50, 642')
        k('v_min_u32 v98, 0x140, v0'); k('v_lshlrev_b32 v98, 1, v98')
    def wl(jj,im):
        def f():
            if jj==0 and im==0: wsetup()
            k(f's_add_u32 s52, s88, {jj*32*642}')
            k(f'buffer_load_ushort v{WL+8*im+jj}, v98, s[{S_WI if im else S_WR}:{(S_WI if im else S_WR)+3}], s52 offen')
        return f
    for jj in range(8):
        ops+= [('WL',wl(jj,0)),('WL',wl(jj,1))]
    return ops

def frags_dma(k, first, count, L_dst):
    per=(count+7)//8
    k('v_lshlrev_b32 v3, 4, v1')
    for m in range(per):
        k(f's_add_u32 s48, s{S_WAVE}, {8*m}'); k(f's_min_u32 s48, s48, {count-1}'); k('s_lshl_b32 s48, s48, 10')
        k(f's_add_u32 s49, s48, {first*1024}'); k('v_add_u32 v4, s49, v3')
        k(f'v_mov_b32 v5, s{S_TBL+1}'); k(f'v_add_co_u32 v4, vcc, s{S_TBL}, v4'); k('v_addc_co_u32 v5, vcc, 0, v5, vcc')
        k(f's_add_u32 m0, s48, {L_dst}'); k('s_nop 0')
        k('global_load_lds_dwordx4 v[4:5], off')
    return per

def row_consts_read(k, L_RC):
    k('v_lshlrev_b32 v3, 4, v1'); k(f'v_add_u32 v3, {L_RC}, v3')
    m={'r_b1c0':B1C,'r_b1s0':B1S,'r_b1c1':B1C+4,'r_b1s1':B1S+4,'r_tc0':TC,'r_ts0':TS,'r_tc1':TC+4,'r_ts1':TS+4,'r_tc2':TC+8,'r_ts2':TS+8,'r_a2r0':A2R,'r_a2i0':A2I,'r_a2x1':A2X}
    for nm,dst in m.items(): k(f'ds_read_b128 v[{dst}:{dst+3}], v3 offset:{T.FR[nm]*1024}')

def row_compute_regs(k, L_RST):
    XA=16; DR=24; DI=40; TM=56; TR=80; TI=86; D2=176
    k('v_and_b32 v3, 31, v1'); k('v_lshrrev_b32 v4, 5, v1')
    k('v_and_b32 v8, 15, v1'); k('v_lshrrev_b32 v9, 2, v8'); k('v_lshl_add_u32 v9, v4, 3, v9'); k('v_mul_u32_u24 v9, 40, v9')
    k('v_and_b32 v8, 3, v8'); k('v_lshl_add_u32 v9, v8, 3, v9'); k('v_bfe_u32 v8, v1, 4, 1'); k('v_lshl_add_u32 v9, v8, 5, v9')
    k(f's_mul_i32 s51, s{S_WAVE}, {RS}'); k(f's_add_u32 s51, s51, {L_RST}'); k('v_add_u32 v9, s51, v9')
    for tau in range(2):
        for q in range(2): k(f'ds_read_b64_tr_b16 v[{XA+4*tau+2*q}:{XA+4*tau+2*q+1}], v9 offset:{tau*640+q*160}')
    k('v_cmp_eq_u32 s[62:63], 0, v4')
    k('s_waitcnt lgkmcnt(0)')
    k(f'v_mfma_f32_32x32x16_bf16 v[{DR}:{DR+15}], v[{XA}:{XA+3}], v[{B1C}:{B1C+3}], 0')
    k(f'v_mfma_f32_32x32x16_bf16 v[{DI}:{DI+15}], v[{XA}:{XA+3}], v[{B1S}:{B1S+3}], 0')
    k(f'v_mfma_f32_32x32x16_bf16 v[{DR}:{DR+15}], v[{XA+4}:{XA+7}], v[{B1C+4}:{B1C+7}], v[{DR}:{DR+15}]')
    k(f'v_mfma_f32_32x32x16_bf16 v[{DI}:{DI+15}], v[{XA+4}:{XA+7}], v[{B1S+4}:{B1S+7}], v[{DI}:{DI+15}]')
    k('s_nop 15')
    for r in range(0,12,2): cmul_fwd(k,TM+r,TM+12+r,DR+r,DI+r,TC+r,TS+r)
    for jj in range(6):
        k(f'v_cvt_pk_bf16_f32 v{TR+jj}, v{TM+2*jj}, v{TM+2*jj+1}'); k(f'v_cvt_pk_bf16_f32 v{TI+jj}, v{TM+12+2*jj}, v{TM+13+2*jj}')
    for jj in (4,5):
        k(f'v_cndmask_b32 v{TR+jj}, 0, v{TR+jj}, s[62:63]'); k(f'v_cndmask_b32 v{TI+jj}, 0, v{TI+jj}, s[62:63]')
    k('s_nop 1')
    d=D2
    k(f'v_mfma_f32_32x32x16_bf16 v[{d}:{d+15}], v[{A2R}:{A2R+3}], v[{TR}:{TR+3}], 0')
    k(f'v_mfma_f32_32x32x16_bf16 v[{d}:{d+15}], v[{A2I}:{A2I+3}], v[{TI}:{TI+3}], v[{d}:{d+15}]')
    k(f'v_mfma_f32_32x32x8_bf16 v[{d}:{d+15}], v[{A2X}:{A2X+1}], v[{TR+4}:{TR+5}], v[{d}:{d+15}]')
    k(f'v_mfma_f32_32x32x8_bf16 v[{d}:{d+15}], v[{A2X+2}:{A2X+3}], v[{TI+4}:{TI+5}], v[{d}:{d+15}]')
    k('s_nop 15')
    for g in range(3):
        for m in range(2):
            k(f'v_cvt_pk_bf16_f32 v{TM+2*g+m}, v{d+4*g+2*m}, v{d+4*g+2*m+1}')

def row_write_ex(k, L_RST):
    TM=56
    k('v_and_b32 v3, 31, v1'); k('v_lshrrev_b32 v4, 5, v1')
    k('v_lshl_add_u32 v10, v4, 6, v3'); k('v_lshlrev_b32 v10, 2, v10'); k(f's_mul_i32 s51, s{S_WAVE}, {RS}'); k(f's_add_u32 s51, s51, {L_RST}'); k('v_add_u32 v10, s51, v10')
    for g in range(3):
        for m in range(2):
            if g==2 and m==0: k('s_mov_b32 exec_hi, 1')
            if g==2 and m==1: k('s_mov_b32 exec_hi, 0')
            k(f'ds_write_b32 v10, v{TM+2*g+m} offset:{(4*g+m)*128}')
    k('s_mov_b64 exec, -1')

def xw_store2(k, L_RST):
    k('v_cmp_gt_u32 vcc, 0x141, v0'); k('s_and_saveexec_b64 s[56:57], vcc')
    k('v_lshlrev_b32 v3, 2, v0'); k(f'v_add_u32 v3, {L_RST}, v3')
    for j in range(8): k(f'ds_read_b32 v{16+j}, v3 offset:{j*RS}')
    k('v_cmp_eq_u32 vcc, 0, v0'); k('v_mov_b32 v4, 0x140'); k('v_cmp_eq_u32 s[58:59], v4, v0'); k('s_or_b64 vcc, vcc, s[58:59]')
    k('v_mov_b32 v5, 1.0'); k('v_mov_b32 v6, 0.5'); k('v_cndmask_b32 v5, v5, v6, vcc')
    for jj in range(8):
        k(f'v_lshlrev_b32 v{WL+jj}, 16, v{WL+jj}'); k(f'v_lshlrev_b32 v{WL+8+jj}, 16, v{WL+8+jj}')
        k(f'v_mul_f32 v{WL+jj}, v{WL+jj}, v5'); k(f'v_mul_f32 v{WL+8+jj}, v{WL+8+jj}, v5')
        k(f'v_cvt_pk_bf16_f32 v{WL+jj}, v{WL+jj}, v{WL+8+jj}')
    k(f's_mul_i32 s50, s2, {XWB}'); k(f's_add_u32 s50, s50, {WS_XW}')
    k('v_lshlrev_b32 v4, 4, v0')
    k(f's_add_u32 s51, s50, {XB}'); k(f'buffer_store_dwordx4 v[{WL}:{WL+3}], v4, {WS}, s51 offen sc1')
    k(f's_add_u32 s51, s50, {XB+PL}'); k(f'buffer_store_dwordx4 v[{WL+4}:{WL+7}], v4, {WS}, s51 offen sc1')
    k('s_mov_b32 s52, 0x05040100'); k('s_mov_b32 s53, 0x07060302')
    k('s_waitcnt lgkmcnt(0)')
    for p in range(4):
        k(f'v_perm_b32 v{24+p}, v{17+2*p}, v{16+2*p}, s52'); k(f'v_perm_b32 v{28+p}, v{17+2*p}, v{16+2*p}, s53')
    k(f'buffer_store_dwordx4 v[24:27], v4, {WS}, s50 offen sc1')
    k(f's_add_u32 s51, s50, {PL}'); k(f'buffer_store_dwordx4 v[28:31], v4, {WS}, s51 offen sc1')
    k('s_mov_b64 exec, s[56:57]')
    return 4

def w_to_lds(k, L_EXW):
    k('v_cmp_gt_u32 vcc, 0x141, v0'); k('s_and_saveexec_b64 s[56:57], vcc')
    lab=k.label('xs'); k(f's_cbranch_execz {lab}')
    k('v_cmp_eq_u32 vcc, 0, v0'); k('v_mov_b32 v4, 0x140'); k('v_cmp_eq_u32 s[58:59], v4, v0'); k('s_or_b64 vcc, vcc, s[58:59]')
    k('v_mov_b32 v5, 1.0'); k('v_mov_b32 v6, 0.5'); k('v_cndmask_b32 v5, v5, v6, vcc')
    for jj in range(8):
        k(f'v_lshlrev_b32 v{WL+jj}, 16, v{WL+jj}'); k(f'v_lshlrev_b32 v{WL+8+jj}, 16, v{WL+8+jj}')
        k(f'v_mul_f32 v{WL+jj}, v{WL+jj}, v5'); k(f'v_mul_f32 v{WL+8+jj}, v{WL+8+jj}, v5')
        k(f'v_cvt_pk_bf16_f32 v{WL+jj}, v{WL+jj}, v{WL+8+jj}')
    k('v_lshlrev_b32 v3, 5, v0'); k(f'v_add_u32 v3, {L_EXW}, v3')
    k(f'ds_write_b128 v3, v[{WL}:{WL+3}]'); k(f'ds_write_b128 v3, v[{WL+4}:{WL+7}] offset:16')
    k(f'{lab}:'); k('s_mov_b64 exec, s[56:57]')
def xw_store(k, L_EX):
    k(f's_mul_i32 s50, s2, {XWB}'); k(f's_add_u32 s50, s50, {WS_XW}')
    k('v_lshlrev_b32 v3, 4, v0'); k(f'v_add_u32 v4, {L_EX}, v3')
    k('ds_read_b128 v[16:19], v4'); k('ds_read_b128 v[20:23], v4 offset:8192'); k('ds_read_b128 v[24:27], v4 offset:16384')
    k('s_waitcnt lgkmcnt(0)')
    k(f'buffer_store_dwordx4 v[16:19], v3, {WS}, s50 offen sc1')
    k('s_add_u32 s50, s50, 8192'); k(f'buffer_store_dwordx4 v[20:23], v3, {WS}, s50 offen sc1')
    k('s_add_u32 s50, s50, 8192'); k(f'v_cmp_gt_u32 vcc, {(2*XB-16384)//16}, v0'); k('s_and_saveexec_b64 s[56:57], vcc')
    k(f'buffer_store_dwordx4 v[24:27], v3, {WS}, s50 offen sc1')
    k('s_mov_b64 exec, s[56:57]')
    return 3

CT0=T.FR['c_t64c00']; CT1=T.FR['c_w2s13']+1; NCT=CT1-CT0
def col_issue(k, s_col):
    k.c('==== column FFT loads')
    XF=16; WW=48; D=80; TF=144; TB=176; TW=212
    k('v_and_b32 v3, 31, v1'); k('v_lshrrev_b32 v4, 5, v1')
    k(f's_lshl_b32 s48, s{s_col}, 13')
    k(f's_lshl_b32 s50, s{s_col}, 4'); k(f's_add_u32 s50, s50, {WS_XW}')
    k('v_lshl_add_u32 v8, v4, 6, v3'); k(f's_mov_b32 s51, {XWB}'); k('v_mul_lo_u32 v8, v8, s51')
    for u in range(2):
        for tau in range(2):
            for c in range(2):
                k(f's_add_u32 s49, s50, {(128*tau+32*u)*XWB+c*PL}')
                r=XF+16*u+8*c+4*tau
                k(f'buffer_load_dwordx4 v[{r}:{r+3}], v8, {WS}, s49 offen sc1')
    k('v_mul_lo_u32 v9, v3, s51'); k(f'v_mul_u32_u24 v10, {PL}, v4'); k('v_add_u32 v9, v9, v10')
    for tg in range(8):
        k(f's_add_u32 s49, s50, {tg*32*XWB+XB}')
        k(f'buffer_load_dwordx4 v[{WW+4*tg}:{WW+4*tg+3}], v9, {WS}, s49 offen sc1')

def col_fft(k, s_col, L_T, L_YS):
    k.c('==== column FFT duty')
    XF=16; WW=48; D=80; TF=144; TB=176; TW=212
    def toff(name): return (T.FR[name]-CT0)*1024
    k(f's_lshl_b32 s48, s{s_col}, 13')
    if k.o.get('tcol'): k.tc(0)
    k(f'v_lshlrev_b32 v10, 4, v1'); k(f'v_add_u32 v10, {L_T}, v10'); k('v_add_u32 v11, 0x8000, v10')
    def tr(dst,name):
        o=toff(name)
        if o<32768: k(f'ds_read_b128 v[{dst}:{dst+3}], v10 offset:{o}')
        else: k(f'ds_read_b128 v[{dst}:{dst+3}], v11 offset:{o-32768}')
    for tau in range(2):
        for x,nm in enumerate('csn'): tr(TB+12*tau+4*x,f'c_t32{nm}{tau}')
    def mf(d, a, b, first):
        c='0' if first else f'v[{d}:{d+15}]'
        k(f'v_mfma_f32_32x32x16_bf16 v[{d}:{d+15}], v[{a}:{a+3}], v[{b}:{b+3}], {c}')
    def twl(prefix,n):
        a,g=n>>2,n&3; b=TW+8*(n&1)
        tr(b,f'{prefix}c{a}{g}'); tr(b+4,f'{prefix}s{a}{g}')
    k('s_waitcnt lgkmcnt(0)')
    for u in range(2):
        dre=D+32*u; dim=dre+16
        for tau in range(2):
            xr=XF+16*u+4*tau; xi=XF+16*u+8+4*tau; C=TB+12*tau; S=C+4; N=C+8
            mf(dre,xr,C,tau==0); mf(dim,xi,C,tau==0); mf(dre,xi,S,False); mf(dim,xr,N,False)
    TT=TW+16
    def t64l(n):
        t,tau=n>>2,n&3; b=TB+12*(n%3)
        for x,nm in enumerate('csn'): tr(b+4*x,f'c_t64{nm}{t}{tau}')
    def twiddle_pack(prefix):
        for n in range(8):
            a,g=n>>2,n&3; b=TW+8*(n&1)
            dre=D+32*a; dim=dre+16
            k(f's_waitcnt lgkmcnt({2 if n<7 else 0})')
            for i in (0,2): cmul_fwd(k,TT+i,TT+4+i,dre+4*g+i,dim+4*g+i,b+i,b+4+i)
            if n+2<8: twl(prefix,n+2)
            st=2*a+(g>>1); o=2*(g&1)
            for jj in range(2):
                k(f'v_cvt_pk_bf16_f32 v{TF+4*st+o+jj}, v{TT+2*jj}, v{TT+2*jj+1}')
                k(f'v_cvt_pk_bf16_f32 v{TF+16+4*st+o+jj}, v{TT+4+2*jj}, v{TT+5+2*jj}')
    def stage64(data_is_A, pre=None):
        t64l(0); t64l(1)
        for n in range(8):
            t,tau=n>>2,n&3; b=TB+12*(n%3)
            if n+2<8:
                t64l(n+2); k('s_waitcnt lgkmcnt(6)')
            elif n+1<8: k('s_waitcnt lgkmcnt(3)')
            else: k('s_waitcnt lgkmcnt(0)')
            C=b; S=b+4; N=b+8
            dre=D+32*t; dim=dre+16; re=TF+4*tau; im=TF+16+4*tau
            if data_is_A: mf(dre,re,C,tau==0); mf(dim,im,C,tau==0); mf(dre,im,S,False); mf(dim,re,N,False)
            else: mf(dre,C,re,tau==0); mf(dim,C,im,tau==0); mf(dre,S,im,False); mf(dim,N,re,False)
    if k.o.get('tcol'): k.tc(1)
    twl('c_w1',0); twl('c_w1',1)
    k('s_nop 13')
    twiddle_pack('c_w1')
    if k.o.get('tcol'): k.tc(2)
    k('s_nop 1')
    stage64(False)
    k('s_waitcnt vmcnt(0)')
    if k.o.get('tcol'): k.tc(3)
    k('s_nop 15')
    for t in range(2):
        dre=D+32*t; dim=dre+16
        for g in range(4):
            w=WW+4*(4*t+g)
            for i in range(4):
                k(f'v_lshlrev_b32 v{TW+i}, 16, v{w+i}'); k(f'v_and_b32 v{TW+4+i}, 0xffff0000, v{w+i}')
            for i in (0,2):
                r=4*g+i
                pk(k,'mul',TT+i,dre+r,TW+i); pk(k,'mul',TT+4+i,dre+r,TW+4+i)
                pk(k,'fma',TT+i,dim+r,TW+4+i,TT+i,nega=True); pk(k,'fma',TT+4+i,dim+r,TW+i,TT+4+i)
            st=2*t+(g>>1); o=2*(g&1)
            for jj in range(2):
                k(f'v_cvt_pk_bf16_f32 v{TF+4*st+o+jj}, v{TT+2*jj}, v{TT+2*jj+1}')
                k(f'v_cvt_pk_bf16_f32 v{TF+16+4*st+o+jj}, -v{TT+4+2*jj}, -v{TT+5+2*jj}')
    if k.o.get('tcol'): k.tc(4)
    k('s_nop 1')
    stage64(True)
    if k.o.get('tcol'): k.tc(5)
    twl('c_w2',0); twl('c_w2',1)
    k('s_nop 13')
    twiddle_pack('c_w2')
    if k.o.get('tcol'): k.tc(7)
    for tau in range(2):
        for x,nm in enumerate('csn'): tr(TB+12*tau+4*x,f'c_t32{nm}{tau}')
    k('s_waitcnt lgkmcnt(0)')
    for u in range(2):
        dre=D+32*u; dim=dre+16
        for sg in range(2):
            C=TB+12*sg; S=C+4; N=C+8; st=2*u+sg; re=TF+4*st; im=TF+16+4*st
            mf(dre,C,re,sg==0); mf(dim,C,im,sg==0); mf(dre,S,im,False); mf(dim,N,re,False)
    k('s_nop 15')
    if k.o.get('tcol'): k.tc(8)
    k('v_and_b32 v9, 7, v3')
    for u in range(2):
        dre=D+32*u; dim=dre+16
        for tau in range(2):
            ob=XF+8*(2*u+tau)
            for j in range(8):
                r=4*(2*tau+(j>>2))+(j&3)
                k(f'v_cvt_pk_bf16_f32 v{ob+j}, v{dre+r}, -v{dim+r}')
            for half in range(2):
                k(f'v_lshlrev_b32 v12, 1, v4'); k(f'v_add_u32 v12, {4*tau+half}, v12'); k('v_xor_b32 v12, v12, v9'); k('v_lshlrev_b32 v12, 4, v12')
                k('v_lshl_add_u32 v12, v3, 7, v12'); k(f'v_add_u32 v12, s{s_col+1}, v12')
                k(f'ds_write_b128 v12, v[{ob+4*half}:{ob+4*half+3}] offset:{u*4096}')
    k('v_lshrrev_b32 v12, 3, v1'); k('v_and_b32 v13, 7, v1'); k('v_and_b32 v14, 7, v12'); k('v_xor_b32 v13, v13, v14'); k('v_lshlrev_b32 v13, 4, v13'); k('v_lshl_add_u32 v12, v12, 7, v13')
    k(f'v_add_u32 v12, s{s_col+1}, v12')
    k('s_waitcnt lgkmcnt(0)')
    for i in range(8): k(f'ds_read_b128 v[{D+4*i}:{D+4*i+3}], v12 offset:{1024*i}')
    k('v_lshlrev_b32 v8, 4, v1'); k(f's_add_u32 s49, s48, {WS_Y1}')
    for i in range(8):
        k(f's_waitcnt lgkmcnt({7-i})')
        if i in (4,): k('s_add_u32 s49, s49, 4096')
        k(f'buffer_store_dwordx4 v[{D+4*i}:{D+4*i+3}], v8, {WS}, s49 offen offset:{1024*(i&3)} sc1')

IB1R,IB1I,IB1X,ITC,ITS,IBC,IBS=100,104,108,112,128,144,152
IC_FIRST=T.FR['i_b1r0']; IC_N=11
def irow_issue(k):
    k('s_lshr_b32 s48, s2, 6'); k('s_and_b32 s49, s2, 63')
    k('s_lshl_b32 s50, s49, 7'); k('s_lshl_b32 s51, s48, 5'); k('s_add_u32 s50, s50, s51'); k(f's_add_u32 s50, s50, {WS_Y1}')
    k('v_min_u32 v8, 0x140, v0'); k('v_lshlrev_b32 v8, 13, v8')
    k(f'buffer_load_dwordx4 v[16:19], v8, {WS}, s50 offen sc1'); k(f'buffer_load_dwordx4 v[20:23], v8, {WS}, s50 offen offset:16 sc1')
    return 2
def irow_consts_read(k, L_IC):
    k('v_lshlrev_b32 v3, 4, v1'); k(f'v_add_u32 v3, {L_IC}, v3')
    m={'i_b1r0':IB1R,'i_b1i0':IB1I,'i_b1x1':IB1X}
    for g in range(4): m[f'i_tc{g}']=ITC+4*g; m[f'i_ts{g}']=ITS+4*g
    for nm,dst in m.items(): k(f'ds_read_b128 v[{dst}:{dst+3}], v3 offset:{(T.FR[nm]-IC_FIRST)*1024}')
    for x,dst in enumerate((IBC,IBS,IBC+4,IBS+4)): k(f'ds_read_b128 v[{dst}:{dst+3}], v3 offset:{(11+x)*1024}')
def irow_consts_dma(k, L_IC):
    n=frags_dma(k,IC_FIRST,IC_N,L_IC)
    k('v_lshlrev_b32 v3, 4, v1')
    names=['c_t32c0','c_t32n0','c_t32c1','c_t32n1']
    k(f's_and_b32 s48, s{S_WAVE}, 3')
    b=T.FR['c_t32c0']; assert [T.FR[x]-b for x in names]==[0,2,3,5]
    k('s_cmp_gt_u32 s48, 0'); k('s_addc_u32 s49, s48, 0'); k('s_cmp_gt_u32 s48, 2'); k('s_addc_u32 s49, s49, 0')
    k(f's_add_u32 s49, s49, {b}'); k('s_lshl_b32 s49, s49, 10'); k('v_add_u32 v4, s49, v3')
    k(f'v_mov_b32 v5, s{S_TBL+1}'); k(f'v_add_co_u32 v4, vcc, s{S_TBL}, v4'); k('v_addc_co_u32 v5, vcc, 0, v5, vcc')
    k('s_lshl_b32 s48, s48, 10'); k(f's_add_u32 m0, s48, {L_IC+11*1024}'); k('s_nop 0')
    k('global_load_lds_dwordx4 v[4:5], off')
    return n+1
def irow_stage(k, LA, LB):
    k('v_cmp_gt_u32 vcc, 0x141, v0'); k('s_and_saveexec_b64 s[56:57], vcc')
    lab=k.label('is'); k(f's_cbranch_execz {lab}')
    k('v_and_b32 v8, 31, v0'); k('v_mul_u32_u24 v8, 48, v8'); k('v_lshrrev_b32 v9, 5, v0'); k('v_lshl_add_u32 v8, v9, 2, v8')
    k(f'v_add_u32 v9, {LB}, v8'); k(f'v_add_u32 v8, {LA}, v8')
    for j in range(4): k(f'ds_write_b32 v8, v{16+j} offset:{j*1536}')
    for j in range(4): k(f'ds_write_b32 v9, v{20+j} offset:{j*1536}')
    k(f'{lab}:'); k('s_mov_b64 exec, s[56:57]')
def irow_compute(k, LA, LB, L_BS):
    YA=16; UR=24; UI=40; TM=56; VR=88; VI=160; DO=168
    k('v_and_b32 v3, 31, v1'); k('v_lshrrev_b32 v4, 5, v1')
    k(f's_and_b32 s50, s{S_WAVE}, 3'); k('s_mul_i32 s50, s50, 1536'); k(f's_cmp_lt_u32 s{S_WAVE}, 4'); k(f's_cselect_b32 s51, {LA}, {LB}'); k('s_add_u32 s50, s50, s51')
    k('v_mul_u32_u24 v9, 48, v3'); k('v_add_u32 v9, s50, v9'); k('v_lshl_add_u32 v12, v4, 3, v9'); k('v_lshl_add_u32 v9, v4, 4, v9')
    k(f'ds_read_b128 v[{YA}:{YA+3}], v9'); k(f'ds_read_b64 v[{YA+4}:{YA+5}], v12 offset:32')
    k('v_cmp_eq_u32 s[62:63], 0, v4'); k('v_cmp_eq_u32 s[58:59], 0, v3'); k('s_or_b64 s[58:59], s[58:59], s[62:63]')
    k('s_lshr_b32 s48, s2, 6'); k('s_and_b32 s49, s2, 63')
    k('s_lshr_b32 s50, s48, 1'); k('s_and_b32 s51, s48, 1'); k('s_lshl_b32 s50, s50, 4'); k('s_lshl_b32 s51, s51, 2'); k('s_add_u32 s50, s50, s51')
    k(f's_lshr_b32 s51, s{S_WAVE}, 2'); k('s_lshl_b32 s51, s51, 3'); k('s_add_u32 s50, s50, s51'); k(f's_and_b32 s51, s{S_WAVE}, 3'); k('s_add_u32 s50, s50, s51')
    k('s_lshl_b32 s50, s50, 6'); k('s_add_u32 s50, s50, s49'); k('s_mul_i32 s50, s50, 1280'); k(f's_add_u32 s50, s50, {WS_B}')
    k('v_mul_u32_u24 v13, 40, v3'); k('v_lshl_add_u32 v13, v4, 3, v13')
    k('s_waitcnt lgkmcnt(0)')
    b=YA
    k(f'v_cndmask_b32 v{b+4}, 0, v{b+4}, s[58:59]'); k(f'v_cndmask_b32 v{b+5}, 0, v{b+5}, s[62:63]')
    k(f'v_mfma_f32_32x32x16_bf16 v[{UR}:{UR+15}], v[{b}:{b+3}], v[{IB1R}:{IB1R+3}], 0')
    k(f'v_mfma_f32_32x32x16_bf16 v[{UI}:{UI+15}], v[{b}:{b+3}], v[{IB1I}:{IB1I+3}], 0')
    k(f'v_mfma_f32_32x32x8_bf16 v[{UR}:{UR+15}], v[{b+4}:{b+5}], v[{IB1X}:{IB1X+1}], v[{UR}:{UR+15}]')
    k(f'v_mfma_f32_32x32x8_bf16 v[{UI}:{UI+15}], v[{b+4}:{b+5}], v[{IB1X+2}:{IB1X+3}], v[{UI}:{UI+15}]')
    k('s_nop 15')
    for r in range(0,16,2): cmul_inv(k,TM+r,TM+16+r,UR+r,UI+r,ITC+r,ITS+r)
    for jj in range(8):
        k(f'v_cvt_pk_bf16_f32 v{VR+jj}, v{TM+2*jj}, v{TM+2*jj+1}'); k(f'v_cvt_pk_bf16_f32 v{VI+jj}, v{TM+16+2*jj}, v{TM+17+2*jj}')
    k('s_nop 1')
    k(f'v_mfma_f32_32x32x16_bf16 v[{DO}:{DO+15}], v[{VR}:{VR+3}], v[{IBC}:{IBC+3}], 0')
    k(f'v_mfma_f32_32x32x16_bf16 v[{DO}:{DO+15}], v[{VI}:{VI+3}], v[{IBS}:{IBS+3}], v[{DO}:{DO+15}]')
    k(f'v_mfma_f32_32x32x16_bf16 v[{DO}:{DO+15}], v[{VR+4}:{VR+7}], v[{IBC+4}:{IBC+7}], v[{DO}:{DO+15}]')
    k(f'v_mfma_f32_32x32x16_bf16 v[{DO}:{DO+15}], v[{VI+4}:{VI+7}], v[{IBS+4}:{IBS+7}], v[{DO}:{DO+15}]')
    k('s_nop 15')
    ob=TM
    for jj in range(6): k(f'v_cvt_pk_bf16_f32 v{ob+jj}, v{DO+2*jj}, v{DO+2*jj+1}')
    k(f's_mul_i32 s51, s{S_WAVE}, 1280'); k(f's_add_u32 s51, s51, {L_BS}')
    k('v_add_u32 v14, s51, v13')
    k(f'ds_write_b64 v14, v[{ob}:{ob+1}]'); k(f'ds_write_b64 v14, v[{ob+2}:{ob+3}] offset:16')
    k('s_mov_b32 exec_hi, 0'); k(f'ds_write_b64 v14, v[{ob+4}:{ob+5}] offset:32'); k('s_mov_b64 exec, -1')
    k('v_lshlrev_b32 v15, 4, v1'); k('v_add_u32 v14, s51, v15')
    k('s_waitcnt lgkmcnt(0)')
    k(f'ds_read_b128 v[{ob}:{ob+3}], v14'); k(f'ds_read_b128 v[{ob+4}:{ob+7}], v14 offset:1024')
    k('s_waitcnt lgkmcnt(0)')
    k(f'buffer_store_dwordx4 v[{ob}:{ob+3}], v15, {WS}, s50 offen sc1')
    k('s_mov_b64 exec, 0xffff')
    k(f'buffer_store_dwordx4 v[{ob+4}:{ob+7}], v15, {WS}, s50 offen offset:1024 sc1')
    k('s_mov_b64 exec, -1')


def row_ifft_duty(k, L_ST, L_IC):
    k.c('==== row iFFT duty (single wave)')
    k('v_and_b32 v3, 31, v1'); k('v_lshrrev_b32 v4, 5, v1')
    k('s_lshr_b32 s48, s2, 6'); k('s_and_b32 s49, s2, 63')
    k('s_lshl_b32 s50, s49, 7'); k('s_lshl_b32 s51, s48, 5'); k('s_add_u32 s50, s50, s51'); k(f's_add_u32 s50, s50, {WS_Y1}')
    LD=16
    for p in range(6):
        k(f'v_add_u32 v8, {64*p}, v1'); k('v_lshlrev_b32 v8, 13, v8')
        if p==5: k('s_mov_b64 exec, 1')
        k(f'buffer_load_dwordx4 v[{LD+8*p}:{LD+8*p+3}], v8, {WS}, s50 offen sc1')
        k(f'buffer_load_dwordx4 v[{LD+8*p+4}:{LD+8*p+7}], v8, {WS}, s50 offen offset:16 sc1')
    k('s_mov_b64 exec, -1')
    B1R,B1I,B1X=64,68,72
    TC_,TS_=76,92
    BC,BS=108,116
    k('v_lshlrev_b32 v10, 4, v1'); k(f'v_add_u32 v10, {L_IC}, v10')
    m={'i_b1r0':B1R,'i_b1i0':B1I,'i_b1x1':B1X}
    for g in range(4): m[f'i_tc{g}']=TC_+4*g; m[f'i_ts{g}']=TS_+4*g
    for nm,dst in m.items(): k(f'ds_read_b128 v[{dst}:{dst+3}], v10 offset:{(T.FR[nm]-IC_FIRST)*1024}')
    for x,dst in enumerate((BC,BS,BC+4,BS+4)): k(f'ds_read_b128 v[{dst}:{dst+3}], v10 offset:{(11+x)*1024}')
    k(f'v_mul_u32_u24 v8, 48, v3'); k(f'v_lshl_add_u32 v8, v4, 2, v8'); k(f'v_add_u32 v8, {L_ST}, v8')
    k(f'v_mul_u32_u24 v9, 48, v3'); k(f'v_add_u32 v9, {L_ST}, v9'); k(f'v_lshl_add_u32 v12, v4, 3, v9'); k(f'v_lshl_add_u32 v9, v4, 4, v9')
    k(f'v_cmp_eq_u32 s[62:63], 0, v4'); k(f'v_cmp_eq_u32 s[58:59], 0, v3'); k('s_or_b64 s[58:59], s[58:59], s[62:63]')
    k('s_lshr_b32 s50, s48, 1'); k('s_and_b32 s51, s48, 1'); k('s_lshl_b32 s50, s50, 4'); k('s_lshl_b32 s51, s51, 2'); k('s_add_u32 s50, s50, s51')
    k(f'v_mul_u32_u24 v13, 40, v3'); k(f'v_lshl_add_u32 v13, v4, 3, v13'); k(f'v_add_u32 v13, {L_ST}, v13')
    k('v_lshlrev_b32 v15, 4, v1'); k(f'v_add_u32 v14, {L_ST}, v15')
    YA=124; UR=136; UI=152; TM=168; VR=200; VI=208; DO=216; OB=232
    k('s_waitcnt vmcnt(0) lgkmcnt(0)')
    for half in range(2):
        for p in range(6):
            if p==5: k('s_mov_b64 exec, 1')
            for j in range(4):
                k(f'ds_write_b32 v8, v{LD+8*p+4*half+j} offset:{j*1536+p*8}')
        k('s_mov_b64 exec, -1')
        k('s_waitcnt lgkmcnt(0)')
        def rd(j):
            b=YA+6*(j&1)
            k(f'ds_read_b128 v[{b}:{b+3}], v9 offset:{j*1536}')
            k(f'ds_read_b64 v[{b+4}:{b+5}], v12 offset:{j*1536+32}')
        def st1(j):
            b=YA+6*(j&1)
            k(f'v_cndmask_b32 v{b+4}, 0, v{b+4}, s[58:59]'); k(f'v_cndmask_b32 v{b+5}, 0, v{b+5}, s[62:63]')
            k(f'v_mfma_f32_32x32x16_bf16 v[{UR}:{UR+15}], v[{b}:{b+3}], v[{B1R}:{B1R+3}], 0')
            k(f'v_mfma_f32_32x32x16_bf16 v[{UI}:{UI+15}], v[{b}:{b+3}], v[{B1I}:{B1I+3}], 0')
            k(f'v_mfma_f32_32x32x8_bf16 v[{UR}:{UR+15}], v[{b+4}:{b+5}], v[{B1X}:{B1X+1}], v[{UR}:{UR+15}]')
            k(f'v_mfma_f32_32x32x8_bf16 v[{UI}:{UI+15}], v[{b+4}:{b+5}], v[{B1X+2}:{B1X+3}], v[{UI}:{UI+15}]')
        def out(j, jg):
            ob=OB
            for jj in range(6): k(f'v_cvt_pk_bf16_f32 v{ob+jj}, v{DO+2*jj}, v{DO+2*jj+1}')
            k(f'ds_write_b64 v13, v[{ob}:{ob+1}] offset:{j*1536}'); k(f'ds_write_b64 v13, v[{ob+2}:{ob+3}] offset:{j*1536+16}')
            k('s_mov_b32 exec_hi, 0'); k(f'ds_write_b64 v13, v[{ob+4}:{ob+5}] offset:{j*1536+32}'); k('s_mov_b64 exec, -1')
        def store(j, jg):
            ob=238+8*(j&1)
            k(f'ds_read_b128 v[{ob}:{ob+3}], v14 offset:{j*1536}'); k(f'ds_read_b128 v[{ob+4}:{ob+7}], v14 offset:{j*1536+1024}')
            k(f's_add_u32 s51, s50, {8*(jg>>2)+(jg&3)}'); k('s_lshl_b32 s51, s51, 6'); k('s_add_u32 s51, s51, s49'); k('s_mul_i32 s51, s51, 1280'); k(f's_add_u32 s51, s51, {WS_B}')
            k('s_waitcnt lgkmcnt(0)')
            k(f'buffer_store_dwordx4 v[{ob}:{ob+3}], v15, {WS}, s51 offen sc1')
            k('s_mov_b64 exec, 0xffff')
            k(f'buffer_store_dwordx4 v[{ob+4}:{ob+7}], v15, {WS}, s51 offen offset:1024 sc1')
            k('s_mov_b64 exec, -1')
        rd(0); rd(1)
        k('s_waitcnt lgkmcnt(2)')
        st1(0)
        for j in range(4):
            if j==0: k('s_nop 15')
            for r in range(0,16,2): cmul_inv(k,TM+r,TM+16+r,UR+r,UI+r,TC_+r,TS_+r)
            if j+1<4:
                k('s_waitcnt lgkmcnt(0)')
                st1(j+1)
                if j+2<4: rd(j+2)
            if j>0: out(j-1, 4*half+j-1)
            for jj in range(8):
                k(f'v_cvt_pk_bf16_f32 v{VR+jj}, v{TM+2*jj}, v{TM+2*jj+1}'); k(f'v_cvt_pk_bf16_f32 v{VI+jj}, v{TM+16+2*jj}, v{TM+17+2*jj}')
            k('s_nop 1')
            k(f'v_mfma_f32_32x32x16_bf16 v[{DO}:{DO+15}], v[{VR}:{VR+3}], v[{BC}:{BC+3}], 0')
            k(f'v_mfma_f32_32x32x16_bf16 v[{DO}:{DO+15}], v[{VI}:{VI+3}], v[{BS}:{BS+3}], v[{DO}:{DO+15}]')
            k(f'v_mfma_f32_32x32x16_bf16 v[{DO}:{DO+15}], v[{VR+4}:{VR+7}], v[{BC+4}:{BC+7}], v[{DO}:{DO+15}]')
            k(f'v_mfma_f32_32x32x16_bf16 v[{DO}:{DO+15}], v[{VI+4}:{VI+7}], v[{BS+4}:{BS+7}], v[{DO}:{DO+15}]')
            if j>0:
                k('s_waitcnt lgkmcnt(0)'); store(j-1, 4*half+j-1)
        k('s_nop 15')
        out(3, 4*half+3)
        k('s_waitcnt lgkmcnt(0)'); store(3, 4*half+3)
    k('s_waitcnt vmcnt(0)')
    k('s_mov_b32 s60, s2'); set_flag(k,WS_FB,60)


def early_issue(k, L_RST, L_RC, L_WR):
    k('s_lshr_b32 s48, s2, 6'); k('s_and_b32 s49, s2, 63')
    k('s_lshr_b32 s50, s48, 1'); k('s_and_b32 s51, s48, 1'); k('s_lshl_b32 s50, s50, 4'); k('s_lshl_b32 s51, s51, 2'); k('s_add_u32 s50, s50, s51')
    k(f's_lshr_b32 s51, s{S_WAVE}, 2'); k('s_lshl_b32 s51, s51, 3'); k('s_add_u32 s50, s50, s51'); k(f's_and_b32 s51, s{S_WAVE}, 3'); k('s_add_u32 s50, s50, s51')
    k('s_lshl_b32 s50, s50, 6'); k('s_add_u32 s50, s50, s49'); k('s_mul_i32 s50, s50, 1280')
    k('v_lshlrev_b32 v3, 4, v1')
    k(f's_mul_i32 s51, s{S_WAVE}, {RS}'); k(f's_add_u32 m0, s51, {L_RST}'); k('s_nop 0')
    k(f'buffer_load_dwordx4 v3, s[{S_X}:{S_X+3}], s50 offen lds')
    k(f's_add_u32 m0, s51, {L_RST+1024}'); k('s_add_u32 s50, s50, 1024'); k('s_mov_b64 exec, 0xffff')
    k(f'buffer_load_dwordx4 v3, s[{S_X}:{S_X+3}], s50 offen lds'); k('s_mov_b64 exec, -1')
    for m in range(2):
        k(f's_add_u32 s48, s{S_WAVE}, {8*m}'); k(f's_min_u32 s48, s48, 12'); k('s_lshl_b32 s48, s48, 10')
        k('v_add_u32 v4, s48, v3')
        k(f'v_mov_b32 v5, s{S_TBL+1}'); k(f'v_add_co_u32 v4, vcc, s{S_TBL}, v4'); k('v_addc_co_u32 v5, vcc, 0, v5, vcc')
        k(f's_add_u32 m0, s48, {L_RC}'); k('s_nop 0')
        k('global_load_lds_dwordx4 v[4:5], off')
    k('s_and_b32 s48, s2, 31'); k('s_lshr_b32 s49, s2, 5'); k('s_lshl_b32 s50, s49, 8'); k('s_add_u32 s50, s50, s48')
    k(f's_lshl_b32 s51, s{S_WAVE}, 1'); k('s_and_b32 s51, s51, 7'); k('s_lshl_b32 s51, s51, 5'); k('s_add_u32 s50, s50, s51')
    labI=k.label('wi'); labD=k.label('wd')
    k(f's_cmp_ge_u32 s{S_WAVE}, 4'); k(f's_cbranch_scc1 {labI}')
    for arr,lab in ((S_WR,None),(S_WI,labI)):
        if lab: k(f'{lab}:')
        for i in range(2):
            k(f's_add_u32 s52, s50, {32*i}'); k('s_mul_i32 s52, s52, 642'); k('s_and_b32 s52, s52, 0xfffffffc')
            k(f's_lshl_b32 s53, s{S_WAVE}, 1'); k(f's_add_u32 s53, s53, {i}'); k('s_mul_i32 s53, s53, 672'); k(f's_add_u32 m0, s53, {L_WR}')
            k('s_mov_b64 exec, 0x1ffffffffff')if False else (k('s_mov_b32 exec_lo, -1'), k('s_mov_b32 exec_hi, 0x1ff'))
            k(f'buffer_load_dwordx4 v3, s[{arr}:{arr+3}], s52 offen lds')
            k('s_mov_b64 exec, -1')
        if not lab: k(f's_branch {labD}')
    k(f'{labD}:')
    return 6

def w_read_lds(k, L_WR):
    k('s_and_b32 s48, s2, 1'); k('s_lshl_b32 s48, s48, 1'); k(f's_add_u32 s48, s48, {L_WR}')
    k('v_min_u32 v3, 0x140, v0'); k('v_lshlrev_b32 v3, 1, v3'); k('v_add_u32 v3, s48, v3')
    for r in range(16): k(f'ds_read_u16 v{WL+r}, v3 offset:{r*672}')
```

```python
import numpy as np, struct
def bf16bits(x):
    x=np.asarray(x,dtype=np.float32)
    u=x.view(np.uint32).astype(np.uint64)
    r=((u+0x7fff+((u>>16)&1))>>16).astype(np.uint32)
    return r&0xffff
def pack_bf16(vals):
    b=bf16bits(vals)
    return (b[:,0::2]|(b[:,1::2]<<16)).astype(np.uint32)
def f32bits(vals):
    return np.asarray(vals,dtype=np.float32).view(np.uint32)
L=np.arange(64); IDX=L&31; H=L>>5
def cs(num,den):
    r=np.mod(num,den)
    a=2*np.pi*r/den
    c=np.cos(a); s=np.sin(a)
    c[np.abs(c)<1e-12]=0; s[np.abs(s)<1e-12]=0
    return c,s
FR={}; order=[]
def add(name,arr):
    arr=np.asarray(arr,dtype=np.uint32); assert arr.shape==(64,4),(name,arr.shape)
    FR[name]=len(order); order.append(arr)
def perm(j,base=0): return base+8*(j>>2)+4*H+(j&3)
for tau in range(2):
    m=np.stack([16*tau+8*H+j for j in range(8)],1)
    c,s=cs(IDX[:,None]*m,32)
    add(f'r_b1c{tau}',pack_bf16(c)); add(f'r_b1s{tau}',pack_bf16(-s))
for g in range(3):
    n2=np.stack([8*g+4*H+i for i in range(4)],1)
    c,s=cs(IDX[:,None]*n2,640)
    add(f'r_tc{g}',f32bits(c)); add(f'r_ts{g}',f32bits(s))
rho=IDX; gp=rho>>3; hp=(rho>>2)&1; ip=rho&3; k2=4*gp+2*hp+(ip>>1); cc=ip&1; valid=(k2<=10)
def a2(n2):
    c,s=cs(k2[:,None]*n2,20)
    re=np.where(cc[:,None]==0,c,-s); im=np.where(cc[:,None]==0,s,c)
    v=valid[:,None]&(n2<20)
    return np.where(v,re,0),np.where(v,im,0)
n2=np.stack([perm(j) for j in range(8)],1); re,im=a2(n2); add('r_a2r0',pack_bf16(re)); add('r_a2i0',pack_bf16(im))
n2=np.stack([16+4*H+j for j in range(4)],1); re,im=a2(n2)
add('r_a2x1',np.concatenate([pack_bf16(np.concatenate([re,re],1))[:,:2], pack_bf16(np.concatenate([im,im],1))[:,:2]],1))
for t in range(2):
    for tau in range(4):
        m=np.stack([perm(j,16*tau) for j in range(8)],1)
        c,s=cs((32*t+IDX)[:,None]*m,64)
        add(f'c_t64c{t}{tau}',pack_bf16(c)); add(f'c_t64s{t}{tau}',pack_bf16(s)); add(f'c_t64n{t}{tau}',pack_bf16(-s))
for tau in range(2):
    m=np.stack([perm(j,16*tau) for j in range(8)],1)
    c,s=cs(IDX[:,None]*m,32)
    add(f'c_t32c{tau}',pack_bf16(c)); add(f'c_t32s{tau}',pack_bf16(s)); add(f'c_t32n{tau}',pack_bf16(-s))
for a in range(2):
    for g in range(4):
        n2=np.stack([32*a+8*g+4*H+i for i in range(4)],1)
        c,s=cs(IDX[:,None]*n2,2048)
        add(f'c_w1c{a}{g}',f32bits(c)); add(f'c_w1s{a}{g}',f32bits(s))
for a in range(2):
    for g in range(4):
        k1=np.stack([8*g+4*H+i for i in range(4)],1)
        c,s=cs((IDX+32*a)[:,None]*k1,2048)
        SC=2.0/(2048*640)
        add(f'c_w2c{a}{g}',f32bits(c*SC)); add(f'c_w2s{a}{g}',f32bits(s*SC))
def b1(k2s,cs_):
    c,s=cs(IDX[:,None]*k2s,20)
    re=np.where(cs_==0,c,-s); im=np.where(cs_==0,s,c)
    v=(IDX[:,None]<20)&(k2s<=10)
    return np.where(v,re,0),np.where(v,im,0)
k2s=np.stack([4*H+(j>>1) for j in range(8)],1); cs_=np.stack([np.full(64,j&1) for j in range(8)],1)
re,im=b1(k2s,cs_); add('i_b1r0',pack_bf16(re)); add('i_b1i0',pack_bf16(im))
k2s=np.stack([8+2*H+(j>>1) for j in range(4)],1); cs_=np.stack([np.full(64,j&1) for j in range(4)],1)
re,im=b1(k2s,cs_)
add('i_b1x1',np.concatenate([pack_bf16(np.concatenate([re,re],1))[:,:2], pack_bf16(np.concatenate([im,im],1))[:,:2]],1))
for g in range(4):
    k1=np.stack([8*g+4*H+i for i in range(4)],1)
    c,s=cs(IDX[:,None]*k1,640)
    add(f'i_tc{g}',f32bits(c)); add(f'i_ts{g}',f32bits(s))
def table_text(label):
    a=np.concatenate([o.reshape(-1) for o in order])
    out=[f'.p2align 8',f'.type {label},@object',f'{label}:']
    for i in range(0,len(a),8):
        out.append('.long '+','.join(hex(int(x)) for x in a[i:i+8]))
    out.append(f'.size {label}, {len(a)*4}')
    return '\n'.join(out)+'\n'
if __name__=='__main__':
    print(len(order),'frags', len(table_text('T')),'chars'); print(FR)
```

```python
import sys, math
from asmgen import *
import fft9 as F
import fft2
import tables as T
NAME='gated_mix__grouped_kv_mqa__spectral_gfnet__prompt_kernel'
WS_EPOCH=0
WS_FKV=0x1000; WS_FX=F.WS_FX; WS_FY=F.WS_FY; WS_FB=F.WS_FB; WS_FO=0x5000; WS_FY2=F.WS_FY2
WS_KV=0x10000; WS_KM=0x52000; WS_TS=0x60000
WS_O=0x100000; WS_XW=F.WS_XW; WS_Y1=F.WS_Y1; WS_B=F.WS_B; WS_SIZE=0x1000000
XS=272; XCH=17408; WCH=24576; ENT=XCH+WCH
L_WKV=87040; L_RST=138240; L_RCc=148608; L_GW=161920; L_SCRc=136192
def xpos(kv,p): return p*XCH if kv else (p%3)*ENT
def wpos(kv,p): return (L_WKV+(p%3)*WCH) if kv else (p%3)*ENT+XCH
L_Q1=0; L_Q2=8192; L_ZERO=10240; L_M=10272; L_CNT=10304; L_Z=10368; L_O=11392; OT=21*256
L_IST=L_O+8*OT
L_WO=L_IST+6144
L_EX=L_WO
L_RC=L_RCc
L_YS0=131072; L_YS1=139264
L_IC=L_WO+3*25600+160+10*1024
WOSUB=25600; WOPAD=[0,32,128,160]
assert L_WO+4*WOSUB+160<=163840 and L_WO%16==0 and L_WO+F.NCT*1024<=L_YS0 and L_IC+15*1024<=163840
LDS_TOTAL=163840
S_X=4; S_WQ=8; S_WK=12; S_WV=16; S_WO=20; S_WR=24; S_WI=28; S_GW=32; S_OUT=36; S_WS=40
S_WAVE=44; S_RB=45; S_HG=46; S_TAG=47; S_TS=64; S_IT=70; S_QT=71; S_TBL=72
WS=f's[{S_WS}:{S_WS+3}]'
CSCALE=(20**-0.5)*1.4426950408889634
def f2u(x):
    import struct
    return struct.unpack('<I',struct.pack('<f',x))[0]
VWQ=240

class G(Kern):
    def __init__(s, opts):
        super().__init__(NAME,256,512,LDS_TOTAL,vgpr=256,sgpr=102); s.o=opts
    def ts(s, idx):
        if not s.o.get('ts'): return
        s(f's_memrealtime s[{S_TS}:{S_TS+1}]'); s('s_waitcnt lgkmcnt(0)'); s(f'v_writelane_b32 v255, s{S_TS}, {idx}')
    def tc(s, idx):
        if not s.o.get('ts'): return
        s(f's_memtime s[{S_TS}:{S_TS+1}]'); s('s_waitcnt lgkmcnt(0)'); s(f'v_writelane_b32 v255, s{S_TS}, {idx}')
    def ts_flush(s):
        if not s.o.get('ts'): return
        s(f's_lshl_b32 s{S_TS}, s2, 3'); s(f's_add_u32 s{S_TS}, s{S_TS}, s{S_WAVE}'); s(f's_lshl_b32 s{S_TS}, s{S_TS}, 6')
        s(f's_add_u32 s{S_TS}, s{S_TS}, {WS_TS}')
        s('v_mbcnt_lo_u32_b32 v254, -1, 0'); s('v_mbcnt_hi_u32_b32 v254, -1, v254')
        s('v_lshlrev_b32 v253, 2, v254'); s(f'v_add_u32 v253, s{S_TS}, v253')
        s('v_cmp_gt_u32 vcc, 16, v254')
        s(f's_and_saveexec_b64 s[{S_TS+2}:{S_TS+3}], vcc')
        s(f'buffer_store_dword v255, v253, {WS}, 0 offen')
        s(f's_mov_b64 exec, s[{S_TS+2}:{S_TS+3}]')

def prologue(k):
    k('s_cmp_ge_u32 s2, 256'); k(f's_cbranch_scc1 {NAME}_end')
    k('s_load_dwordx8 s[48:55], s[0:1], 0'); k('s_load_dwordx2 s[56:57], s[0:1], 32')
    k('s_load_dwordx4 s[60:63], s[0:1], 48'); k('s_load_dwordx4 s[64:67], s[0:1], 64'); k('s_load_dwordx2 s[68:69], s[0:1], 88')
    k('v_and_b32 v1, 63, v0'); k('v_lshrrev_b32 v2, 6, v0')
    k('s_lshr_b32 s74, s2, 3'); k('s_and_b32 s45, s74, 28'); k('s_and_b32 s75, s2, 3'); k('s_or_b32 s45, s45, s75')
    k('s_and_b32 s46, s2, 4'); k('s_and_b32 s75, s74, 3'); k('s_or_b32 s46, s46, s75')
    k('v_readfirstlane_b32 s44, v2')
    k(f's_getpc_b64 s[{S_TBL}:{S_TBL+1}]')
    k(f'{NAME}_pc:')
    k(f's_add_u32 s{S_TBL}, s{S_TBL}, {NAME}_tbl-{NAME}_pc'); k(f's_addc_u32 s{S_TBL+1}, s{S_TBL+1}, 0')
    k('s_waitcnt lgkmcnt(0)')
    for (sr,src,name) in [(S_X,48,'x'),(S_WQ,50,'wq'),(S_WK,52,'wk'),(S_WV,54,'wv'),(S_WO,56,'wo'),(S_WR,60,'wr'),(S_WI,62,'wi'),(S_GW,64,'gw'),(S_OUT,66,'out'),(S_WS,68,'ws')]:
        k(f's_mov_b32 s{sr}, s{src}'); k(f's_mov_b32 s{sr+1}, s{src+1}')
        k(f's_mov_b32 s{sr+2}, {WS_SIZE if name=="ws" else SIZES[name]}'); k(f's_mov_b32 s{sr+3}, 0x20000')
    k(f's_load_dword s{S_TAG}, s[{S_WS}:{S_WS+1}], {WS_EPOCH}')
    if k.o.get('ts'): k('v_mov_b32 v255, 0')
    k.ts(0)

L_SCR=L_SCRc
VXA=236
S_KAP=80
S_COL=89
S_XW=85; S_WW=86
def setup_dma(k):
    k('s_lshr_b32 s48, s2, 3'); k('s_lshr_b32 s49, s48, 3'); k('s_lshl_b32 s49, s49, 6'); k('s_and_b32 s50, s2, 7'); k('s_lshl_b32 s50, s50, 3'); k('s_add_u32 s49, s49, s50'); k('s_and_b32 s48, s48, 7'); k(f's_add_u32 s{S_COL}, s49, s48')
    k(f's_lshr_b32 s48, s{S_RB}, 3'); k(f's_add_u32 s48, s48, s{S_HG}')
    k('s_mul_i32 s49, s48, 52'); k('s_lshr_b32 s49, s49, 8'); k('s_mul_i32 s49, s49, 5'); k(f's_sub_u32 s{S_KAP}, s48, s49')
    for i in range(1,5):
        k(f's_add_u32 s{S_KAP+i}, s{S_KAP+i-1}, 1'); k(f's_cmp_eq_u32 s{S_KAP+i}, 5'); k(f's_cselect_b32 s{S_KAP+i}, 0, s{S_KAP+i}')
    k(f's_mul_i32 s{S_XW}, s{S_WAVE}, {136*16}'); k(f's_mul_i32 s{S_WW}, s{S_WAVE}, 3072')
    magic=(2**32+16)//17
    for c in range(1088+64): assert (c*magic)>>32==c//17
    k(f's_mov_b32 s48, {magic}'); k(f's_mul_i32 s49, s{S_RB}, {64*1280}'); k(f's_mul_i32 s50, s{S_WAVE}, 136')
    for m in range(3):
        k(f's_add_u32 s51, s50, {64*m}'); k('v_add_u32 v3, s51, v1')
        k('v_mul_hi_u32 v4, v3, s48'); k('v_mul_u32_u24 v5, 17, v4'); k('v_sub_u32 v5, v3, v5'); k('v_min_u32 v5, 15, v5')
        k('v_mul_u32_u24 v4, 1280, v4'); k('v_lshlrev_b32 v5, 4, v5'); k(f'v_add3_u32 v{VXA+m}, v4, v5, s49')
    magic=(2**32+11)//12
    for c in range(1536): assert (c*magic)>>32==c//12
    k(f's_mov_b32 s48, {magic}'); k(f's_mul_i32 s49, s{S_HG}, 160'); k('s_and_b32 s49, s49, 0xffffffc0'); k(f's_mul_i32 s50, s{S_WAVE}, 192')
    for m in range(3):
        k(f's_add_u32 s51, s50, {64*m}'); k('v_add_u32 v3, s51, v1')
        k('v_mul_hi_u32 v4, v3, s48'); k('v_mul_u32_u24 v5, 12, v4'); k('v_sub_u32 v5, v3, v5')
        k('v_mul_u32_u24 v4, 1280, v4'); k('v_lshlrev_b32 v5, 4, v5'); k(f'v_add3_u32 v{VWQ+m}, v4, v5, s49')
def op_x(k, pos, kv, m):
    def f():
        k(f's_add_u32 m0, s{S_XW}, {xpos(kv,pos)+1024*m}'); k(f's_lshl_b32 s52, s{S_KAP+pos}, 8')
        if m==2: k('s_mov_b64 exec, 0xff')
        k(f'buffer_load_dwordx4 v{VXA+m}, s[{S_X}:{S_X+3}], s52 offen lds')
        if m==2: k('s_mov_b64 exec, -1')
    return f
def op_w(k, pos, kv, m):
    def f():
        k(f's_mul_i32 s52, s{S_KAP+pos}, {128*1280}'); k(f's_add_u32 m0, s{S_WW}, {wpos(kv,pos)+1024*m}'); k('s_nop 0')
        k(f'buffer_load_dwordx4 v{VWQ+m}, s[{S_WQ}:{S_WQ+3}], s52 offen lds')
    return f
def ops_x(k,pos,kv): return [(f'X{pos}',op_x(k,pos,kv,m)) for m in range(3)]
def ops_w(k,pos,kv): return [(f'W{pos}',op_w(k,pos,kv,m)) for m in range(3)]
def dma_xchunk(k,pos,kv):
    for t,f in ops_x(k,pos,kv): f()
def dma_wchunk(k,pos,kv):
    for t,f in ops_w(k,pos,kv): f()
class VM:
    def __init__(s): s.L=[]
    def issue(s,tag,f,n=1):
        f(); s.L+= [tag]*n
    def younger(s,tags):
        last=max(i for i,t in enumerate(s.L) if t in tags)
        return len(s.L)-1-last
def dma_wo(k, starts, limit, step=8):
    k('s_mov_b32 s48, 0xCCCCCCCD'); k(f's_mul_i32 s49, s{S_HG}, 160')
    for st in starts:
        lab=k.label('wo')
        k(f's_add_u32 s50, s{S_WAVE}, {st}')
        if st+step>limit:
            k(f's_min_u32 s50, s50, {limit-1}')
        k('s_mul_i32 s51, s50, 41'); k('s_lshr_b32 s51, s51, 10')
        k('s_mul_i32 s52, s51, 25'); k('s_sub_u32 s52, s50, s52')
        k('s_lshl_b32 s53, s52, 6'); k('v_add_u32 v3, s53, v1')
        k('v_mul_hi_u32 v4, v3, s48'); k('v_lshrrev_b32 v4, 3, v4'); k('v_mul_u32_u24 v5, 10, v4'); k('v_sub_u32 v5, v3, v5')
        k('v_mul_u32_u24 v4, 5120, v4'); k('v_lshlrev_b32 v5, 4, v5'); k('s_mul_i32 s53, s51, 1280'); k('s_add_u32 s53, s53, s49'); k('v_add3_u32 v4, v4, v5, s53')
        k(f's_mul_i32 s53, s51, {WOSUB}'); k('s_and_b32 s54, s51, 1'); k('s_lshl_b32 s54, s54, 5'); k('s_add_u32 s53, s53, s54'); k('s_lshr_b32 s54, s51, 1'); k('s_lshl_b32 s54, s54, 7'); k('s_add_u32 s53, s53, s54')
        k('s_lshl_b32 s52, s52, 10'); k('s_add_u32 s53, s53, s52'); k(f's_add_u32 m0, s53, {L_WO}'); k('s_nop 0')
        k(f'buffer_load_dwordx4 v4, s[{S_WO}:{S_WO+3}], 0 offen lds')
for n in range(100): assert (n*41)>>10==n//25

def dma_lin(k, srd, per_wave_chunks, ldsbase):
    n=(per_wave_chunks+63)//64
    k(f's_mul_i32 s51, s{S_WAVE}, {per_wave_chunks*16}'); k('v_lshlrev_b32 v3, 4, v1'); k('v_add_u32 v3, s51, v3')
    for m in range(n):
        rem=per_wave_chunks-64*m
        k(f's_add_u32 m0, s51, {ldsbase+1024*m}')
        if rem<64: k(f's_mov_b64 exec, {hex((1<<rem)-1)}')
        else: k('s_nop 0')
        k(f'buffer_load_dwordx4 v3, s[{srd}:{srd+3}], 0 offen offset:{1024*m} lds' if False else f'buffer_load_dwordx4 v3, s[{srd}:{srd+3}], 0 offen lds')
        if m+1<n: k('v_add_u32 v3, 1024, v3')
    k('s_mov_b64 exec, -1')
    return n

def wave_max32(k, v):
    for sh in (1,2,4,8):
        k('s_nop 1'); k(f'v_max_f32_dpp v{v}, v{v}, v{v} row_shr:{sh} row_mask:0xf bank_mask:0xf')
    k('s_nop 1'); k(f'v_max_f32_dpp v{v}, v{v}, v{v} row_bcast:15 row_mask:0xa bank_mask:0xf')

def poll_flags(k, off, nlanes, per_lane_dwords=1, vtmp=4, sleep=1):
    lab=k.label('poll'); done=k.label('polld')
    k('s_mov_b64 s[56:57], exec')
    if nlanes<64: k(f's_mov_b64 exec, {hex((1<<nlanes)-1)}')
    k(f'v_lshlrev_b32 v{vtmp}, {2+int(math.log2(per_lane_dwords))}, v1')
    k(f'{lab}:')
    if per_lane_dwords==1:
        k(f'buffer_load_dword v{vtmp+1}, v{vtmp}, {WS}, {off} offen sc1'); k('s_waitcnt vmcnt(0)')
        k(f'v_cmp_ne_u32 vcc, s{S_TAG}, v{vtmp+1}')
    else:
        assert (vtmp+2)%2==0
        k(f'buffer_load_dwordx4 v[{vtmp+2}:{vtmp+5}], v{vtmp}, {WS}, {off} offen sc1'); k('s_waitcnt vmcnt(0)')
        for j in range(4): k(f'v_xor_b32 v{vtmp+2+j}, s{S_TAG}, v{vtmp+2+j}')
        k(f'v_or_b32 v{vtmp+2}, v{vtmp+2}, v{vtmp+3}'); k(f'v_or_b32 v{vtmp+4}, v{vtmp+4}, v{vtmp+5}'); k(f'v_or_b32 v{vtmp+2}, v{vtmp+2}, v{vtmp+4}')
        k(f'v_cmp_ne_u32 vcc, 0, v{vtmp+2}')
    k(f's_cbranch_vccz {done}'); k(f's_sleep {sleep}'); k(f's_branch {lab}')
    k(f'{done}:'); k('s_mov_b64 exec, s[56:57]')
set_flag=fft2.set_flag

def kv_proj(k, vm):
    k.c('==== K/V projection')
    k(f's_and_b32 s48, s{S_WAVE}, 1'); k(f's_bfe_u32 s49, s{S_WAVE}, 0x10001'); k(f's_lshr_b32 s50, s{S_WAVE}, 2')
    k('v_and_b32 v3, 31, v1'); k('v_lshrrev_b32 v4, 5, v1')
    k('s_lshl_b32 s51, s48, 5'); k('v_add_u32 v5, s51, v3'); k(f'v_mul_u32_u24 v5, {XS}, v5')
    k('v_lshlrev_b32 v6, 4, v4'); k('s_lshl_b32 s51, s50, 7'); k('v_add3_u32 v12, v5, v6, s51')
    k('v_and_b32 v5, 15, v1'); k('v_lshrrev_b32 v6, 2, v5'); k('v_lshl_add_u32 v6, v4, 3, v6'); k('v_mul_u32_u24 v6, 40, v6')
    k('v_and_b32 v5, 3, v5'); k('v_lshlrev_b32 v5, 3, v5'); k('v_bfe_u32 v7, v1, 4, 1'); k('v_lshlrev_b32 v7, 5, v7'); k('v_add3_u32 v6, v6, v5, v7')
    k(f's_mul_i32 s51, s49, 25600'); k('s_mul_i32 s52, s50, 2560'); k('s_add_u32 s51, s51, s52'); k(f's_add_u32 s51, s51, {L_WKV}')
    k('v_add_u32 v13, s51, v6')
    ACC=16; XF=32; WF=48
    labV=k.label('V'); labJ=k.label('J')
    k('s_cmp_eq_u32 s49, 1'); k(f's_cbranch_scc1 {labV}')
    for isV in (0,1):
        if isV: k(f'{labV}:')
        for pos in range(5):
            ny=vm.younger([f'X{pos}','WK','WV','G'])
            k(f"s_waitcnt vmcnt({ny})"); k('s_barrier')
            k(f's_mul_i32 s51, s{S_KAP+pos}, 5120'); k('v_add_u32 v14, s51, v13')
            if pos: k(f'v_add_u32 v12, {XCH}, v12')
            for t in range(4):
                k(f'ds_read_b128 v[{XF+4*t}:{XF+4*t+3}], v12 offset:{32*t}')
                k(f'ds_read_b64_tr_b16 v[{WF+4*t}:{WF+4*t+1}], v14 offset:{640*t}')
                k(f'ds_read_b64_tr_b16 v[{WF+4*t+2}:{WF+4*t+3}], v14 offset:{640*t+160}')
            for t in range(4):
                k(f's_waitcnt lgkmcnt({3*(3-t)})')
                c='0' if (pos==0 and t==0) else f'v[{ACC}:{ACC+15}]'
                X=f'v[{XF+4*t}:{XF+4*t+3}]'; W=f'v[{WF+4*t}:{WF+4*t+3}]'
                k(f'v_mfma_f32_32x32x16_bf16 v[{ACC}:{ACC+15}], {X if isV else W}, {W if isV else X}, {c}')
        if not isV: k(f's_branch {labJ}')
    k(f'{labJ}:')
    k('s_barrier')
    for p in range(2): dma_wchunk(k,p,True)
    k(f's_and_b32 s51, s{S_WAVE}, 3'); k(f's_lshl_b32 s51, s51, 12'); k(f's_add_u32 s51, s51, {L_SCR}')
    k('v_lshlrev_b32 v5, 4, v1'); k('v_add_u32 v5, s51, v5')
    labR=k.label('R'); labE=k.label('E')
    k('s_cmp_eq_u32 s50, 0'); k(f's_cbranch_scc1 {labR}')
    for r in range(4): k(f'ds_write_b128 v5, v[{ACC+4*r}:{ACC+4*r+3}] offset:{1024*r}')
    k('s_waitcnt lgkmcnt(0)'); k('s_barrier'); k(f's_branch {labE}')
    k(f'{labR}:')
    k('s_barrier')
    for r in range(4): k(f'ds_read_b128 v[{XF+4*r}:{XF+4*r+3}], v5 offset:{1024*r}')
    k('s_waitcnt lgkmcnt(0)')
    for r in range(16): k(f'v_add_f32 v{ACC+r}, v{ACC+r}, v{XF+r}')
    k(f's_lshl_b32 s51, s{S_RB}, 1'); k('s_add_u32 s51, s51, s48'); k('s_lshl_b32 s52, s51, 12'); k(f's_add_u32 s52, s52, {WS_KV}')
    labFV=k.label('FV')
    k('s_cmp_eq_u32 s49, 1'); k(f's_cbranch_scc1 {labFV}')
    for j in range(6): k(f'v_cvt_pk_bf16_f32 v{48+j}, v{ACC+2*j}, v{ACC+2*j+1}')
    k('v_cmp_gt_u32 vcc, 32, v1'); k('s_nop 1')
    k('v_cndmask_b32 v52, 0, v52, vcc'); k('v_cndmask_b32 v53, 0, v53, vcc')
    k('v_lshlrev_b32 v6, 4, v1'); k('v_lshlrev_b32 v7, 3, v1')
    k(f'buffer_store_dwordx4 v[48:51], v6, {WS}, s52 offen sc1')
    k(f'buffer_store_dwordx2 v[52:53], v7, {WS}, s52 offen offset:3072 sc1')
    k(f'v_mul_f32 v54, v{ACC}, v{ACC}')
    for r in range(1,8): k(f'v_fmac_f32 v54, v{ACC+r}, v{ACC+r}')
    k(f'v_mul_f32 v55, v{ACC+8}, v{ACC+8}')
    for r in range(9,12): k(f'v_fmac_f32 v55, v{ACC+r}, v{ACC+r}')
    k('v_cndmask_b32 v55, 0, v55, vcc'); k('v_add_f32 v54, v54, v55'); k('v_mov_b32 v55, v54'); k('s_nop 1')
    k('v_permlane32_swap_b32 v54, v55'); k('s_nop 1'); k('v_add_f32 v54, v54, v55')
    wave_max32(k,54)
    k('s_nop 0'); k('v_readlane_b32 s53, v54, 31')
    k(f's_lshl_b32 s55, s51, 3'); k(f's_add_u32 s55, s55, {WS_KM}')
    k('v_mov_b32 v57, s53'); k('v_mov_b32 v7, 0'); k('s_mov_b64 exec, 1')
    k(f'buffer_store_dword v57, v7, {WS}, s55 offen sc1'); k('s_mov_b64 exec, -1')
    k(f's_branch {labE}')
    k(f'{labFV}:')
    for j in range(8): k(f'v_cvt_pk_bf16_f32 v{48+j}, v{ACC+2*j}, v{ACC+2*j+1}')
    k('v_and_b32 v7, 31, v1'); k('v_cmp_eq_u32 vcc, 20, v7'); k('v_cmp_lt_u32 s[58:59], 20, v7'); k('v_mov_b32 v6, 0x3f803f80')
    for j in range(8):
        k(f'v_cndmask_b32 v{48+j}, v{48+j}, v6, vcc'); k(f'v_cndmask_b32 v{48+j}, v{48+j}, 0, s[58:59]')
    k('v_lshlrev_b32 v6, 4, v1')
    k(f'buffer_store_dwordx4 v[48:51], v6, {WS}, s52 offen offset:1024 sc1')
    k(f'buffer_store_dwordx4 v[52:55], v6, {WS}, s52 offen offset:2048 sc1')
    k(f'v_and_b32 v56, 0x7fffffff, v{ACC}')
    for r in range(1,16): k(f'v_max_f32 v56, v56, abs(v{ACC+r})')
    k('v_cmp_gt_u32 vcc, 20, v7'); k('s_nop 1'); k('v_cndmask_b32 v56, 0, v56, vcc')
    k('v_mov_b32 v57, v56'); k('s_nop 1'); k('v_permlane32_swap_b32 v56, v57'); k('s_nop 1'); k('v_max_f32 v56, v56, v57')
    wave_max32(k,56)
    k('s_nop 0'); k('v_readlane_b32 s53, v56, 31')
    k(f's_lshl_b32 s55, s51, 3'); k(f's_add_u32 s55, s55, {WS_KM+4}')
    k('v_mov_b32 v57, s53'); k('v_mov_b32 v7, 0'); k('s_mov_b64 exec, 1')
    k(f'buffer_store_dword v57, v7, {WS}, s55 offen sc1'); k('s_mov_b64 exec, -1')
    k(f'{labE}:')

QACC=16; QGA=32; QXF=48; QWF=64; QGF=176
def q_proj_setup(k):
    k(f's_and_b32 s48, s{S_WAVE}, 1'); k(f's_lshr_b32 s49, s{S_WAVE}, 1')
    k('v_and_b32 v3, 31, v1'); k('v_lshrrev_b32 v4, 5, v1')
    k('s_lshl_b32 s51, s48, 5'); k('v_add_u32 v5, s51, v3'); k(f'v_mul_u32_u24 v5, {XS}, v5'); k('v_lshl_add_u32 v8, v4, 4, v5')
    k('v_and_b32 v5, 15, v1'); k('v_lshrrev_b32 v6, 2, v5'); k('v_lshl_add_u32 v6, v4, 3, v6'); k('v_mul_u32_u24 v6, 192, v6')
    k('v_and_b32 v5, 3, v5'); k('v_lshlrev_b32 v5, 3, v5'); k('v_bfe_u32 v7, v1, 4, 1'); k('v_lshlrev_b32 v7, 5, v7'); k('v_add3_u32 v6, v6, v5, v7')
    k('s_mul_i32 s51, s49, 40'); k(f's_and_b32 s52, s{S_HG}, 1'); k('s_lshl_b32 s52, s52, 5'); k('s_add_u32 s51, s51, s52'); k('v_add_u32 v9, s51, v6')
    k('s_lshl_b32 s51, s49, 5'); k(f's_add_u32 s51, s51, {L_GW}'); k('v_lshl_add_u32 v14, v4, 4, s51')
    k('s_lshl_b32 s60, s49, 5'); k('v_add_u32 v10, s60, v8')
def q_proj_all(k, kv, vm, sched, first_tags, need, first_hook=None, post={}):
    q_proj_setup(k)
    def rd(s):
        p,tt=s>>3,s&7; b=s&3
        if tt==0:
            k(f'v_add_u32 v12, {xpos(kv,p)}, v8'); k(f'v_add_u32 v13, {wpos(kv,p)}, v9')
        k(f'ds_read_b128 v[{QXF+4*b}:{QXF+4*b+3}], v12 offset:{32*tt}')
        k(f'ds_read_b64_tr_b16 v[{QWF+4*b}:{QWF+4*b+1}], v13 offset:{3072*tt}')
        k(f'ds_read_b64_tr_b16 v[{QWF+4*b+2}:{QWF+4*b+3}], v13 offset:{3072*tt+768}')
    def rdg(p):
        g=QGF+16*(p&1)
        k(f's_lshl_b32 s51, s{S_KAP+p}, 8'); k('v_add_u32 v15, s51, v14'); k(f'v_add_u32 v11, {xpos(kv,p)}, v10')
        for i in range(2):
            k(f'ds_read_b128 v[{g+4*i}:{g+4*i+3}], v15 offset:{128*i}')
            k(f'ds_read_b128 v[{g+8+4*i}:{g+8+4*i+3}], v11 offset:{128*i}')
    k(f's_waitcnt vmcnt({vm.younger(first_tags)})'); k('s_barrier')
    if first_hook: first_hook()
    k.ts(3)
    if k.o.get('stop1'): k.tc(4)
    rd(0); rdg(0); rd(1); rd(2)
    for s in range(40):
        p,tt=s>>3,s&7
        if tt==5 and p<4:
            if k.o.get('stop1'): k.tc(5+2*p)
            k(f's_waitcnt vmcnt({vm.younger(need[p+1])}) lgkmcnt(0)')
            if k.o.get('stop1') and p==1: k.tc(15)
            k('s_barrier')
            if k.o.get('stop1'): k.tc(6+2*p)
            if p in post: post[p]()
        if s+3<40:
            rd(s+3)
            if (s+3)&7==0: rdg((s+3)>>3)
        if tt==0: k('s_waitcnt lgkmcnt(13)')
        elif tt<=4: k('s_waitcnt lgkmcnt(9)')
        elif p==4: k(f's_waitcnt lgkmcnt({3*(7-tt)})')
        b=s&3
        c='0' if s==0 else f'v[{QACC}:{QACC+15}]'
        k(f'v_mfma_f32_32x32x16_bf16 v[{QACC}:{QACC+15}], v[{QWF+4*b}:{QWF+4*b+3}], v[{QXF+4*b}:{QXF+4*b+3}], {c}')
        if tt in (2,4):
            i=(tt-2)>>1; g=QGF+16*(p&1)
            c='0' if (p==0 and i==0) else f'v[{QGA}:{QGA+15}]'
            k(f'v_mfma_f32_32x32x16_bf16 v[{QGA}:{QGA+15}], v[{g+4*i}:{g+4*i+3}], v[{g+8+4*i}:{g+8+4*i+3}], {c}')
        for (tag,fn,n) in sched.get(s,[]): vm.issue(tag,fn,n)

def spread(ops, steps):
    d={}
    for i,(tag,fn) in enumerate(ops):
        st=steps[min(i*len(steps)//len(ops), len(steps)-1)]
        d.setdefault(st,[]).append((tag,fn,1))
    return d
def merge(*ds):
    o={}
    for d in ds:
        for kk,v in d.items(): o.setdefault(kk,[]).extend(v)
    return o

def q_finalize(k):
    ACC=QACC
    k('s_nop 15')
    k(f's_mov_b32 s50, {f2u(CSCALE):#x}')
    for r in range(12): k(f'v_mul_f32 v{ACC+r}, s50, v{ACC+r}')
    for j in range(6): k(f'v_cvt_pk_bf16_f32 v{48+j}, v{ACC+2*j}, v{ACC+2*j+1}')
    k('v_cmp_gt_u32 vcc, 32, v1')
    k(f'v_mul_f32 v54, v{ACC}, v{ACC}')
    for r in range(1,8): k(f'v_fmac_f32 v54, v{ACC+r}, v{ACC+r}')
    k(f'v_mul_f32 v55, v{ACC+8}, v{ACC+8}')
    for r in range(9,12): k(f'v_fmac_f32 v55, v{ACC+r}, v{ACC+r}')
    k('v_cndmask_b32 v55, 0, v55, vcc')
    k('v_cndmask_b32 v52, 0, v52, vcc'); k('v_cndmask_b32 v53, 0, v53, vcc')
    k('v_add_f32 v54, v54, v55'); k('v_mov_b32 v55, v54'); k('s_nop 1')
    k('v_permlane32_swap_b32 v54, v55'); k('s_nop 1'); k('v_add_f32 v54, v54, v55')
    wave_max32(k,54)

K1=24; K2=56; VV=72; SS=136; PP=168; OO=176; Q1=208; Q2=216
VOA=220; VQ1A=221; VQ2A=222; VOB=223; VQ2S=23
def load_kv(k):
    k('v_lshlrev_b32 v3, 4, v1'); k('v_lshlrev_b32 v4, 3, v1')
    k(f's_lshl_b32 s48, s{S_WAVE}, 15'); k(f's_add_u32 s48, s48, {WS_KV}')
    for t in range(8):
        k(f'buffer_load_dwordx4 v[{K1+4*t}:{K1+4*t+3}], v3, {WS}, s48 offen sc1')
        k(f'buffer_load_dwordx2 v[{K2+2*t}:{K2+2*t+1}], v4, {WS}, s48 offen offset:3072 sc1')
        k(f'buffer_load_dwordx4 v[{VV+8*t}:{VV+8*t+3}], v3, {WS}, s48 offen offset:1024 sc1')
        k(f'buffer_load_dwordx4 v[{VV+8*t+4}:{VV+8*t+7}], v3, {WS}, s48 offen offset:2048 sc1')
        k('s_add_u32 s48, s48, 4096')
def attn_addr(k):
    k('v_lshlrev_b32 v3, 4, v1'); k(f'v_add_u32 v{VQ1A}, {L_Q1}, v3'); k('v_lshlrev_b32 v4, 3, v1'); k(f'v_add_u32 v{VQ2A}, {L_Q2}, v4')
    k('v_cmp_gt_u32 vcc, 32, v1'); k(f'v_mov_b32 v3, {L_ZERO}'); k('v_mov_b32 v4, 0x100')
    k(f'v_cndmask_b32 v{VQ2A}, v3, v{VQ2A}, vcc'); k(f'v_cndmask_b32 v{VQ2S}, 0, v4, vcc')
    k('v_and_b32 v8, 31, v1'); k('v_lshrrev_b32 v9, 5, v1'); k('v_lshlrev_b32 v8, 3, v8'); k('v_lshl_add_u32 v8, v9, 10, v8'); k(f'v_add_u32 v{VOB}, {L_O}, v8')
def read_q(k, par):
    k(f's_lshl_b32 s49, s{S_QT}, 10'); k(f'v_add_u32 v3, s49, v{VQ1A}'); k(f'v_mad_u32_u24 v4, s{S_QT}, v{VQ2S}, v{VQ2A}')
    k(f'ds_read_b128 v[{Q1+4*par}:{Q1+4*par+3}], v3'); k(f'ds_read_b64 v[{Q2+2*par}:{Q2+2*par+1}], v4')
def flush_O(k, O):
    Tm=224; idx=0
    for g in range(3):
        for i in range(4):
            k(f'v_cvt_f64_f32 v[{Tm+2*idx}:{Tm+2*idx+1}], v{O+4*g+i}'); idx+=1
    idx=0
    for g in range(3):
        for i in range(4):
            if g==2 and i==1: k('s_mov_b32 exec_hi, 0')
            k(f'ds_add_f64 v{VOA}, v[{Tm+2*idx}:{Tm+2*idx+1}] offset:{(8*g+i)*256}'); idx+=1
    k('s_mov_b64 exec, -1')
def attn_qtile(k, par, first):
    S=lambda b: SS+16*b
    O=OO+16*par; Oprev=OO+16*(1-par)
    q1=f'v[{Q1+4*par}:{Q1+4*par+3}]'; q2=f'v[{Q2+2*par}:{Q2+2*par+1}]'
    def smfma(t, half):
        b=t&1
        if half==0: k(f'v_mfma_f32_32x32x16_bf16 v[{S(b)}:{S(b)+15}], v[{K1+4*t}:{K1+4*t+3}], {q1}, 0')
        else: k(f'v_mfma_f32_32x32x8_bf16 v[{S(b)}:{S(b)+15}], v[{K2+2*t}:{K2+2*t+1}], {q2}, v[{S(b)}:{S(b)+15}]')
    def pv(t, s):
        c='0' if (t==0 and s==0) else f'v[{O}:{O+15}]'
        k(f'v_mfma_f32_32x32x16_bf16 v[{O}:{O+15}], v[{VV+8*t+4*s}:{VV+8*t+4*s+3}], v[{PP+4*s}:{PP+4*s+3}], {c}')
    k('s_waitcnt lgkmcnt(0)')
    smfma(0,0); smfma(0,1)
    if not first: flush_O(k, Oprev)
    k(f's_add_u32 s48, s{S_QT}, 1'); k('s_and_b32 s48, s48, 7')
    k('s_lshl_b32 s49, s48, 10'); k(f'v_add_u32 v3, s49, v{VQ1A}')
    k(f'v_mad_u32_u24 v4, s48, v{VQ2S}, v{VQ2A}')
    k(f'ds_read_b128 v[{Q1+4*(1-par)}:{Q1+4*(1-par)+3}], v3')
    k(f'ds_read_b64 v[{Q2+2*(1-par)}:{Q2+2*(1-par)+1}], v4')
    k(f's_mul_i32 s49, s{S_QT}, {OT}'); k(f'v_add_u32 v{VOA}, s49, v{VOB}')
    if first: k('s_nop 3')
    for t in range(8):
        b=t&1; s0=S(b); sp=S(1-b)
        E=lambda r: k(f'v_exp_f32 v{s0+r}, v{s0+r}')
        C=lambda j: k(f'v_cvt_pk_bf16_f32 v{PP+j}, v{s0+2*j}, v{s0+2*j+1}')
        Cp=lambda j: k(f'v_cvt_pk_bf16_f32 v{PP+j}, v{sp+2*j}, v{sp+2*j+1}')
        E(0); E(1)
        if t>0: Cp(6)
        E(2)
        if t>0: Cp(7)
        if t<7: smfma(t+1,0)
        E(3); E(4); C(0); E(5)
        if t>0: pv(t-1,1)
        E(6); C(1); E(7); E(8)
        if t<7: smfma(t+1,1)
        C(2); E(9); E(10); C(3); E(11); E(12)
        pv(t,0)
        C(4); E(13); E(14); C(5); E(15)
    s0=S(1)
    k('s_nop 0')
    k(f'v_cvt_pk_bf16_f32 v{PP+6}, v{s0+12}, v{s0+13}'); k(f'v_cvt_pk_bf16_f32 v{PP+7}, v{s0+14}, v{s0+15}')
    k('s_nop 1')
    pv(7,1)
    k(f's_mov_b32 s{S_QT}, s48')
def attn_pairs(k, npairs):
    read_q(k,0)
    attn_qtile(k,0,True); attn_qtile(k,1,False)
    if npairs>1:
        k(f's_mov_b32 s{S_IT}, 1')
        lp=k.label('attn'); k(f'{lp}:')
        attn_qtile(k,0,False); attn_qtile(k,1,False)
        k(f's_add_u32 s{S_IT}, s{S_IT}, 1'); k(f's_cmp_lt_u32 s{S_IT}, {npairs}'); k(f's_cbranch_scc1 {lp}')
    k('s_nop 15')
    flush_O(k,OO+16)

def early_phase(k, kv, vm):
    L_WR = 69632 if kv else 83968
    ne=vm.younger(['E'])
    E=k.o.get('tearly')
    if E: k.tc(4)
    k(f's_waitcnt vmcnt({ne})')
    if E: k.tc(5)
    k('s_barrier')
    if E: k.tc(6)
    F.row_consts_read(k,L_RC)
    F.w_read_lds(k,L_WR)
    if E: k.tc(7)
    F.row_compute_regs(k,L_RST)
    if E: k.tc(8)
    F.row_write_ex(k,L_RST)
    k('s_waitcnt lgkmcnt(0)')
    if E: k.tc(10)
    k('s_barrier')
    if E: k.tc(11)
    def st(): F.xw_store2(k,L_RST)
    vm.issue('XS',st,4)
    if E:
        k.tc(12); k.ts_flush(); k('s_endpgm')

def lds_count_last(k, cnt_off, target, do):
    lab=k.label('cl')
    k(f'v_mov_b32 v5, {L_CNT+cnt_off}'); k('v_mov_b32 v6, 1'); k('s_mov_b64 s[58:59], exec'); k('s_mov_b64 exec, 1')
    k('ds_add_rtn_u32 v7, v5, v6'); k('s_waitcnt lgkmcnt(0)'); k('s_mov_b64 exec, s[58:59]')
    k('v_readfirstlane_b32 s55, v7'); k(f's_cmp_lg_u32 s55, {target-1}'); k(f's_cbranch_scc1 {lab}')
    do()
    k(f'{lab}:')

def build(opts):
    k=G(opts)
    prologue(k)
    isKV=k.label('KV'); join=k.label('JQ')
    setup_dma(k)
    k(f's_cmp_eq_u32 s{S_HG}, 0'); k(f's_cbranch_scc1 {isKV}')
    def fx_hook():
        labP=k.label('FX'); k(f's_cmp_lg_u32 s{S_WAVE}, 0'); k(f's_cbranch_scc1 {labP}')
        k('s_mov_b32 s74, s2'); set_flag(k,WS_FX,74); k.ts(15); k(f'{labP}:')
    vm=VM()
    vm.issue('E',lambda: F.early_issue(k,L_RST,L_RC,83968),6)
    vm.issue('G',lambda: dma_lin(k,S_GW,10,L_GW))
    for p in range(2):
        for t,f in ops_x(k,p,False)+ops_w(k,p,False): vm.issue(t,f)
    k('s_waitcnt lgkmcnt(0)'); k(f's_add_u32 s{S_TAG}, s{S_TAG}, 1')
    k.ts(1)
    early_phase(k,False,vm)
    k.ts(2)
    P=lambda p: ops_x(k,p,False)+ops_w(k,p,False)
    sched=merge(spread(P(2),[0,1,2,3,4]), spread(P(3),[5,6,7,8,9,10]), spread(P(4),[13,14,15,16,17,18]))
    need=[None]+[(f'X{p}',f'W{p}') for p in range(1,5)]
    q_proj_all(k,False,vm,sched,('X0','W0'),need,post={1:fx_hook})
    k(f's_branch {join}')
    k(f'{isKV}:')
    vm=VM()
    vm.issue('E',lambda: F.early_issue(k,L_RST,L_RC,69632),6)
    vm.issue('G',lambda: dma_lin(k,S_GW,10,L_GW))
    vm.issue('WK',lambda: dma_lin(k,S_WK,200,L_WKV),4); vm.issue('WV',lambda: dma_lin(k,S_WV,200,L_WKV+25600),4)
    for p in range(4):
        for t,f in ops_x(k,p,True): vm.issue(t,f)
    k('s_waitcnt lgkmcnt(0)'); k(f's_add_u32 s{S_TAG}, s{S_TAG}, 1')
    k.ts(1)
    early_phase(k,True,vm)
    for t,f in ops_x(k,4,True): vm.issue(t,f)
    kv_proj(k,vm)
    k.ts(2)
    def hook():
        labP=k.label('P')
        k(f's_cmp_lg_u32 s{S_WAVE}, 0'); k(f's_cbranch_scc1 {labP}')
        k(f's_lshl_b32 s54, s{S_RB}, 2'); k(f's_add_u32 s54, s54, {WS_FKV}')
        k(f'v_mov_b32 v5, s{S_TAG}'); k('v_lshlrev_b32 v6, 7, v1'); k('s_mov_b64 exec, 0xff')
        k(f'buffer_store_dword v5, v6, {WS}, s54 offen sc1'); k('s_mov_b64 exec, -1')
        k(f'{labP}:')
        fx_hook()
    vm=VM(); vm.L+=['W0']*3+['W1']*3+['ST']
    Wp=lambda p: ops_w(k,p,True)
    sched=merge(spread(Wp(2),[0,1,2]), spread(Wp(3),[5,6,7]), spread(Wp(4),[13,14,15]))
    need=[None]+[(f'W{p}',) for p in range(1,5)]
    q_proj_all(k,True,vm,sched,('ST',),need,first_hook=hook)
    k(f'{join}:')
    q_finalize(k)
    k('s_nop 1'); k('v_readlane_b32 s50, v54, 31')
    if opts.get('stop1'): k.tc(13)
    k('s_barrier')
    if opts.get('stop1'):
        k.tc(14); k.ts_flush(); k(f'{NAME}_end:'); k('s_endpgm'); k.L.append(T.table_text(f'{NAME}_tbl')); return k
    k.ts(4)
    if opts.get('stop1'):
        k.ts_flush(); k(f'{NAME}_end:'); k('s_endpgm'); k.L.append(T.table_text(f'{NAME}_tbl')); return k
    k(f's_lshl_b32 s51, s{S_WAVE}, 10'); k('v_lshlrev_b32 v3, 4, v1'); k(f'v_add_u32 v3, s51, v3'); k(f'ds_write_b128 v3, v[48:51] offset:{L_Q1}')
    k(f's_lshl_b32 s51, s{S_WAVE}, 8'); k('v_lshlrev_b32 v4, 3, v1'); k(f'v_add_u32 v4, s51, v4')
    k('v_cmp_gt_u32 vcc, 32, v1'); k(f'v_mov_b32 v7, {L_ZERO-L_Q2}'); k('s_nop 0'); k('v_cndmask_b32 v4, v7, v4, vcc'); k(f'ds_write_b64 v4, v[52:53] offset:{L_Q2}')
    k(f's_lshl_b32 s51, s{S_WAVE}, 2'); k(f's_add_u32 s51, s51, {L_M}'); k('v_mov_b32 v5, s51'); k('v_mov_b32 v6, s50'); k('ds_write_b32 v5, v6')
    k(f's_lshr_b32 s51, s{S_WAVE}, 1'); k('s_lshl_b32 s51, s51, 8'); k(f's_and_b32 s52, s{S_WAVE}, 1'); k('s_lshl_b32 s52, s52, 7'); k('s_add_u32 s51, s51, s52'); k(f's_add_u32 s51, s51, {L_Z}')
    k('v_lshlrev_b32 v5, 2, v1'); k('v_add_u32 v5, s51, v5'); k('s_mov_b32 exec_hi, 0'); k(f'ds_write_b32 v5, v{QGA}'); k('s_mov_b64 exec, -1')
    for j in range(4): k(f'v_mov_b32 v{16+j}, 0')
    k('v_lshlrev_b32 v5, 4, v0'); k(f'v_add_u32 v5, {L_O}, v5')
    for j in range(5): k(f'ds_write_b128 v5, v[16:19] offset:{8192*j}')
    k('v_cmp_gt_u32 vcc, 128, v0'); k('s_and_saveexec_b64 s[56:57], vcc'); k(f'ds_write_b128 v5, v[16:19] offset:{8192*5}'); k('s_mov_b64 exec, s[56:57]')
    k(f'v_lshlrev_b32 v5, 2, v1'); k(f'v_add_u32 v5, {L_CNT}, v5'); k('s_mov_b64 exec, 0xffff'); k('ds_write_b32 v5, v16'); k('s_mov_b64 exec, -1')
    k('s_waitcnt lgkmcnt(0)')
    lab=k.label('np')
    k(f's_cmp_lg_u32 s{S_WAVE}, 7'); k(f's_cbranch_scc1 {lab}')
    k('s_and_b32 s53, s2, 7'); k('s_lshl_b32 s53, s53, 7'); k(f's_add_u32 s53, s53, {WS_FKV}'); poll_flags(k,'s53',32,sleep=4)
    k(f'{lab}:')
    k('s_barrier')
    k.ts(5)
    def tables_dma_4waves():
        per=(F.NCT+3)//4
        k('v_lshlrev_b32 v3, 4, v1'); k(f's_sub_u32 s50, s{S_WAVE}, 4')
        for m in range(per):
            k(f's_add_u32 s48, s50, {4*m}'); k(f's_min_u32 s48, s48, {F.NCT-1}'); k('s_lshl_b32 s48, s48, 10')
            k(f's_add_u32 s49, s48, {F.CT0*1024}'); k('v_add_u32 v4, s49, v3')
            k(f'v_mov_b32 v5, s{S_TBL+1}'); k(f'v_add_co_u32 v4, vcc, s{S_TBL}, v4'); k('v_addc_co_u32 v5, vcc, 0, v5, vcc')
            k(f's_add_u32 m0, s48, {L_WO}'); k('s_nop 0')
            k('global_load_lds_dwordx4 v[4:5], off')
    def lds_add(off):
        k(f'v_mov_b32 v5, {L_CNT+off}'); k('v_mov_b32 v6, 1'); k('s_mov_b64 exec, 1'); k('ds_add_u32 v5, v6'); k('s_mov_b64 exec, -1')
    def lds_wait(off, target):
        lp=k.label('lw'); lq=k.label('lq'); k(f'v_mov_b32 v5, {L_CNT+off}'); k(f'{lp}:'); k('ds_read_b32 v6, v5'); k('s_waitcnt lgkmcnt(0)'); k('v_readfirstlane_b32 s48, v6')
        k(f's_cmp_lt_u32 s48, {target}'); k(f's_cbranch_scc0 {lq}'); k('s_sleep 2'); k(f's_branch {lp}'); k(f'{lq}:')
    def setFX():
        k('s_mov_b32 s60, s2'); set_flag(k,WS_FX,60); k.ts(15)
    lkv=k.label('kv'); ljoin=k.label('kj'); lno=k.label('noc'); lhas=k.label('has')
    k(f's_cmp_lt_u32 s{S_WAVE}, 2'); k(f's_cbranch_scc0 {lkv}')
    k(f's_cmp_eq_u32 s{S_WAVE}, 0'); k(f's_cbranch_scc1 {lhas}')
    k(f's_cmp_ge_u32 s{S_COL}, 65'); k(f's_cbranch_scc1 {lno}')
    k(f'{lhas}:')
    k('v_lshlrev_b32 v3, 4, v1'); k(f'v_add_u32 v3, {F.CT0*1024}, v3'); k(f'v_mov_b32 v5, s{S_TBL+1}'); k(f'v_add_co_u32 v4, vcc, s{S_TBL}, v3'); k('v_addc_co_u32 v5, vcc, 0, v5, vcc')
    for n in range(F.NCT):
        k(f's_mov_b32 m0, {L_WO+1024*n}')
        if n:
            k('v_add_co_u32 v4, vcc, 0x400, v4'); k('v_addc_co_u32 v5, vcc, 0, v5, vcc')
        else: k('s_nop 0')
        k('global_load_lds_dwordx4 v[4:5], off')
    k(f's_mov_b32 s53, {WS_FX}'); poll_flags(k,'s53',64,4,sleep=24)
    lab=k.label('ep'); k('s_cmp_lg_u32 s2, 0'); k(f's_cbranch_scc1 {lab}'); k(f's_cmp_lg_u32 s{S_WAVE}, 0'); k(f's_cbranch_scc1 {lab}'); k('s_mov_b32 s60, 0'); set_flag(k,WS_EPOCH,60); k(f'{lab}:')
    k.ts(13)
    k(f's_lshl_b32 s61, s{S_WAVE}, 8'); k(f's_add_u32 s61, s61, s{S_COL}')
    k(f's_mul_i32 s62, s{S_WAVE}, {L_YS1-L_YS0}'); k(f's_add_u32 s62, s62, {L_YS0}')
    F.col_issue(k,61)
    if opts.get('ty'): k.ts(3)
    k('s_waitcnt vmcnt(0)')
    if opts.get('ty'): k.ts(4)
    F.col_fft(k,61,L_WO,None)
    k.ts(14)
    k(f'{lno}:')
    load_kv(k)
    if opts.get('ty'): k.ts(1)
    k('s_waitcnt vmcnt(32)')
    if opts.get('ty'): k.ts(2)
    k('s_mov_b32 s60, s2')
    k(f's_mul_i32 s61, s{S_WAVE}, {WS_FY2-WS_FY}'); k(f's_add_u32 s61, s61, {WS_FY}')
    k(f's_lshl_b32 s54, s60, 2'); k('s_add_u32 s54, s54, s61')
    k(f'v_mov_b32 v5, s{S_TAG}'); k('v_mov_b32 v6, 0'); k('s_mov_b64 exec, 1')
    k(f'buffer_store_dword v5, v6, {WS}, s54 offen sc1'); k('s_mov_b64 exec, -1')
    lds_add(4)
    k(f's_branch {ljoin}')
    k(f'{lkv}:')
    load_kv(k)
    k(f'{ljoin}:')
    k('v_lshlrev_b32 v5, 3, v1'); k(f's_mov_b32 s48, {WS_KM}')
    k(f'buffer_load_dwordx2 v[6:7], v5, {WS}, s48 offen sc1')
    k(f'v_mov_b32 v5, {L_M}'); k('ds_read_b128 v[12:15], v5'); k('ds_read_b128 v[16:19], v5 offset:16')
    attn_addr(k)
    k('s_waitcnt vmcnt(0) lgkmcnt(0)')
    k.ts(6); k.tc(10)
    k('v_max_f32 v12, v12, v13'); k('v_max_f32 v14, v14, v15'); k('v_max_f32 v16, v16, v17'); k('v_max_f32 v18, v18, v19')
    k('v_max_f32 v12, v12, v14'); k('v_max_f32 v16, v16, v18'); k('v_max_f32 v12, v12, v16')
    for v in (6,7):
        k(f'v_mov_b32 v10, v{v}'); k('s_nop 1'); k(f'v_permlane32_swap_b32 v{v}, v10'); k('s_nop 1'); k(f'v_max_f32 v{v}, v{v}, v10'); wave_max32(k,v)
    k('s_nop 0'); k('v_readlane_b32 s48, v6, 31'); k('v_readlane_b32 s49, v7, 31'); k('s_nop 1')
    k('v_mul_f32 v12, s48, v12')
    k(f's_mov_b32 s{S_QT}, s{S_WAVE}')
    lend=k.label('aend')
    attn_pairs(k,4)
    k.tc(11); k.ts(12)
    l3=k.label('w3'); l2=k.label('w2')
    k(f's_cmp_eq_u32 s{S_WAVE}, 3'); k(f's_cbranch_scc1 {l3}')
    k(f's_cmp_eq_u32 s{S_WAVE}, 2'); k(f's_cbranch_scc1 {l2}')
    k(f's_branch {lend}')
    k(f'{l3}:')
    lds_wait(4,2)
    k(f's_mov_b32 s62, s{S_WAVE}')
    k('v_lshlrev_b32 v3, 4, v1')
    fl=[F.IC_FIRST+i for i in range(F.IC_N)]+[T.FR[x] for x in ('c_t32c0','c_t32n0','c_t32c1','c_t32n1')]
    for i,fr in enumerate(fl):
        k(f'v_add_u32 v4, {fr*1024}, v3'); k(f'v_mov_b32 v5, s{S_TBL+1}'); k(f'v_add_co_u32 v4, vcc, s{S_TBL}, v4'); k('v_addc_co_u32 v5, vcc, 0, v5, vcc')
        k(f's_mov_b32 m0, {L_IC+1024*i}'); k('s_nop 0'); k('global_load_lds_dwordx4 v[4:5], off')
    k('s_waitcnt vmcnt(0)'); lds_add(20)
    k(f's_mov_b32 s{S_WAVE}, 0')
    dma_wo(k,range(0,85),85,step=1)
    k(f's_mov_b32 s{S_WAVE}, s62')
    k(f's_branch {lend}')
    k(f'{l2}:')
    k(f's_mov_b32 s53, {WS_FY}'); poll_flags(k,'s53',64,4,sleep=24); k(f's_mov_b32 s53, {WS_FY2}'); poll_flags(k,'s53',64,4,sleep=24)
    lds_wait(20,1)
    k.ts(13); F.row_ifft_duty(k,L_IST,L_IC); k.ts(14)
    k(f's_mov_b32 s62, s{S_WAVE}'); k(f's_mov_b32 s{S_WAVE}, 0')
    dma_wo(k,range(85,100),100,step=1)
    k(f's_mov_b32 s{S_WAVE}, s62')
    k(f'{lend}:')
    k('s_waitcnt vmcnt(0) lgkmcnt(0)'); k('s_barrier')
    k.ts(7)
    def norm_task(tau_sgpr):
        k('v_lshrrev_b32 v3, 5, v1'); k(f'v_mul_u32_u24 v3, {OT}, v3'); k('v_and_b32 v4, 31, v1'); k('v_lshl_add_u32 v3, v4, 3, v3'); k(f'v_add_u32 v3, {L_O}, v3')
        for a in range(2):
            k(f's_lshl_b32 s50, s{tau_sgpr}, 1'); k(f's_add_u32 s50, s50, {a}')
            k('s_mul_i32 s51, s50, 52'); k('s_lshr_b32 s51, s51, 8'); k('s_mul_i32 s52, s51, 5'); k('s_sub_u32 s52, s50, s52')
            k(f's_mul_i32 s51, s51, {2*OT}'); k('v_add_u32 v4, s51, v3')
            k(f'ds_read_b64 v[{32+2*a}:{33+2*a}], v4 offset:{20*256}')
            k('s_lshl_b32 s52, s52, 10'); k('v_add_u32 v4, s52, v4')
            for i in range(4): k(f'ds_read_b64 v[{40+8*a+2*i}:{41+8*a+2*i}], v4 offset:{256*i}')
        k('s_waitcnt lgkmcnt(0)')
        for a in range(2):
            k(f'v_cvt_f32_f64 v{28+a}, v[{32+2*a}:{33+2*a}]')
            for i in range(4): k(f'v_cvt_f32_f64 v{56+4*a+i}, v[{40+8*a+2*i}:{41+8*a+2*i}]')
        k('v_rcp_f32 v28, v28'); k('v_rcp_f32 v29, v29'); k('s_nop 0')
        for a in range(2):
            for i in range(4): k(f'v_mul_f32 v{56+4*a+i}, v{56+4*a+i}, v{28+a}')
        for j in range(4): k(f'v_cvt_pk_bf16_f32 v{64+j}, v{56+2*j}, v{57+2*j}')
        k(f's_mul_i32 s50, s{S_HG}, 10'); k(f's_add_u32 s50, s50, s{tau_sgpr}')
        k('s_lshr_b32 s51, s50, 2'); k('s_and_b32 s52, s50, 3'); k('s_lshl_b32 s51, s51, 10'); k('s_lshl_b32 s52, s52, 8'); k('s_add_u32 s51, s51, s52')
        k(f's_mul_i32 s52, s{S_RB}, {4*20*1024}'); k('s_add_u32 s51, s51, s52'); k(f's_add_u32 s51, s51, {WS_O}')
        k('v_lshrrev_b32 v5, 4, v1'); k(f'v_mul_u32_u24 v5, {20*1024}, v5'); k('v_and_b32 v6, 15, v1'); k('v_lshl_add_u32 v5, v6, 4, v5')
        k(f'buffer_store_dwordx4 v[64:67], v5, {WS}, s51 offen sc1')
    k(f's_mov_b32 s60, s{S_WAVE}'); norm_task(60)
    lab=k.label('n2'); k(f's_cmp_ge_u32 s{S_WAVE}, 2'); k(f's_cbranch_scc1 {lab}'); k(f's_add_u32 s60, s{S_WAVE}, 8'); norm_task(60); k(f'{lab}:')
    def setFO():
        k(f's_lshl_b32 s60, s{S_HG}, 5'); k(f's_add_u32 s60, s60, s{S_RB}'); set_flag(k,WS_FO,60)
    k('s_waitcnt vmcnt(0)'); lds_count_last(k,8,8,setFO)
    lab=k.label('nf'); lab2=k.label('nf2')
    k(f's_cmp_lg_u32 s{S_WAVE}, 0'); k(f's_cbranch_scc1 {lab}')
    lp=k.label('po'); dn=k.label('pod')
    k('s_mov_b64 exec, 0xff'); k('v_lshlrev_b32 v4, 7, v1'); k(f's_lshl_b32 s53, s{S_RB}, 2'); k(f's_add_u32 s53, s53, {WS_FO}')
    k(f'{lp}:'); k(f'buffer_load_dword v5, v4, {WS}, s53 offen sc1'); k('s_waitcnt vmcnt(0)'); k(f'v_cmp_ne_u32 vcc, s{S_TAG}, v5')
    k(f's_cbranch_vccz {dn}'); k('s_sleep 4'); k(f's_branch {lp}'); k(f'{dn}:'); k('s_mov_b64 exec, -1')
    k(f's_branch {lab2}')
    k(f'{lab}:')
    k(f's_cmp_lg_u32 s{S_WAVE}, 1'); k(f's_cbranch_scc1 {lab2}')
    k(f's_lshr_b32 s48, s{S_RB}, 4'); k('s_lshl_b32 s48, s48, 1'); k(f's_bfe_u32 s49, s{S_RB}, 0x10002'); k('s_add_u32 s48, s48, s49')
    k('s_lshl_b32 s53, s48, 8'); k(f's_add_u32 s53, s53, {WS_FB}'); poll_flags(k,'s53',64,sleep=6)
    k(f'{lab2}:')
    k('s_barrier')
    k.ts(8)
    OF=16; AC=64; AF=96
    k(f's_and_b32 s48, s{S_WAVE}, 3'); k(f's_lshr_b32 s49, s{S_WAVE}, 2')
    k(f's_lshl_b32 s50, s{S_RB}, 2'); k('s_add_u32 s50, s50, s48'); k('s_mul_i32 s50, s50, 20'); k('s_mul_i32 s51, s49, 10'); k('s_add_u32 s50, s50, s51'); k('s_lshl_b32 s50, s50, 10'); k(f's_add_u32 s50, s50, {WS_O}')
    k('v_lshlrev_b32 v3, 4, v1')
    for t in range(10):
        k(f'buffer_load_dwordx4 v[{OF+4*t}:{OF+4*t+3}], v3, {WS}, s50 offen sc1'); k('s_add_u32 s50, s50, 1024')
    k(f's_lshl_b32 s50, s{S_RB}, 6'); k('s_lshl_b32 s51, s48, 4'); k('s_add_u32 s50, s50, s51')
    k('v_and_b32 v4, 15, v1'); k('v_add_u32 v4, s50, v4')
    k('v_mul_u32_u24 v5, 1280, v4'); k('v_lshrrev_b32 v6, 4, v1'); k('v_lshl_add_u32 v5, v6, 3, v5'); k(f's_mul_i32 s51, s{S_HG}, 160')
    k(f's_add_u32 s52, s51, {WS_B}')
    for mu in range(5): k(f'buffer_load_dwordx2 v[{AF+40+2*mu}:{AF+41+2*mu}], v5, {WS}, s52 offen offset:{32*mu} sc1')
    k('v_and_b32 v8, 15, v1'); k('s_lshl_b32 s52, s48, 6'); k('v_lshl_add_u32 v8, v8, 2, s52'); k(f'v_add_u32 v8, {L_Z}, v8')
    for hd in range(4): k(f'ds_read_b32 v{10+hd}, v8 offset:{256*hd}')
    k('v_and_b32 v7, 15, v1'); k('v_lshrrev_b32 v6, 2, v7'); k(f'v_mul_u32_u24 v9, {WOSUB}, v6'); k('v_and_b32 v14, 1, v6'); k('v_lshl_add_u32 v9, v14, 5, v9'); k('v_lshrrev_b32 v14, 1, v6'); k('v_lshl_add_u32 v9, v14, 7, v9')
    k('v_lshrrev_b32 v14, 4, v1'); k('v_mul_u32_u24 v14, 320, v14'); k('v_add_u32 v9, v9, v14'); k('v_and_b32 v7, 3, v7'); k('v_lshl_add_u32 v9, v7, 3, v9')
    k('s_mul_i32 s53, s49, 12800'); k(f's_add_u32 s53, s53, {L_WO}'); k('v_add_u32 v9, s53, v9')
    k('s_waitcnt lgkmcnt(0)')
    k('v_add_f32 v10, v10, v11'); k('v_add_f32 v12, v12, v13'); k('v_add_f32 v10, v10, v12')
    k(f'v_mul_f32 v10, {f2u(-1.4426950408889634):#x}, v10'); k('v_exp_f32 v10, v10'); k('s_nop 0'); k('v_add_f32 v10, 1.0, v10'); k('v_rcp_f32 v8, v10')
    def rdA(t):
        b=t&1
        for mu in range(5):
            k(f'ds_read_b64_tr_b16 v[{AF+20*b+4*mu}:{AF+20*b+4*mu+1}], v9 offset:{t*1280+mu*32}')
            k(f'ds_read_b64_tr_b16 v[{AF+20*b+4*mu+2}:{AF+20*b+4*mu+3}], v9 offset:{t*1280+mu*32+160}')
    rdA(0)
    for t in range(10):
        if t+1<10:
            rdA(t+1); k(f's_waitcnt vmcnt({5+9-t}) lgkmcnt(10)')
        else: k('s_waitcnt vmcnt(5) lgkmcnt(0)')
        b=t&1
        for mu in range(5):
            c='0' if t==0 else f'v[{AC+4*mu}:{AC+4*mu+3}]'
            k(f'v_mfma_f32_16x16x32_bf16 v[{AC+4*mu}:{AC+4*mu+3}], v[{AF+20*b+4*mu}:{AF+20*b+4*mu+3}], v[{OF+4*t}:{OF+4*t+3}], {c}')
    k('s_nop 9')
    k(f's_mul_i32 s52, s48, {5*1024}'); k('v_lshlrev_b32 v7, 4, v1'); k('v_add_u32 v7, s52, v7'); k(f'v_add_u32 v7, {L_O}, v7')
    labA=k.label('ra'); labB=k.label('rb')
    k('s_cmp_eq_u32 s49, 0'); k(f's_cbranch_scc1 {labA}')
    for mu in range(5): k(f'ds_write_b128 v7, v[{AC+4*mu}:{AC+4*mu+3}] offset:{1024*mu}')
    k('s_waitcnt lgkmcnt(0)'); k('s_barrier'); k(f's_branch {labB}')
    k(f'{labA}:')
    k('s_barrier')
    for mu in range(5): k(f'ds_read_b128 v[{AF+4*mu}:{AF+4*mu+3}], v7 offset:{1024*mu}')
    k('s_waitcnt vmcnt(0) lgkmcnt(0)')
    for r in range(20): k(f'v_add_f32 v{AC+r}, v{AC+r}, v{AF+r}')
    k('v_sub_f32 v9, 1.0, v8')
    for mu in range(5):
        for jj in range(2):
            w=AF+40+2*mu+jj
            k(f'v_lshlrev_b32 v10, 16, v{w}'); k(f'v_and_b32 v11, 0xffff0000, v{w}')
            k(f'v_mul_f32 v10, v10, v9'); k('v_mul_f32 v11, v11, v9')
            k(f'v_fma_f32 v{AC+4*mu+2*jj}, v{AC+4*mu+2*jj}, v8, v10'); k(f'v_fma_f32 v{AC+4*mu+2*jj+1}, v{AC+4*mu+2*jj+1}, v8, v11')
    for j in range(10): k(f'v_cvt_pk_bf16_f32 v{AF+j}, v{AC+2*j}, v{AC+2*j+1}')
    for mu in range(5): k(f'buffer_store_dwordx2 v[{AF+2*mu}:{AF+2*mu+1}], v5, s[{S_OUT}:{S_OUT+3}], s51 offen offset:{32*mu}')
    k(f'{labB}:')
    k.ts(9)
    k.ts_flush()
    k(f'{NAME}_end:')
    k('s_endpgm')
    k.L.append(T.table_text(f'{NAME}_tbl'))
    return k

if __name__=='__main__':
    opts={a:True for a in sys.argv[2:]}
    emit([build(opts)],sys.argv[1],single=True)
```

```python
import sys, math
from asmgen import *
import fft9 as F
F.WS_FY2=F.WS_FY+1024
import fft2
import tables as T
NAME='gated_mix__grouped_kv_mqa__spectral_gfnet__prompt_kernel'
WS_EPOCH=0
WS_FKV=0x1000; WS_FX=F.WS_FX; WS_FY=F.WS_FY; WS_FB=F.WS_FB; WS_FO=0x5000; WS_FY2=F.WS_FY2
WS_KV=0x10000; WS_KM=0x52000; WS_TS=0x60000
WS_O=0x100000; WS_XW=F.WS_XW; WS_Y1=F.WS_Y1; WS_B=F.WS_B; WS_SIZE=0x1000000
XS=272; XCH=17408; WCH=24576; ENT=XCH+WCH
L_WKV=87040; L_RST=138240; L_RCc=148608; L_GW=161920; L_SCRc=136192
def xpos(kv,p): return p*XCH if kv else (p%3)*ENT
def wpos(kv,p): return (L_WKV+(p%3)*WCH) if kv else (p%3)*ENT+XCH
L_Q1=0; L_Q2=8192; L_ZERO=10240; L_M=10272; L_CNT=10304; L_Z=10368; L_O=11392; OT=21*256
L_IST=L_O+8*OT
L_WO=L_IST+6144
L_EX=L_WO
L_RC=L_RCc
L_YS0=131072; L_YS1=139264
L_IC=L_WO+3*25600+160+10*1024
WOSUB=25600; WOPAD=[0,32,128,160]
assert L_WO+4*WOSUB+160<=163840 and L_WO%16==0 and L_WO+F.NCT*1024<=L_YS0 and L_IC+15*1024<=163840
LDS_TOTAL=163840
S_X=4; S_WQ=8; S_WK=12; S_WV=16; S_WO=20; S_WR=24; S_WI=28; S_GW=32; S_OUT=36; S_WS=40
S_WAVE=44; S_RB=45; S_HG=46; S_TAG=47; S_TS=64; S_IT=70; S_QT=71; S_TBL=72
WS=f's[{S_WS}:{S_WS+3}]'
CSCALE=(20**-0.5)*1.4426950408889634
def f2u(x):
    import struct
    return struct.unpack('<I',struct.pack('<f',x))[0]
VWQ=240

class G(Kern):
    def __init__(s, opts):
        super().__init__(NAME,256,512,LDS_TOTAL,vgpr=256,sgpr=102); s.o=opts
    def ts(s, idx):
        if not s.o.get('ts'): return
        s(f's_memrealtime s[{S_TS}:{S_TS+1}]'); s('s_waitcnt lgkmcnt(0)'); s(f'v_writelane_b32 v255, s{S_TS}, {idx}')
    def tc(s, idx):
        if not s.o.get('ts'): return
        s(f's_memtime s[{S_TS}:{S_TS+1}]'); s('s_waitcnt lgkmcnt(0)'); s(f'v_writelane_b32 v255, s{S_TS}, {idx}')
    def ts_flush(s):
        if not s.o.get('ts'): return
        s(f's_lshl_b32 s{S_TS}, s2, 3'); s(f's_add_u32 s{S_TS}, s{S_TS}, s{S_WAVE}'); s(f's_lshl_b32 s{S_TS}, s{S_TS}, 6')
        s(f's_add_u32 s{S_TS}, s{S_TS}, {WS_TS}')
        s('v_mbcnt_lo_u32_b32 v254, -1, 0'); s('v_mbcnt_hi_u32_b32 v254, -1, v254')
        s('v_lshlrev_b32 v253, 2, v254'); s(f'v_add_u32 v253, s{S_TS}, v253')
        s('v_cmp_gt_u32 vcc, 16, v254')
        s(f's_and_saveexec_b64 s[{S_TS+2}:{S_TS+3}], vcc')
        s(f'buffer_store_dword v255, v253, {WS}, 0 offen')
        s(f's_mov_b64 exec, s[{S_TS+2}:{S_TS+3}]')

def prologue(k):
    k('s_cmp_ge_u32 s2, 256'); k(f's_cbranch_scc1 {NAME}_end')
    k('s_load_dwordx8 s[48:55], s[0:1], 0'); k('s_load_dwordx2 s[56:57], s[0:1], 32')
    k('s_load_dwordx4 s[60:63], s[0:1], 48'); k('s_load_dwordx4 s[64:67], s[0:1], 64'); k('s_load_dwordx2 s[68:69], s[0:1], 88')
    k('v_and_b32 v1, 63, v0'); k('v_lshrrev_b32 v2, 6, v0')
    k('s_lshr_b32 s74, s2, 3'); k('s_and_b32 s45, s74, 28'); k('s_and_b32 s75, s2, 3'); k('s_or_b32 s45, s45, s75')
    k('s_and_b32 s46, s2, 4'); k('s_and_b32 s75, s74, 3'); k('s_or_b32 s46, s46, s75')
    k('v_readfirstlane_b32 s44, v2')
    k(f's_getpc_b64 s[{S_TBL}:{S_TBL+1}]')
    k(f'{NAME}_pc:')
    k(f's_add_u32 s{S_TBL}, s{S_TBL}, {NAME}_tbl-{NAME}_pc'); k(f's_addc_u32 s{S_TBL+1}, s{S_TBL+1}, 0')
    k('s_waitcnt lgkmcnt(0)')
    for (sr,src,name) in [(S_X,48,'x'),(S_WQ,50,'wq'),(S_WK,52,'wk'),(S_WV,54,'wv'),(S_WO,56,'wo'),(S_WR,60,'wr'),(S_WI,62,'wi'),(S_GW,64,'gw'),(S_OUT,66,'out'),(S_WS,68,'ws')]:
        k(f's_mov_b32 s{sr}, s{src}'); k(f's_mov_b32 s{sr+1}, s{src+1}')
        k(f's_mov_b32 s{sr+2}, {WS_SIZE if name=="ws" else SIZES[name]}'); k(f's_mov_b32 s{sr+3}, 0x20000')
    k(f's_load_dword s{S_TAG}, s[{S_WS}:{S_WS+1}], {WS_EPOCH}')
    if k.o.get('ts'): k('v_mov_b32 v255, 0')
    k.ts(0)

L_SCR=L_SCRc
VXA=236
S_KAP=80
S_COL=89
S_XW=85; S_WW=86
def setup_dma(k):
    k('s_lshr_b32 s48, s2, 3'); k('s_lshr_b32 s49, s48, 3'); k('s_lshl_b32 s49, s49, 6'); k('s_and_b32 s50, s2, 7'); k('s_lshl_b32 s50, s50, 3'); k('s_add_u32 s49, s49, s50'); k('s_and_b32 s48, s48, 7'); k(f's_add_u32 s{S_COL}, s49, s48')
    k(f's_lshr_b32 s48, s{S_RB}, 3'); k(f's_add_u32 s48, s48, s{S_HG}')
    k('s_mul_i32 s49, s48, 52'); k('s_lshr_b32 s49, s49, 8'); k('s_mul_i32 s49, s49, 5'); k(f's_sub_u32 s{S_KAP}, s48, s49')
    for i in range(1,5):
        k(f's_add_u32 s{S_KAP+i}, s{S_KAP+i-1}, 1'); k(f's_cmp_eq_u32 s{S_KAP+i}, 5'); k(f's_cselect_b32 s{S_KAP+i}, 0, s{S_KAP+i}')
    k(f's_mul_i32 s{S_XW}, s{S_WAVE}, {136*16}'); k(f's_mul_i32 s{S_WW}, s{S_WAVE}, 3072')
    magic=(2**32+16)//17
    for c in range(1088+64): assert (c*magic)>>32==c//17
    k(f's_mov_b32 s48, {magic}'); k(f's_mul_i32 s49, s{S_RB}, {64*1280}'); k(f's_mul_i32 s50, s{S_WAVE}, 136')
    for m in range(3):
        k(f's_add_u32 s51, s50, {64*m}'); k('v_add_u32 v3, s51, v1')
        k('v_mul_hi_u32 v4, v3, s48'); k('v_mul_u32_u24 v5, 17, v4'); k('v_sub_u32 v5, v3, v5'); k('v_min_u32 v5, 15, v5')
        k('v_mul_u32_u24 v4, 1280, v4'); k('v_lshlrev_b32 v5, 4, v5'); k(f'v_add3_u32 v{VXA+m}, v4, v5, s49')
    magic=(2**32+11)//12
    for c in range(1536): assert (c*magic)>>32==c//12
    k(f's_mov_b32 s48, {magic}'); k(f's_mul_i32 s49, s{S_HG}, 160'); k('s_and_b32 s49, s49, 0xffffffc0'); k(f's_mul_i32 s50, s{S_WAVE}, 192')
    for m in range(3):
        k(f's_add_u32 s51, s50, {64*m}'); k('v_add_u32 v3, s51, v1')
        k('v_mul_hi_u32 v4, v3, s48'); k('v_mul_u32_u24 v5, 12, v4'); k('v_sub_u32 v5, v3, v5')
        k('v_mul_u32_u24 v4, 1280, v4'); k('v_lshlrev_b32 v5, 4, v5'); k(f'v_add3_u32 v{VWQ+m}, v4, v5, s49')
def op_x(k, pos, kv, m):
    def f():
        k(f's_add_u32 m0, s{S_XW}, {xpos(kv,pos)+1024*m}'); k(f's_lshl_b32 s52, s{S_KAP+pos}, 8')
        if m==2: k('s_mov_b64 exec, 0xff')
        k(f'buffer_load_dwordx4 v{VXA+m}, s[{S_X}:{S_X+3}], s52 offen lds')
        if m==2: k('s_mov_b64 exec, -1')
    return f
def op_w(k, pos, kv, m):
    def f():
        k(f's_mul_i32 s52, s{S_KAP+pos}, {128*1280}'); k(f's_add_u32 m0, s{S_WW}, {wpos(kv,pos)+1024*m}'); k('s_nop 0')
        k(f'buffer_load_dwordx4 v{VWQ+m}, s[{S_WQ}:{S_WQ+3}], s52 offen lds')
    return f
def ops_x(k,pos,kv): return [(f'X{pos}',op_x(k,pos,kv,m)) for m in range(3)]
def ops_w(k,pos,kv): return [(f'W{pos}',op_w(k,pos,kv,m)) for m in range(3)]
def dma_xchunk(k,pos,kv):
    for t,f in ops_x(k,pos,kv): f()
def dma_wchunk(k,pos,kv):
    for t,f in ops_w(k,pos,kv): f()
class VM:
    def __init__(s): s.L=[]
    def issue(s,tag,f,n=1):
        f(); s.L+= [tag]*n
    def younger(s,tags):
        last=max(i for i,t in enumerate(s.L) if t in tags)
        return len(s.L)-1-last
def dma_wo(k, starts, limit, step=8):
    k('s_mov_b32 s48, 0xCCCCCCCD'); k(f's_mul_i32 s49, s{S_HG}, 160')
    for st in starts:
        lab=k.label('wo')
        k(f's_add_u32 s50, s{S_WAVE}, {st}')
        if st+step>limit:
            k(f's_min_u32 s50, s50, {limit-1}')
        k('s_mul_i32 s51, s50, 41'); k('s_lshr_b32 s51, s51, 10')
        k('s_mul_i32 s52, s51, 25'); k('s_sub_u32 s52, s50, s52')
        k('s_lshl_b32 s53, s52, 6'); k('v_add_u32 v3, s53, v1')
        k('v_mul_hi_u32 v4, v3, s48'); k('v_lshrrev_b32 v4, 3, v4'); k('v_mul_u32_u24 v5, 10, v4'); k('v_sub_u32 v5, v3, v5')
        k('v_mul_u32_u24 v4, 5120, v4'); k('v_lshlrev_b32 v5, 4, v5'); k('s_mul_i32 s53, s51, 1280'); k('s_add_u32 s53, s53, s49'); k('v_add3_u32 v4, v4, v5, s53')
        k(f's_mul_i32 s53, s51, {WOSUB}'); k('s_and_b32 s54, s51, 1'); k('s_lshl_b32 s54, s54, 5'); k('s_add_u32 s53, s53, s54'); k('s_lshr_b32 s54, s51, 1'); k('s_lshl_b32 s54, s54, 7'); k('s_add_u32 s53, s53, s54')
        k('s_lshl_b32 s52, s52, 10'); k('s_add_u32 s53, s53, s52'); k(f's_add_u32 m0, s53, {L_WO}'); k('s_nop 0')
        k(f'buffer_load_dwordx4 v4, s[{S_WO}:{S_WO+3}], 0 offen lds')
for n in range(100): assert (n*41)>>10==n//25

def dma_lin(k, srd, per_wave_chunks, ldsbase):
    n=(per_wave_chunks+63)//64
    k(f's_mul_i32 s51, s{S_WAVE}, {per_wave_chunks*16}'); k('v_lshlrev_b32 v3, 4, v1'); k('v_add_u32 v3, s51, v3')
    for m in range(n):
        rem=per_wave_chunks-64*m
        k(f's_add_u32 m0, s51, {ldsbase+1024*m}')
        if rem<64: k(f's_mov_b64 exec, {hex((1<<rem)-1)}')
        else: k('s_nop 0')
        k(f'buffer_load_dwordx4 v3, s[{srd}:{srd+3}], 0 offen offset:{1024*m} lds' if False else f'buffer_load_dwordx4 v3, s[{srd}:{srd+3}], 0 offen lds')
        if m+1<n: k('v_add_u32 v3, 1024, v3')
    k('s_mov_b64 exec, -1')
    return n

def wave_max32(k, v):
    for sh in (1,2,4,8):
        k('s_nop 1'); k(f'v_max_f32_dpp v{v}, v{v}, v{v} row_shr:{sh} row_mask:0xf bank_mask:0xf')
    k('s_nop 1'); k(f'v_max_f32_dpp v{v}, v{v}, v{v} row_bcast:15 row_mask:0xa bank_mask:0xf')

def poll_flags(k, off, nlanes, per_lane_dwords=1, vtmp=4, sleep=1):
    lab=k.label('poll'); done=k.label('polld')
    k('s_mov_b64 s[56:57], exec')
    if nlanes<64: k(f's_mov_b64 exec, {hex((1<<nlanes)-1)}')
    k(f'v_lshlrev_b32 v{vtmp}, {2+int(math.log2(per_lane_dwords))}, v1')
    k(f'{lab}:')
    if per_lane_dwords==1:
        k(f'buffer_load_dword v{vtmp+1}, v{vtmp}, {WS}, {off} offen sc1'); k('s_waitcnt vmcnt(0)')
        k(f'v_cmp_ne_u32 vcc, s{S_TAG}, v{vtmp+1}')
    else:
        assert (vtmp+2)%2==0
        k(f'buffer_load_dwordx4 v[{vtmp+2}:{vtmp+5}], v{vtmp}, {WS}, {off} offen sc1'); k('s_waitcnt vmcnt(0)')
        for j in range(4): k(f'v_xor_b32 v{vtmp+2+j}, s{S_TAG}, v{vtmp+2+j}')
        k(f'v_or_b32 v{vtmp+2}, v{vtmp+2}, v{vtmp+3}'); k(f'v_or_b32 v{vtmp+4}, v{vtmp+4}, v{vtmp+5}'); k(f'v_or_b32 v{vtmp+2}, v{vtmp+2}, v{vtmp+4}')
        k(f'v_cmp_ne_u32 vcc, 0, v{vtmp+2}')
    k(f's_cbranch_vccz {done}'); k(f's_sleep {sleep}'); k(f's_branch {lab}')
    k(f'{done}:'); k('s_mov_b64 exec, s[56:57]')
set_flag=fft2.set_flag

def kv_proj(k, vm):
    k.c('==== K/V projection')
    k(f's_and_b32 s48, s{S_WAVE}, 1'); k(f's_bfe_u32 s49, s{S_WAVE}, 0x10001'); k(f's_lshr_b32 s50, s{S_WAVE}, 2')
    k('v_and_b32 v3, 31, v1'); k('v_lshrrev_b32 v4, 5, v1')
    k('s_lshl_b32 s51, s48, 5'); k('v_add_u32 v5, s51, v3'); k(f'v_mul_u32_u24 v5, {XS}, v5')
    k('v_lshlrev_b32 v6, 4, v4'); k('s_lshl_b32 s51, s50, 7'); k('v_add3_u32 v12, v5, v6, s51')
    k('v_and_b32 v5, 15, v1'); k('v_lshrrev_b32 v6, 2, v5'); k('v_lshl_add_u32 v6, v4, 3, v6'); k('v_mul_u32_u24 v6, 40, v6')
    k('v_and_b32 v5, 3, v5'); k('v_lshlrev_b32 v5, 3, v5'); k('v_bfe_u32 v7, v1, 4, 1'); k('v_lshlrev_b32 v7, 5, v7'); k('v_add3_u32 v6, v6, v5, v7')
    k(f's_mul_i32 s51, s49, 25600'); k('s_mul_i32 s52, s50, 2560'); k('s_add_u32 s51, s51, s52'); k(f's_add_u32 s51, s51, {L_WKV}')
    k('v_add_u32 v13, s51, v6')
    ACC=16; XF=32; WF=48
    labV=k.label('V'); labJ=k.label('J')
    k('s_cmp_eq_u32 s49, 1'); k(f's_cbranch_scc1 {labV}')
    for isV in (0,1):
        if isV: k(f'{labV}:')
        for pos in range(5):
            ny=vm.younger([f'X{pos}','WK','WV','G'])
            k(f"s_waitcnt vmcnt({ny})"); k('s_barrier')
            k(f's_mul_i32 s51, s{S_KAP+pos}, 5120'); k('v_add_u32 v14, s51, v13')
            if pos: k(f'v_add_u32 v12, {XCH}, v12')
            for t in range(4):
                k(f'ds_read_b128 v[{XF+4*t}:{XF+4*t+3}], v12 offset:{32*t}')
                k(f'ds_read_b64_tr_b16 v[{WF+4*t}:{WF+4*t+1}], v14 offset:{640*t}')
                k(f'ds_read_b64_tr_b16 v[{WF+4*t+2}:{WF+4*t+3}], v14 offset:{640*t+160}')
            for t in range(4):
                k(f's_waitcnt lgkmcnt({3*(3-t)})')
                c='0' if (pos==0 and t==0) else f'v[{ACC}:{ACC+15}]'
                X=f'v[{XF+4*t}:{XF+4*t+3}]'; W=f'v[{WF+4*t}:{WF+4*t+3}]'
                k(f'v_mfma_f32_32x32x16_bf16 v[{ACC}:{ACC+15}], {X if isV else W}, {W if isV else X}, {c}')
        if not isV: k(f's_branch {labJ}')
    k(f'{labJ}:')
    k('s_barrier')
    for p in range(2): dma_wchunk(k,p,True)
    k(f's_and_b32 s51, s{S_WAVE}, 3'); k(f's_lshl_b32 s51, s51, 12'); k(f's_add_u32 s51, s51, {L_SCR}')
    k('v_lshlrev_b32 v5, 4, v1'); k('v_add_u32 v5, s51, v5')
    labR=k.label('R'); labE=k.label('E')
    k('s_cmp_eq_u32 s50, 0'); k(f's_cbranch_scc1 {labR}')
    for r in range(4): k(f'ds_write_b128 v5, v[{ACC+4*r}:{ACC+4*r+3}] offset:{1024*r}')
    k('s_waitcnt lgkmcnt(0)'); k('s_barrier'); k(f's_branch {labE}')
    k(f'{labR}:')
    k('s_barrier')
    for r in range(4): k(f'ds_read_b128 v[{XF+4*r}:{XF+4*r+3}], v5 offset:{1024*r}')
    k('s_waitcnt lgkmcnt(0)')
    for r in range(16): k(f'v_add_f32 v{ACC+r}, v{ACC+r}, v{XF+r}')
    k(f's_lshl_b32 s51, s{S_RB}, 1'); k('s_add_u32 s51, s51, s48'); k('s_lshl_b32 s52, s51, 12'); k(f's_add_u32 s52, s52, {WS_KV}')
    labFV=k.label('FV')
    k('s_cmp_eq_u32 s49, 1'); k(f's_cbranch_scc1 {labFV}')
    for j in range(6): k(f'v_cvt_pk_bf16_f32 v{48+j}, v{ACC+2*j}, v{ACC+2*j+1}')
    k('v_cmp_gt_u32 vcc, 32, v1'); k('s_nop 1')
    k('v_cndmask_b32 v52, 0, v52, vcc'); k('v_cndmask_b32 v53, 0, v53, vcc')
    k('v_lshlrev_b32 v6, 4, v1'); k('v_lshlrev_b32 v7, 3, v1')
    k(f'buffer_store_dwordx4 v[48:51], v6, {WS}, s52 offen sc1')
    k(f'buffer_store_dwordx2 v[52:53], v7, {WS}, s52 offen offset:3072 sc1')
    k(f'v_mul_f32 v54, v{ACC}, v{ACC}')
    for r in range(1,8): k(f'v_fmac_f32 v54, v{ACC+r}, v{ACC+r}')
    k(f'v_mul_f32 v55, v{ACC+8}, v{ACC+8}')
    for r in range(9,12): k(f'v_fmac_f32 v55, v{ACC+r}, v{ACC+r}')
    k('v_cndmask_b32 v55, 0, v55, vcc'); k('v_add_f32 v54, v54, v55'); k('v_mov_b32 v55, v54'); k('s_nop 1')
    k('v_permlane32_swap_b32 v54, v55'); k('s_nop 1'); k('v_add_f32 v54, v54, v55')
    wave_max32(k,54)
    k('s_nop 0'); k('v_readlane_b32 s53, v54, 31')
    k(f's_lshl_b32 s55, s51, 3'); k(f's_add_u32 s55, s55, {WS_KM}')
    k('v_mov_b32 v57, s53'); k('v_mov_b32 v7, 0'); k('s_mov_b64 exec, 1')
    k(f'buffer_store_dword v57, v7, {WS}, s55 offen sc1'); k('s_mov_b64 exec, -1')
    k(f's_branch {labE}')
    k(f'{labFV}:')
    for j in range(8): k(f'v_cvt_pk_bf16_f32 v{48+j}, v{ACC+2*j}, v{ACC+2*j+1}')
    k('v_and_b32 v7, 31, v1'); k('v_cmp_eq_u32 vcc, 20, v7'); k('v_cmp_lt_u32 s[58:59], 20, v7'); k('v_mov_b32 v6, 0x3f803f80')
    for j in range(8):
        k(f'v_cndmask_b32 v{48+j}, v{48+j}, v6, vcc'); k(f'v_cndmask_b32 v{48+j}, v{48+j}, 0, s[58:59]')
    k('v_lshlrev_b32 v6, 4, v1')
    k(f'buffer_store_dwordx4 v[48:51], v6, {WS}, s52 offen offset:1024 sc1')
    k(f'buffer_store_dwordx4 v[52:55], v6, {WS}, s52 offen offset:2048 sc1')
    k(f'v_and_b32 v56, 0x7fffffff, v{ACC}')
    for r in range(1,16): k(f'v_max_f32 v56, v56, abs(v{ACC+r})')
    k('v_cmp_gt_u32 vcc, 20, v7'); k('s_nop 1'); k('v_cndmask_b32 v56, 0, v56, vcc')
    k('v_mov_b32 v57, v56'); k('s_nop 1'); k('v_permlane32_swap_b32 v56, v57'); k('s_nop 1'); k('v_max_f32 v56, v56, v57')
    wave_max32(k,56)
    k('s_nop 0'); k('v_readlane_b32 s53, v56, 31')
    k(f's_lshl_b32 s55, s51, 3'); k(f's_add_u32 s55, s55, {WS_KM+4}')
    k('v_mov_b32 v57, s53'); k('v_mov_b32 v7, 0'); k('s_mov_b64 exec, 1')
    k(f'buffer_store_dword v57, v7, {WS}, s55 offen sc1'); k('s_mov_b64 exec, -1')
    k(f'{labE}:')

QACC=16; QGA=32; QXF=48; QWF=64; QGF=176
def q_proj_setup(k):
    k(f's_and_b32 s48, s{S_WAVE}, 1'); k(f's_lshr_b32 s49, s{S_WAVE}, 1')
    k('v_and_b32 v3, 31, v1'); k('v_lshrrev_b32 v4, 5, v1')
    k('s_lshl_b32 s51, s48, 5'); k('v_add_u32 v5, s51, v3'); k(f'v_mul_u32_u24 v5, {XS}, v5'); k('v_lshl_add_u32 v8, v4, 4, v5')
    k('v_and_b32 v5, 15, v1'); k('v_lshrrev_b32 v6, 2, v5'); k('v_lshl_add_u32 v6, v4, 3, v6'); k('v_mul_u32_u24 v6, 192, v6')
    k('v_and_b32 v5, 3, v5'); k('v_lshlrev_b32 v5, 3, v5'); k('v_bfe_u32 v7, v1, 4, 1'); k('v_lshlrev_b32 v7, 5, v7'); k('v_add3_u32 v6, v6, v5, v7')
    k('s_mul_i32 s51, s49, 40'); k(f's_and_b32 s52, s{S_HG}, 1'); k('s_lshl_b32 s52, s52, 5'); k('s_add_u32 s51, s51, s52'); k('v_add_u32 v9, s51, v6')
    k('s_lshl_b32 s51, s49, 5'); k(f's_add_u32 s51, s51, {L_GW}'); k('v_lshl_add_u32 v14, v4, 4, s51')
    k('s_lshl_b32 s60, s49, 5'); k('v_add_u32 v10, s60, v8')
def q_proj_all(k, kv, vm, sched, first_tags, need, first_hook=None, post={}):
    q_proj_setup(k)
    def rd(s):
        p,tt=s>>3,s&7; b=s&3
        if tt==0:
            k(f'v_add_u32 v12, {xpos(kv,p)}, v8'); k(f'v_add_u32 v13, {wpos(kv,p)}, v9')
        k(f'ds_read_b128 v[{QXF+4*b}:{QXF+4*b+3}], v12 offset:{32*tt}')
        k(f'ds_read_b64_tr_b16 v[{QWF+4*b}:{QWF+4*b+1}], v13 offset:{3072*tt}')
        k(f'ds_read_b64_tr_b16 v[{QWF+4*b+2}:{QWF+4*b+3}], v13 offset:{3072*tt+768}')
    def rdg(p):
        g=QGF+16*(p&1)
        k(f's_lshl_b32 s51, s{S_KAP+p}, 8'); k('v_add_u32 v15, s51, v14'); k(f'v_add_u32 v11, {xpos(kv,p)}, v10')
        for i in range(2):
            k(f'ds_read_b128 v[{g+4*i}:{g+4*i+3}], v15 offset:{128*i}')
            k(f'ds_read_b128 v[{g+8+4*i}:{g+8+4*i+3}], v11 offset:{128*i}')
    k(f's_waitcnt vmcnt({vm.younger(first_tags)})'); k('s_barrier')
    if first_hook: first_hook()
    k.ts(3)
    if k.o.get('stop1'): k.tc(4)
    rd(0); rdg(0); rd(1); rd(2)
    for s in range(40):
        p,tt=s>>3,s&7
        if tt==5 and p<4:
            if k.o.get('stop1'): k.tc(5+2*p)
            k(f's_waitcnt vmcnt({vm.younger(need[p+1])}) lgkmcnt(0)')
            if k.o.get('stop1') and p==1: k.tc(15)
            k('s_barrier')
            if k.o.get('stop1'): k.tc(6+2*p)
            if p in post: post[p]()
        if s+3<40:
            rd(s+3)
            if (s+3)&7==0: rdg((s+3)>>3)
        if tt==0: k('s_waitcnt lgkmcnt(13)')
        elif tt<=4: k('s_waitcnt lgkmcnt(9)')
        elif p==4: k(f's_waitcnt lgkmcnt({3*(7-tt)})')
        b=s&3
        c='0' if s==0 else f'v[{QACC}:{QACC+15}]'
        k(f'v_mfma_f32_32x32x16_bf16 v[{QACC}:{QACC+15}], v[{QWF+4*b}:{QWF+4*b+3}], v[{QXF+4*b}:{QXF+4*b+3}], {c}')
        if tt in (2,4):
            i=(tt-2)>>1; g=QGF+16*(p&1)
            c='0' if (p==0 and i==0) else f'v[{QGA}:{QGA+15}]'
            k(f'v_mfma_f32_32x32x16_bf16 v[{QGA}:{QGA+15}], v[{g+4*i}:{g+4*i+3}], v[{g+8+4*i}:{g+8+4*i+3}], {c}')
        for (tag,fn,n) in sched.get(s,[]): vm.issue(tag,fn,n)

def spread(ops, steps):
    d={}
    for i,(tag,fn) in enumerate(ops):
        st=steps[min(i*len(steps)//len(ops), len(steps)-1)]
        d.setdefault(st,[]).append((tag,fn,1))
    return d
def merge(*ds):
    o={}
    for d in ds:
        for kk,v in d.items(): o.setdefault(kk,[]).extend(v)
    return o

def q_finalize(k):
    ACC=QACC
    k('s_nop 15')
    k(f's_mov_b32 s50, {f2u(CSCALE):#x}')
    for r in range(12): k(f'v_mul_f32 v{ACC+r}, s50, v{ACC+r}')
    for j in range(6): k(f'v_cvt_pk_bf16_f32 v{48+j}, v{ACC+2*j}, v{ACC+2*j+1}')
    k('v_cmp_gt_u32 vcc, 32, v1')
    k(f'v_mul_f32 v54, v{ACC}, v{ACC}')
    for r in range(1,8): k(f'v_fmac_f32 v54, v{ACC+r}, v{ACC+r}')
    k(f'v_mul_f32 v55, v{ACC+8}, v{ACC+8}')
    for r in range(9,12): k(f'v_fmac_f32 v55, v{ACC+r}, v{ACC+r}')
    k('v_cndmask_b32 v55, 0, v55, vcc')
    k('v_cndmask_b32 v52, 0, v52, vcc'); k('v_cndmask_b32 v53, 0, v53, vcc')
    k('v_add_f32 v54, v54, v55'); k('v_mov_b32 v55, v54'); k('s_nop 1')
    k('v_permlane32_swap_b32 v54, v55'); k('s_nop 1'); k('v_add_f32 v54, v54, v55')
    wave_max32(k,54)

K1=24; K2=56; VV=72; SS=136; PP=168; OO=176; Q1=208; Q2=216
VOA=220; VQ1A=221; VQ2A=222; VOB=223; VQ2S=23
def load_kv(k):
    k('v_lshlrev_b32 v3, 4, v1'); k('v_lshlrev_b32 v4, 3, v1')
    k(f's_lshl_b32 s48, s{S_WAVE}, 15'); k(f's_add_u32 s48, s48, {WS_KV}')
    for t in range(8):
        k(f'buffer_load_dwordx4 v[{K1+4*t}:{K1+4*t+3}], v3, {WS}, s48 offen sc1')
        k(f'buffer_load_dwordx2 v[{K2+2*t}:{K2+2*t+1}], v4, {WS}, s48 offen offset:3072 sc1')
        k(f'buffer_load_dwordx4 v[{VV+8*t}:{VV+8*t+3}], v3, {WS}, s48 offen offset:1024 sc1')
        k(f'buffer_load_dwordx4 v[{VV+8*t+4}:{VV+8*t+7}], v3, {WS}, s48 offen offset:2048 sc1')
        k('s_add_u32 s48, s48, 4096')
def attn_addr(k):
    k('v_lshlrev_b32 v3, 4, v1'); k(f'v_add_u32 v{VQ1A}, {L_Q1}, v3'); k('v_lshlrev_b32 v4, 3, v1'); k(f'v_add_u32 v{VQ2A}, {L_Q2}, v4')
    k('v_cmp_gt_u32 vcc, 32, v1'); k(f'v_mov_b32 v3, {L_ZERO}'); k('v_mov_b32 v4, 0x100')
    k(f'v_cndmask_b32 v{VQ2A}, v3, v{VQ2A}, vcc'); k(f'v_cndmask_b32 v{VQ2S}, 0, v4, vcc')
    k('v_and_b32 v8, 31, v1'); k('v_lshrrev_b32 v9, 5, v1'); k('v_lshlrev_b32 v8, 3, v8'); k('v_lshl_add_u32 v8, v9, 10, v8'); k(f'v_add_u32 v{VOB}, {L_O}, v8')
def read_q(k, par):
    k(f's_lshl_b32 s49, s{S_QT}, 10'); k(f'v_add_u32 v3, s49, v{VQ1A}'); k(f'v_mad_u32_u24 v4, s{S_QT}, v{VQ2S}, v{VQ2A}')
    k(f'ds_read_b128 v[{Q1+4*par}:{Q1+4*par+3}], v3'); k(f'ds_read_b64 v[{Q2+2*par}:{Q2+2*par+1}], v4')
def flush_O(k, O):
    Tm=224; idx=0
    for g in range(3):
        for i in range(4):
            k(f'v_cvt_f64_f32 v[{Tm+2*idx}:{Tm+2*idx+1}], v{O+4*g+i}'); idx+=1
    idx=0
    for g in range(3):
        for i in range(4):
            if g==2 and i==1: k('s_mov_b32 exec_hi, 0')
            k(f'ds_add_f64 v{VOA}, v[{Tm+2*idx}:{Tm+2*idx+1}] offset:{(8*g+i)*256}'); idx+=1
    k('s_mov_b64 exec, -1')
def attn_qtile(k, par, first):
    S=lambda b: SS+16*b
    O=OO+16*par; Oprev=OO+16*(1-par)
    q1=f'v[{Q1+4*par}:{Q1+4*par+3}]'; q2=f'v[{Q2+2*par}:{Q2+2*par+1}]'
    def smfma(t, half):
        b=t&1
        if half==0: k(f'v_mfma_f32_32x32x16_bf16 v[{S(b)}:{S(b)+15}], v[{K1+4*t}:{K1+4*t+3}], {q1}, 0')
        else: k(f'v_mfma_f32_32x32x8_bf16 v[{S(b)}:{S(b)+15}], v[{K2+2*t}:{K2+2*t+1}], {q2}, v[{S(b)}:{S(b)+15}]')
    def pv(t, s):
        c='0' if (t==0 and s==0) else f'v[{O}:{O+15}]'
        k(f'v_mfma_f32_32x32x16_bf16 v[{O}:{O+15}], v[{VV+8*t+4*s}:{VV+8*t+4*s+3}], v[{PP+4*s}:{PP+4*s+3}], {c}')
    k('s_waitcnt lgkmcnt(0)')
    smfma(0,0); smfma(0,1)
    if not first: flush_O(k, Oprev)
    k(f's_add_u32 s48, s{S_QT}, 1'); k('s_and_b32 s48, s48, 7')
    k('s_lshl_b32 s49, s48, 10'); k(f'v_add_u32 v3, s49, v{VQ1A}')
    k(f'v_mad_u32_u24 v4, s48, v{VQ2S}, v{VQ2A}')
    k(f'ds_read_b128 v[{Q1+4*(1-par)}:{Q1+4*(1-par)+3}], v3')
    k(f'ds_read_b64 v[{Q2+2*(1-par)}:{Q2+2*(1-par)+1}], v4')
    k(f's_mul_i32 s49, s{S_QT}, {OT}'); k(f'v_add_u32 v{VOA}, s49, v{VOB}')
    if first: k('s_nop 3')
    for t in range(8):
        b=t&1; s0=S(b); sp=S(1-b)
        E=lambda r: k(f'v_exp_f32 v{s0+r}, v{s0+r}')
        C=lambda j: k(f'v_cvt_pk_bf16_f32 v{PP+j}, v{s0+2*j}, v{s0+2*j+1}')
        Cp=lambda j: k(f'v_cvt_pk_bf16_f32 v{PP+j}, v{sp+2*j}, v{sp+2*j+1}')
        E(0); E(1)
        if t>0: Cp(6)
        E(2)
        if t>0: Cp(7)
        if t<7: smfma(t+1,0)
        E(3); E(4); C(0); E(5)
        if t>0: pv(t-1,1)
        E(6); C(1); E(7); E(8)
        if t<7: smfma(t+1,1)
        C(2); E(9); E(10); C(3); E(11); E(12)
        pv(t,0)
        C(4); E(13); E(14); C(5); E(15)
    s0=S(1)
    k('s_nop 0')
    k(f'v_cvt_pk_bf16_f32 v{PP+6}, v{s0+12}, v{s0+13}'); k(f'v_cvt_pk_bf16_f32 v{PP+7}, v{s0+14}, v{s0+15}')
    k('s_nop 1')
    pv(7,1)
    k(f's_mov_b32 s{S_QT}, s48')
def attn_pairs(k, npairs):
    read_q(k,0)
    attn_qtile(k,0,True); attn_qtile(k,1,False)
    if npairs>1:
        k(f's_mov_b32 s{S_IT}, 1')
        lp=k.label('attn'); k(f'{lp}:')
        attn_qtile(k,0,False); attn_qtile(k,1,False)
        k(f's_add_u32 s{S_IT}, s{S_IT}, 1'); k(f's_cmp_lt_u32 s{S_IT}, {npairs}'); k(f's_cbranch_scc1 {lp}')
    k('s_nop 15')
    flush_O(k,OO+16)

def code_prefetch(k):
    k('s_lshr_b32 s48, s2, 3'); k('s_lshl_b32 s48, s48, 3'); k(f's_add_u32 s48, s48, s{S_WAVE}'); k('s_lshl_b32 s48, s48, 10')
    k(f's_min_u32 s48, s48, {NAME}_tblend-{NAME}-1024')
    k(f's_sub_u32 s50, s{S_TBL}, {NAME}_tbl-{NAME}'); k(f's_subb_u32 s51, s{S_TBL+1}, 0')
    k('v_lshlrev_b32 v3, 4, v1'); k('v_add_u32 v3, s48, v3'); k('v_mov_b32 v5, s51'); k('v_add_co_u32 v4, vcc, s50, v3'); k('v_addc_co_u32 v5, vcc, 0, v5, vcc')
    k('global_load_dwordx4 v[244:247], v[4:5], off')

def early_phase(k, kv, vm):
    L_WR = 69632 if kv else 83968
    ne=vm.younger(['E'])
    E=k.o.get('tearly')
    if E: k.tc(4)
    k(f's_waitcnt vmcnt({ne})')
    if E: k.tc(5)
    k('s_barrier')
    if E: k.tc(6)
    F.row_consts_read(k,L_RC)
    F.w_read_lds(k,L_WR)
    if E: k.tc(7)
    F.row_compute_regs(k,L_RST)
    if E: k.tc(8)
    F.row_write_ex(k,L_RST)
    k('s_waitcnt lgkmcnt(0)')
    if E: k.tc(10)
    k('s_barrier')
    if E: k.tc(11)
    def st(): F.xw_store2(k,L_RST)
    vm.issue('XS',st,4)
    if E:
        k.tc(12); k.ts_flush(); k('s_endpgm')

def lds_count_last(k, cnt_off, target, do):
    lab=k.label('cl')
    k(f'v_mov_b32 v5, {L_CNT+cnt_off}'); k('v_mov_b32 v6, 1'); k('s_mov_b64 s[58:59], exec'); k('s_mov_b64 exec, 1')
    k('ds_add_rtn_u32 v7, v5, v6'); k('s_waitcnt lgkmcnt(0)'); k('s_mov_b64 exec, s[58:59]')
    k('v_readfirstlane_b32 s55, v7'); k(f's_cmp_lg_u32 s55, {target-1}'); k(f's_cbranch_scc1 {lab}')
    do()
    k(f'{lab}:')

def build(opts):
    k=G(opts)
    prologue(k)
    isKV=k.label('KV'); join=k.label('JQ')
    setup_dma(k)
    k(f's_cmp_eq_u32 s{S_HG}, 0'); k(f's_cbranch_scc1 {isKV}')
    def fx_hook():
        labP=k.label('FX'); k(f's_cmp_lg_u32 s{S_WAVE}, 0'); k(f's_cbranch_scc1 {labP}')
        k('s_mov_b32 s74, s2'); set_flag(k,WS_FX,74); k.ts(15); k(f'{labP}:')
    vm=VM()
    vm.issue('E',lambda: F.early_issue(k,L_RST,L_RC,83968),6)
    if opts.get('pf'): vm.issue('PF',lambda: code_prefetch(k))
    vm.issue('G',lambda: dma_lin(k,S_GW,10,L_GW))
    for p in range(2):
        for t,f in ops_x(k,p,False)+ops_w(k,p,False): vm.issue(t,f)
    k('s_waitcnt lgkmcnt(0)'); k(f's_add_u32 s{S_TAG}, s{S_TAG}, 1')
    k.ts(1)
    early_phase(k,False,vm)
    k.ts(2)
    P=lambda p: ops_x(k,p,False)+ops_w(k,p,False)
    sched=merge(spread(P(2),[0,1,2,3,4]), spread(P(3),[5,6,7,8,9,10]), spread(P(4),[13,14,15,16,17,18]))
    need=[None]+[(f'X{p}',f'W{p}') for p in range(1,5)]
    q_proj_all(k,False,vm,sched,('X0','W0'),need,post={1:fx_hook})
    k(f's_branch {join}')
    k(f'{isKV}:')
    vm=VM()
    vm.issue('E',lambda: F.early_issue(k,L_RST,L_RC,69632),6)
    if opts.get('pf'): vm.issue('PF',lambda: code_prefetch(k))
    vm.issue('G',lambda: dma_lin(k,S_GW,10,L_GW))
    vm.issue('WK',lambda: dma_lin(k,S_WK,200,L_WKV),4); vm.issue('WV',lambda: dma_lin(k,S_WV,200,L_WKV+25600),4)
    for p in range(4):
        for t,f in ops_x(k,p,True): vm.issue(t,f)
    k('s_waitcnt lgkmcnt(0)'); k(f's_add_u32 s{S_TAG}, s{S_TAG}, 1')
    k.ts(1)
    early_phase(k,True,vm)
    for t,f in ops_x(k,4,True): vm.issue(t,f)
    kv_proj(k,vm)
    k.ts(2)
    def hook():
        labP=k.label('P')
        k(f's_cmp_lg_u32 s{S_WAVE}, 0'); k(f's_cbranch_scc1 {labP}')
        k(f's_lshl_b32 s54, s{S_RB}, 2'); k(f's_add_u32 s54, s54, {WS_FKV}')
        k(f'v_mov_b32 v5, s{S_TAG}'); k('v_lshlrev_b32 v6, 7, v1'); k('s_mov_b64 exec, 0xff')
        k(f'buffer_store_dword v5, v6, {WS}, s54 offen sc1'); k('s_mov_b64 exec, -1')
        k(f'{labP}:')
        fx_hook()
    vm=VM(); vm.L+=['W0']*3+['W1']*3+['ST']
    Wp=lambda p: ops_w(k,p,True)
    sched=merge(spread(Wp(2),[0,1,2]), spread(Wp(3),[5,6,7]), spread(Wp(4),[13,14,15]))
    need=[None]+[(f'W{p}',) for p in range(1,5)]
    q_proj_all(k,True,vm,sched,('ST',),need,first_hook=hook)
    k(f'{join}:')
    q_finalize(k)
    k('s_nop 1'); k('v_readlane_b32 s50, v54, 31')
    if opts.get('stop1'): k.tc(13)
    k('s_barrier')
    if opts.get('stop1'):
        k.tc(14); k.ts_flush(); k(f'{NAME}_end:'); k('s_endpgm'); k.L.append(T.table_text(f'{NAME}_tbl')+f'{NAME}_tblend:\n'); return k
    k.ts(4)
    if opts.get('stop1'):
        k.ts_flush(); k(f'{NAME}_end:'); k('s_endpgm'); k.L.append(T.table_text(f'{NAME}_tbl')+f'{NAME}_tblend:\n'); return k
    k(f's_lshl_b32 s51, s{S_WAVE}, 10'); k('v_lshlrev_b32 v3, 4, v1'); k(f'v_add_u32 v3, s51, v3'); k(f'ds_write_b128 v3, v[48:51] offset:{L_Q1}')
    k(f's_lshl_b32 s51, s{S_WAVE}, 8'); k('v_lshlrev_b32 v4, 3, v1'); k(f'v_add_u32 v4, s51, v4')
    k('v_cmp_gt_u32 vcc, 32, v1'); k(f'v_mov_b32 v7, {L_ZERO-L_Q2}'); k('s_nop 0'); k('v_cndmask_b32 v4, v7, v4, vcc'); k(f'ds_write_b64 v4, v[52:53] offset:{L_Q2}')
    k(f's_lshl_b32 s51, s{S_WAVE}, 2'); k(f's_add_u32 s51, s51, {L_M}'); k('v_mov_b32 v5, s51'); k('v_mov_b32 v6, s50'); k('ds_write_b32 v5, v6')
    k(f's_lshr_b32 s51, s{S_WAVE}, 1'); k('s_lshl_b32 s51, s51, 8'); k(f's_and_b32 s52, s{S_WAVE}, 1'); k('s_lshl_b32 s52, s52, 7'); k('s_add_u32 s51, s51, s52'); k(f's_add_u32 s51, s51, {L_Z}')
    k('v_lshlrev_b32 v5, 2, v1'); k('v_add_u32 v5, s51, v5'); k('s_mov_b32 exec_hi, 0'); k(f'ds_write_b32 v5, v{QGA}'); k('s_mov_b64 exec, -1')
    for j in range(4): k(f'v_mov_b32 v{16+j}, 0')
    k('v_lshlrev_b32 v5, 4, v0'); k(f'v_add_u32 v5, {L_O}, v5')
    for j in range(5): k(f'ds_write_b128 v5, v[16:19] offset:{8192*j}')
    k('v_cmp_gt_u32 vcc, 128, v0'); k('s_and_saveexec_b64 s[56:57], vcc'); k(f'ds_write_b128 v5, v[16:19] offset:{8192*5}'); k('s_mov_b64 exec, s[56:57]')
    k(f'v_lshlrev_b32 v5, 2, v1'); k(f'v_add_u32 v5, {L_CNT}, v5'); k('s_mov_b64 exec, 0xffff'); k('ds_write_b32 v5, v16'); k('s_mov_b64 exec, -1')
    k('s_waitcnt lgkmcnt(0)')
    def tables_dma_4waves():
        per=(F.NCT+3)//4
        k('v_lshlrev_b32 v3, 4, v1'); k(f's_sub_u32 s50, s{S_WAVE}, 4')
        for m in range(per):
            k(f's_add_u32 s48, s50, {4*m}'); k(f's_min_u32 s48, s48, {F.NCT-1}'); k('s_lshl_b32 s48, s48, 10')
            k(f's_add_u32 s49, s48, {F.CT0*1024}'); k('v_add_u32 v4, s49, v3')
            k(f'v_mov_b32 v5, s{S_TBL+1}'); k(f'v_add_co_u32 v4, vcc, s{S_TBL}, v4'); k('v_addc_co_u32 v5, vcc, 0, v5, vcc')
            k(f's_add_u32 m0, s48, {L_WO}'); k('s_nop 0')
            k('global_load_lds_dwordx4 v[4:5], off')
    def lds_add(off):
        k(f'v_mov_b32 v5, {L_CNT+off}'); k('v_mov_b32 v6, 1'); k('s_mov_b64 exec, 1'); k('ds_add_u32 v5, v6'); k('s_mov_b64 exec, -1')
    def lds_wait(off, target):
        lp=k.label('lw'); lq=k.label('lq'); k(f'v_mov_b32 v5, {L_CNT+off}'); k(f'{lp}:'); k('ds_read_b32 v6, v5'); k('s_waitcnt lgkmcnt(0)'); k('v_readfirstlane_b32 s48, v6')
        k(f's_cmp_lt_u32 s48, {target}'); k(f's_cbranch_scc0 {lq}'); k('s_sleep 2'); k(f's_branch {lp}'); k(f'{lq}:')
    k('s_barrier')
    k.ts(5)
    lkv=k.label('kv'); ljoin=k.label('kj'); lno=k.label('noc'); l7=k.label('w7'); l3=k.label('w3a'); lw=k.label('lw2')
    k(f's_cmp_lt_u32 s{S_WAVE}, 2'); k(f's_cbranch_scc0 {lkv}')
    k('v_lshlrev_b32 v6, 4, v1'); k(f's_mov_b32 s53, {WS_FX}')
    k(f'buffer_load_dwordx4 v[8:11], v6, {WS}, s53 offen sc1')
    half=F.NCT//2
    k('v_lshlrev_b32 v3, 4, v1'); k(f's_mul_i32 s48, s{S_WAVE}, {half*1024}'); k(f's_add_u32 s49, s48, {F.CT0*1024}'); k('v_add_u32 v3, s49, v3')
    k(f'v_mov_b32 v5, s{S_TBL+1}'); k(f'v_add_co_u32 v4, vcc, s{S_TBL}, v3'); k('v_addc_co_u32 v5, vcc, 0, v5, vcc')
    for n in range(half):
        k(f's_add_u32 m0, s48, {L_WO+1024*n}')
        if n:
            k('v_add_co_u32 v4, vcc, 0x400, v4'); k('v_addc_co_u32 v5, vcc, 0, v5, vcc')
        else: k('s_nop 0')
        k('global_load_lds_dwordx4 v[4:5], off')
    k(f's_waitcnt vmcnt({half})')
    for j in range(4): k(f'v_xor_b32 v{8+j}, s{S_TAG}, v{8+j}')
    k('v_or_b32 v8, v8, v9'); k('v_or_b32 v10, v10, v11'); k('v_or_b32 v8, v8, v10'); k('v_cmp_ne_u32 vcc, 0, v8')
    lok=k.label('fxok'); k(f's_cbranch_vccz {lok}')
    k(f's_mov_b32 s53, {WS_FX}'); poll_flags(k,'s53',64,4,sleep=8)
    k(f'{lok}:')
    lab=k.label('ep'); k('s_cmp_lg_u32 s2, 0'); k(f's_cbranch_scc1 {lab}'); k(f's_cmp_lg_u32 s{S_WAVE}, 0'); k(f's_cbranch_scc1 {lab}'); k('s_mov_b32 s60, 0'); set_flag(k,WS_EPOCH,60); k(f'{lab}:')
    lhas=k.label('has'); lskip=k.label('skp')
    k(f's_cmp_eq_u32 s{S_WAVE}, 0'); k(f's_cbranch_scc1 {lhas}')
    k(f's_cmp_lt_u32 s{S_COL}, 65'); k(f's_cbranch_scc1 {lhas}')
    k('s_waitcnt vmcnt(0)'); lds_add(28)
    k(f's_branch {lno}')
    k(f'{lhas}:')
    k(f's_lshl_b32 s61, s{S_WAVE}, 8'); k(f's_add_u32 s61, s61, s{S_COL}')
    k(f's_mul_i32 s62, s{S_WAVE}, {L_YS1-L_YS0}'); k(f's_add_u32 s62, s62, {L_YS0}')
    F.col_issue(k,61)
    k('s_waitcnt vmcnt(16)'); lds_add(28)
    k('s_waitcnt vmcnt(0)')
    lds_wait(28,2)
    k.ts(13)
    F.col_fft(k,61,L_WO,None)
    k.ts(14)
    k(f'{lno}:')
    lds_wait(24,1)
    load_kv(k)
    k('s_waitcnt vmcnt(32)')
    k(f's_mul_i32 s61, s{S_WAVE}, {WS_FY2-WS_FY}'); k(f's_add_u32 s61, s61, {WS_FY}')
    k(f's_lshl_b32 s54, s2, 2'); k('s_add_u32 s54, s54, s61')
    k(f'v_mov_b32 v5, s{S_TAG}'); k('v_mov_b32 v6, 0'); k('s_mov_b64 exec, 1')
    k(f'buffer_store_dword v5, v6, {WS}, s54 offen sc1'); k('s_mov_b64 exec, -1')
    lds_add(4)
    k(f's_branch {ljoin}')
    k(f'{lkv}:')
    k(f's_cmp_eq_u32 s{S_WAVE}, 7'); k(f's_cbranch_scc1 {l7}')
    k(f's_cmp_eq_u32 s{S_WAVE}, 3'); k(f's_cbranch_scc0 {lw}')
    k('v_lshlrev_b32 v3, 4, v1')
    fl=[F.IC_FIRST+i for i in range(F.IC_N)]+[T.FR[x] for x in ('c_t32c0','c_t32n0','c_t32c1','c_t32n1')]
    for i,fr in enumerate(fl):
        k(f'v_add_u32 v4, {fr*1024}, v3'); k(f'v_mov_b32 v5, s{S_TBL+1}'); k(f'v_add_co_u32 v4, vcc, s{S_TBL}, v4'); k('v_addc_co_u32 v5, vcc, 0, v5, vcc')
        k(f's_mov_b32 m0, {L_IC+1024*i}'); k('s_nop 0'); k('global_load_lds_dwordx4 v[4:5], off')
    k(f'{lw}:')
    lds_wait(24,1)
    lk2=k.label('lk2'); k(f's_branch {lk2}')
    k(f'{l7}:')
    k('s_and_b32 s53, s2, 7'); k('s_lshl_b32 s53, s53, 7'); k(f's_add_u32 s53, s53, {WS_FKV}'); poll_flags(k,'s53',32,sleep=2)
    lds_add(24)
    k(f'{lk2}:')
    load_kv(k)
    k(f'{ljoin}:')
    k('v_lshlrev_b32 v5, 3, v1'); k(f's_mov_b32 s48, {WS_KM}')
    k(f'buffer_load_dwordx2 v[6:7], v5, {WS}, s48 offen sc1')
    k(f'v_mov_b32 v5, {L_M}'); k('ds_read_b128 v[12:15], v5'); k('ds_read_b128 v[16:19], v5 offset:16')
    attn_addr(k)
    k('s_waitcnt vmcnt(0) lgkmcnt(0)')
    k.ts(6); k.tc(10)
    lab=k.label('c3'); k(f's_cmp_lg_u32 s{S_WAVE}, 3'); k(f's_cbranch_scc1 {lab}'); lds_add(20); k(f'{lab}:')
    k('v_max_f32 v12, v12, v13'); k('v_max_f32 v14, v14, v15'); k('v_max_f32 v16, v16, v17'); k('v_max_f32 v18, v18, v19')
    k('v_max_f32 v12, v12, v14'); k('v_max_f32 v16, v16, v18'); k('v_max_f32 v12, v12, v16')
    for v in (6,7):
        k(f'v_mov_b32 v10, v{v}'); k('s_nop 1'); k(f'v_permlane32_swap_b32 v{v}, v10'); k('s_nop 1'); k(f'v_max_f32 v{v}, v{v}, v10'); wave_max32(k,v)
    k('s_nop 0'); k('v_readlane_b32 s48, v6, 31'); k('v_readlane_b32 s49, v7, 31'); k('s_nop 1')
    k('v_mul_f32 v12, s48, v12')
    k(f's_mov_b32 s{S_QT}, s{S_WAVE}')
    lend=k.label('aend')
    attn_pairs(k,4)
    k.tc(11); k.ts(12)
    l3=k.label('w3'); l2=k.label('w2')
    k(f's_cmp_eq_u32 s{S_WAVE}, 3'); k(f's_cbranch_scc1 {l3}')
    k(f's_cmp_eq_u32 s{S_WAVE}, 2'); k(f's_cbranch_scc1 {l2}')
    k(f's_branch {lend}')
    k(f'{l3}:')
    lds_wait(4,2)
    k(f's_mov_b32 s62, s{S_WAVE}')
    k(f's_mov_b32 s{S_WAVE}, 0')
    dma_wo(k,range(0,85),85,step=1)
    k(f's_mov_b32 s{S_WAVE}, s62')
    k(f's_branch {lend}')
    k(f'{l2}:')
    lp=k.label('pyy'); dn=k.label('pyd')
    k('v_lshlrev_b32 v4, 4, v1'); k(f's_mov_b32 s53, {WS_FY}')
    k(f'{lp}:')
    k(f'buffer_load_dwordx4 v[6:9], v4, {WS}, s53 offen sc1'); k(f'buffer_load_dwordx4 v[10:13], v4, {WS}, s53 offen offset:1024 sc1'); k('s_waitcnt vmcnt(0)')
    for j in range(8): k(f'v_xor_b32 v{6+j}, s{S_TAG}, v{6+j}')
    for j in range(1,8): k(f'v_or_b32 v6, v6, v{6+j}')
    k('v_cmp_ne_u32 vcc, 0, v6'); k(f's_cbranch_vccz {dn}'); k('s_sleep 10'); k(f's_branch {lp}'); k(f'{dn}:')
    lds_wait(20,1)
    k.ts(13); F.row_ifft_duty(k,L_IST,L_IC); k.ts(14)
    k(f's_mov_b32 s62, s{S_WAVE}'); k(f's_mov_b32 s{S_WAVE}, 0')
    dma_wo(k,range(85,100),100,step=1)
    k(f's_mov_b32 s{S_WAVE}, s62')
    k(f'{lend}:')
    k('s_waitcnt vmcnt(0) lgkmcnt(0)'); k('s_barrier')
    k.ts(7)
    def norm_task(tau_sgpr):
        k('v_lshrrev_b32 v3, 5, v1'); k(f'v_mul_u32_u24 v3, {OT}, v3'); k('v_and_b32 v4, 31, v1'); k('v_lshl_add_u32 v3, v4, 3, v3'); k(f'v_add_u32 v3, {L_O}, v3')
        for a in range(2):
            k(f's_lshl_b32 s50, s{tau_sgpr}, 1'); k(f's_add_u32 s50, s50, {a}')
            k('s_mul_i32 s51, s50, 52'); k('s_lshr_b32 s51, s51, 8'); k('s_mul_i32 s52, s51, 5'); k('s_sub_u32 s52, s50, s52')
            k(f's_mul_i32 s51, s51, {2*OT}'); k('v_add_u32 v4, s51, v3')
            k(f'ds_read_b64 v[{32+2*a}:{33+2*a}], v4 offset:{20*256}')
            k('s_lshl_b32 s52, s52, 10'); k('v_add_u32 v4, s52, v4')
            for i in range(4): k(f'ds_read_b64 v[{40+8*a+2*i}:{41+8*a+2*i}], v4 offset:{256*i}')
        k('s_waitcnt lgkmcnt(0)')
        for a in range(2):
            k(f'v_cvt_f32_f64 v{28+a}, v[{32+2*a}:{33+2*a}]')
            for i in range(4): k(f'v_cvt_f32_f64 v{56+4*a+i}, v[{40+8*a+2*i}:{41+8*a+2*i}]')
        k('v_rcp_f32 v28, v28'); k('v_rcp_f32 v29, v29'); k('s_nop 0')
        for a in range(2):
            for i in range(4): k(f'v_mul_f32 v{56+4*a+i}, v{56+4*a+i}, v{28+a}')
        for j in range(4): k(f'v_cvt_pk_bf16_f32 v{64+j}, v{56+2*j}, v{57+2*j}')
        k(f's_mul_i32 s50, s{S_HG}, 10'); k(f's_add_u32 s50, s50, s{tau_sgpr}')
        k('s_lshr_b32 s51, s50, 2'); k('s_and_b32 s52, s50, 3'); k('s_lshl_b32 s51, s51, 10'); k('s_lshl_b32 s52, s52, 8'); k('s_add_u32 s51, s51, s52')
        k(f's_mul_i32 s52, s{S_RB}, {4*20*1024}'); k('s_add_u32 s51, s51, s52'); k(f's_add_u32 s51, s51, {WS_O}')
        k('v_lshrrev_b32 v5, 4, v1'); k(f'v_mul_u32_u24 v5, {20*1024}, v5'); k('v_and_b32 v6, 15, v1'); k('v_lshl_add_u32 v5, v6, 4, v5')
        k(f'buffer_store_dwordx4 v[64:67], v5, {WS}, s51 offen sc1')
    k(f's_mov_b32 s60, s{S_WAVE}'); norm_task(60)
    lab=k.label('n2'); k(f's_cmp_ge_u32 s{S_WAVE}, 2'); k(f's_cbranch_scc1 {lab}'); k(f's_add_u32 s60, s{S_WAVE}, 8'); norm_task(60); k(f'{lab}:')
    def setFO():
        k(f's_lshl_b32 s60, s{S_HG}, 5'); k(f's_add_u32 s60, s60, s{S_RB}'); set_flag(k,WS_FO,60)
    k('s_waitcnt vmcnt(0)'); lds_count_last(k,8,8,setFO)
    lab=k.label('nf'); lab2=k.label('nf2')
    k(f's_cmp_lg_u32 s{S_WAVE}, 0'); k(f's_cbranch_scc1 {lab}')
    lp=k.label('po'); dn=k.label('pod')
    k('s_mov_b64 exec, 0xff'); k('v_lshlrev_b32 v4, 7, v1'); k(f's_lshl_b32 s53, s{S_RB}, 2'); k(f's_add_u32 s53, s53, {WS_FO}')
    k(f'{lp}:'); k(f'buffer_load_dword v5, v4, {WS}, s53 offen sc1'); k('s_waitcnt vmcnt(0)'); k(f'v_cmp_ne_u32 vcc, s{S_TAG}, v5')
    k(f's_cbranch_vccz {dn}'); k('s_sleep 4'); k(f's_branch {lp}'); k(f'{dn}:'); k('s_mov_b64 exec, -1')
    k(f's_branch {lab2}')
    k(f'{lab}:')
    k(f's_cmp_lg_u32 s{S_WAVE}, 1'); k(f's_cbranch_scc1 {lab2}')
    k(f's_lshr_b32 s48, s{S_RB}, 4'); k('s_lshl_b32 s48, s48, 1'); k(f's_bfe_u32 s49, s{S_RB}, 0x10002'); k('s_add_u32 s48, s48, s49')
    k('s_lshl_b32 s53, s48, 8'); k(f's_add_u32 s53, s53, {WS_FB}'); poll_flags(k,'s53',64,sleep=6)
    k(f'{lab2}:')
    k('s_barrier')
    k.ts(8)
    OF=16; AC=64; AF=96
    k(f's_and_b32 s48, s{S_WAVE}, 3'); k(f's_lshr_b32 s49, s{S_WAVE}, 2')
    k(f's_lshl_b32 s50, s{S_RB}, 2'); k('s_add_u32 s50, s50, s48'); k('s_mul_i32 s50, s50, 20'); k('s_mul_i32 s51, s49, 10'); k('s_add_u32 s50, s50, s51'); k('s_lshl_b32 s50, s50, 10'); k(f's_add_u32 s50, s50, {WS_O}')
    k('v_lshlrev_b32 v3, 4, v1')
    for t in range(10):
        k(f'buffer_load_dwordx4 v[{OF+4*t}:{OF+4*t+3}], v3, {WS}, s50 offen sc1'); k('s_add_u32 s50, s50, 1024')
    k(f's_lshl_b32 s50, s{S_RB}, 6'); k('s_lshl_b32 s51, s48, 4'); k('s_add_u32 s50, s50, s51')
    k('v_and_b32 v4, 15, v1'); k('v_add_u32 v4, s50, v4')
    k('v_mul_u32_u24 v5, 1280, v4'); k('v_lshrrev_b32 v6, 4, v1'); k('v_lshl_add_u32 v5, v6, 3, v5'); k(f's_mul_i32 s51, s{S_HG}, 160')
    k(f's_add_u32 s52, s51, {WS_B}')
    for mu in range(5): k(f'buffer_load_dwordx2 v[{AF+40+2*mu}:{AF+41+2*mu}], v5, {WS}, s52 offen offset:{32*mu} sc1')
    k('v_and_b32 v8, 15, v1'); k('s_lshl_b32 s52, s48, 6'); k('v_lshl_add_u32 v8, v8, 2, s52'); k(f'v_add_u32 v8, {L_Z}, v8')
    for hd in range(4): k(f'ds_read_b32 v{10+hd}, v8 offset:{256*hd}')
    k('v_and_b32 v7, 15, v1'); k('v_lshrrev_b32 v6, 2, v7'); k(f'v_mul_u32_u24 v9, {WOSUB}, v6'); k('v_and_b32 v14, 1, v6'); k('v_lshl_add_u32 v9, v14, 5, v9'); k('v_lshrrev_b32 v14, 1, v6'); k('v_lshl_add_u32 v9, v14, 7, v9')
    k('v_lshrrev_b32 v14, 4, v1'); k('v_mul_u32_u24 v14, 320, v14'); k('v_add_u32 v9, v9, v14'); k('v_and_b32 v7, 3, v7'); k('v_lshl_add_u32 v9, v7, 3, v9')
    k('s_mul_i32 s53, s49, 12800'); k(f's_add_u32 s53, s53, {L_WO}'); k('v_add_u32 v9, s53, v9')
    k('s_waitcnt lgkmcnt(0)')
    k('v_add_f32 v10, v10, v11'); k('v_add_f32 v12, v12, v13'); k('v_add_f32 v10, v10, v12')
    k(f'v_mul_f32 v10, {f2u(-1.4426950408889634):#x}, v10'); k('v_exp_f32 v10, v10'); k('s_nop 0'); k('v_add_f32 v10, 1.0, v10'); k('v_rcp_f32 v8, v10')
    def rdA(t):
        b=t&1
        for mu in range(5):
            k(f'ds_read_b64_tr_b16 v[{AF+20*b+4*mu}:{AF+20*b+4*mu+1}], v9 offset:{t*1280+mu*32}')
            k(f'ds_read_b64_tr_b16 v[{AF+20*b+4*mu+2}:{AF+20*b+4*mu+3}], v9 offset:{t*1280+mu*32+160}')
    rdA(0)
    for t in range(10):
        if t+1<10:
            rdA(t+1); k(f's_waitcnt vmcnt({5+9-t}) lgkmcnt(10)')
        else: k('s_waitcnt vmcnt(5) lgkmcnt(0)')
        b=t&1
        for mu in range(5):
            c='0' if t==0 else f'v[{AC+4*mu}:{AC+4*mu+3}]'
            k(f'v_mfma_f32_16x16x32_bf16 v[{AC+4*mu}:{AC+4*mu+3}], v[{AF+20*b+4*mu}:{AF+20*b+4*mu+3}], v[{OF+4*t}:{OF+4*t+3}], {c}')
    k('s_nop 9')
    k(f's_mul_i32 s52, s48, {5*1024}'); k('v_lshlrev_b32 v7, 4, v1'); k('v_add_u32 v7, s52, v7'); k(f'v_add_u32 v7, {L_O}, v7')
    labA=k.label('ra'); labB=k.label('rb')
    k('s_cmp_eq_u32 s49, 0'); k(f's_cbranch_scc1 {labA}')
    for mu in range(5): k(f'ds_write_b128 v7, v[{AC+4*mu}:{AC+4*mu+3}] offset:{1024*mu}')
    k('s_waitcnt lgkmcnt(0)'); k('s_barrier'); k(f's_branch {labB}')
    k(f'{labA}:')
    k('s_barrier')
    for mu in range(5): k(f'ds_read_b128 v[{AF+4*mu}:{AF+4*mu+3}], v7 offset:{1024*mu}')
    k('s_waitcnt vmcnt(0) lgkmcnt(0)')
    for r in range(20): k(f'v_add_f32 v{AC+r}, v{AC+r}, v{AF+r}')
    k('v_sub_f32 v9, 1.0, v8')
    for mu in range(5):
        for jj in range(2):
            w=AF+40+2*mu+jj
            k(f'v_lshlrev_b32 v10, 16, v{w}'); k(f'v_and_b32 v11, 0xffff0000, v{w}')
            k(f'v_mul_f32 v10, v10, v9'); k('v_mul_f32 v11, v11, v9')
            k(f'v_fma_f32 v{AC+4*mu+2*jj}, v{AC+4*mu+2*jj}, v8, v10'); k(f'v_fma_f32 v{AC+4*mu+2*jj+1}, v{AC+4*mu+2*jj+1}, v8, v11')
    for j in range(10): k(f'v_cvt_pk_bf16_f32 v{AF+j}, v{AC+2*j}, v{AC+2*j+1}')
    for mu in range(5): k(f'buffer_store_dwordx2 v[{AF+2*mu}:{AF+2*mu+1}], v5, s[{S_OUT}:{S_OUT+3}], s51 offen offset:{32*mu}')
    k(f'{labB}:')
    k.ts(9)
    k.ts_flush()
    k(f'{NAME}_end:')
    k('s_endpgm')
    k.L.append(T.table_text(f'{NAME}_tbl')+f'{NAME}_tblend:\n')
    return k

if __name__=='__main__':
    opts={a:True for a in sys.argv[2:]}
    emit([build(opts)],sys.argv[1],single=True)
```

```python
from asmgen import *
import tables as T
from fft2 import TL, pk, cmul_fwd, cmul_inv, set_flag
WS_FX=0x2000; WS_FY=0x3000; WS_FB=0x4000; WS_FY2=0x7000
WS_XW=0x400000; PL=5184; XB=2*PL; XWB=2*XB; RS=1296; WS_Y1=0xA00000; WS_B=0xD00000
S_X=4; S_WR=24; S_WI=28; S_WS=40; S_WAVE=44; S_TAG=47; S_TBL=72
WS=f's[{S_WS}:{S_WS+3}]'
RC=100
B1C,B1S,TC,TS,A2R,A2I,A2X=RC,RC+8,RC+16,RC+28,RC+40,RC+44,RC+48
WL=160

def row_ops(k, L_RST, L_RC):
    ops=[]
    def setup_row():
        k('s_lshr_b32 s48, s2, 6'); k('s_and_b32 s49, s2, 63')
        k('s_lshr_b32 s50, s48, 1'); k('s_and_b32 s51, s48, 1'); k('s_lshl_b32 s50, s50, 4'); k('s_lshl_b32 s51, s51, 2'); k('s_add_u32 s50, s50, s51')
        k(f's_lshr_b32 s51, s{S_WAVE}, 2'); k('s_lshl_b32 s51, s51, 3'); k('s_add_u32 s50, s50, s51'); k(f's_and_b32 s51, s{S_WAVE}, 3'); k('s_add_u32 s50, s50, s51')
        k('s_lshl_b32 s50, s50, 6'); k('s_add_u32 s50, s50, s49'); k('s_mul_i32 s87, s50, 1280')
        k('v_lshlrev_b32 v99, 4, v1')
    def r0():
        setup_row()
        k(f's_mul_i32 s51, s{S_WAVE}, 1280'); k(f's_add_u32 m0, s51, {L_RST}'); k('s_nop 0')
        k(f'buffer_load_dwordx4 v99, s[{S_X}:{S_X+3}], s87 offen lds')
    def r1():
        k(f's_mul_i32 s51, s{S_WAVE}, 1280'); k(f's_add_u32 m0, s51, {L_RST+1024}'); k('s_add_u32 s50, s87, 1024'); k('s_mov_b64 exec, 0xffff')
        k(f'buffer_load_dwordx4 v99, s[{S_X}:{S_X+3}], s50 offen lds'); k('s_mov_b64 exec, -1')
    ops+= [('R',r0),('R',r1)]
    def cst(m):
        def f():
            k(f's_add_u32 s48, s{S_WAVE}, {8*m}'); k(f's_min_u32 s48, s48, 12'); k('s_lshl_b32 s48, s48, 10')
            k('v_add_u32 v4, s48, v99')
            k(f'v_mov_b32 v5, s{S_TBL+1}'); k(f'v_add_co_u32 v4, vcc, s{S_TBL}, v4'); k('v_addc_co_u32 v5, vcc, 0, v5, vcc')
            k(f's_add_u32 m0, s48, {L_RC}'); k('s_nop 0')
            k('global_load_lds_dwordx4 v[4:5], off')
        return f
    ops+= [('C',cst(0)),('C',cst(1))]
    def wsetup():
        k('s_and_b32 s48, s2, 31'); k('s_lshr_b32 s49, s2, 5'); k('s_lshl_b32 s50, s49, 8'); k('s_add_u32 s50, s50, s48'); k('s_mul_i32 s88, s50, 642')
        k('v_min_u32 v98, 0x140, v0'); k('v_lshlrev_b32 v98, 1, v98')
    def wl(jj,im):
        def f():
            if jj==0 and im==0: wsetup()
            k(f's_add_u32 s52, s88, {jj*32*642}')
            k(f'buffer_load_ushort v{WL+8*im+jj}, v98, s[{S_WI if im else S_WR}:{(S_WI if im else S_WR)+3}], s52 offen')
        return f
    for jj in range(8):
        ops+= [('WL',wl(jj,0)),('WL',wl(jj,1))]
    return ops

def frags_dma(k, first, count, L_dst):
    per=(count+7)//8
    k('v_lshlrev_b32 v3, 4, v1')
    for m in range(per):
        k(f's_add_u32 s48, s{S_WAVE}, {8*m}'); k(f's_min_u32 s48, s48, {count-1}'); k('s_lshl_b32 s48, s48, 10')
        k(f's_add_u32 s49, s48, {first*1024}'); k('v_add_u32 v4, s49, v3')
        k(f'v_mov_b32 v5, s{S_TBL+1}'); k(f'v_add_co_u32 v4, vcc, s{S_TBL}, v4'); k('v_addc_co_u32 v5, vcc, 0, v5, vcc')
        k(f's_add_u32 m0, s48, {L_dst}'); k('s_nop 0')
        k('global_load_lds_dwordx4 v[4:5], off')
    return per

def row_consts_read(k, L_RC):
    k('v_lshlrev_b32 v3, 4, v1'); k(f'v_add_u32 v3, {L_RC}, v3')
    m={'r_b1c0':B1C,'r_b1s0':B1S,'r_b1c1':B1C+4,'r_b1s1':B1S+4,'r_tc0':TC,'r_ts0':TS,'r_tc1':TC+4,'r_ts1':TS+4,'r_tc2':TC+8,'r_ts2':TS+8,'r_a2r0':A2R,'r_a2i0':A2I,'r_a2x1':A2X}
    for nm,dst in m.items(): k(f'ds_read_b128 v[{dst}:{dst+3}], v3 offset:{T.FR[nm]*1024}')

def row_compute_regs(k, L_RST):
    XA=16; DR=24; DI=40; TM=56; TR=80; TI=86; D2=176
    k('v_and_b32 v3, 31, v1'); k('v_lshrrev_b32 v4, 5, v1')
    k('v_and_b32 v8, 15, v1'); k('v_lshrrev_b32 v9, 2, v8'); k('v_lshl_add_u32 v9, v4, 3, v9'); k('v_mul_u32_u24 v9, 40, v9')
    k('v_and_b32 v8, 3, v8'); k('v_lshl_add_u32 v9, v8, 3, v9'); k('v_bfe_u32 v8, v1, 4, 1'); k('v_lshl_add_u32 v9, v8, 5, v9')
    k(f's_mul_i32 s51, s{S_WAVE}, {RS}'); k(f's_add_u32 s51, s51, {L_RST}'); k('v_add_u32 v9, s51, v9')
    for tau in range(2):
        for q in range(2): k(f'ds_read_b64_tr_b16 v[{XA+4*tau+2*q}:{XA+4*tau+2*q+1}], v9 offset:{tau*640+q*160}')
    k('v_cmp_eq_u32 s[62:63], 0, v4')
    k('s_waitcnt lgkmcnt(0)')
    k(f'v_mfma_f32_32x32x16_bf16 v[{DR}:{DR+15}], v[{XA}:{XA+3}], v[{B1C}:{B1C+3}], 0')
    k(f'v_mfma_f32_32x32x16_bf16 v[{DI}:{DI+15}], v[{XA}:{XA+3}], v[{B1S}:{B1S+3}], 0')
    k(f'v_mfma_f32_32x32x16_bf16 v[{DR}:{DR+15}], v[{XA+4}:{XA+7}], v[{B1C+4}:{B1C+7}], v[{DR}:{DR+15}]')
    k(f'v_mfma_f32_32x32x16_bf16 v[{DI}:{DI+15}], v[{XA+4}:{XA+7}], v[{B1S+4}:{B1S+7}], v[{DI}:{DI+15}]')
    k('s_nop 15')
    for r in range(0,12,2): cmul_fwd(k,TM+r,TM+12+r,DR+r,DI+r,TC+r,TS+r)
    for jj in range(6):
        k(f'v_cvt_pk_bf16_f32 v{TR+jj}, v{TM+2*jj}, v{TM+2*jj+1}'); k(f'v_cvt_pk_bf16_f32 v{TI+jj}, v{TM+12+2*jj}, v{TM+13+2*jj}')
    for jj in (4,5):
        k(f'v_cndmask_b32 v{TR+jj}, 0, v{TR+jj}, s[62:63]'); k(f'v_cndmask_b32 v{TI+jj}, 0, v{TI+jj}, s[62:63]')
    k('s_nop 1')
    d=D2
    k(f'v_mfma_f32_32x32x16_bf16 v[{d}:{d+15}], v[{A2R}:{A2R+3}], v[{TR}:{TR+3}], 0')
    k(f'v_mfma_f32_32x32x16_bf16 v[{d}:{d+15}], v[{A2I}:{A2I+3}], v[{TI}:{TI+3}], v[{d}:{d+15}]')
    k(f'v_mfma_f32_32x32x8_bf16 v[{d}:{d+15}], v[{A2X}:{A2X+1}], v[{TR+4}:{TR+5}], v[{d}:{d+15}]')
    k(f'v_mfma_f32_32x32x8_bf16 v[{d}:{d+15}], v[{A2X+2}:{A2X+3}], v[{TI+4}:{TI+5}], v[{d}:{d+15}]')
    k('s_nop 15')
    for g in range(3):
        for m in range(2):
            k(f'v_cvt_pk_bf16_f32 v{TM+2*g+m}, v{d+4*g+2*m}, v{d+4*g+2*m+1}')

def row_write_ex(k, L_RST):
    TM=56
    k('v_and_b32 v3, 31, v1'); k('v_lshrrev_b32 v4, 5, v1')
    k('v_lshl_add_u32 v10, v4, 6, v3'); k('v_lshlrev_b32 v10, 2, v10'); k(f's_mul_i32 s51, s{S_WAVE}, {RS}'); k(f's_add_u32 s51, s51, {L_RST}'); k('v_add_u32 v10, s51, v10')
    for g in range(3):
        for m in range(2):
            if g==2 and m==0: k('s_mov_b32 exec_hi, 1')
            if g==2 and m==1: k('s_mov_b32 exec_hi, 0')
            k(f'ds_write_b32 v10, v{TM+2*g+m} offset:{(4*g+m)*128}')
    k('s_mov_b64 exec, -1')

def xw_store2(k, L_RST):
    k('v_cmp_gt_u32 vcc, 0x141, v0'); k('s_and_saveexec_b64 s[56:57], vcc')
    k('v_lshlrev_b32 v3, 2, v0'); k(f'v_add_u32 v3, {L_RST}, v3')
    for j in range(8): k(f'ds_read_b32 v{16+j}, v3 offset:{j*RS}')
    k('v_cmp_eq_u32 vcc, 0, v0'); k('v_mov_b32 v4, 0x140'); k('v_cmp_eq_u32 s[58:59], v4, v0'); k('s_or_b64 vcc, vcc, s[58:59]')
    k('v_mov_b32 v5, 1.0'); k('v_mov_b32 v6, 0.5'); k('v_cndmask_b32 v5, v5, v6, vcc')
    for jj in range(8):
        k(f'v_lshlrev_b32 v{WL+jj}, 16, v{WL+jj}'); k(f'v_lshlrev_b32 v{WL+8+jj}, 16, v{WL+8+jj}')
        k(f'v_mul_f32 v{WL+jj}, v{WL+jj}, v5'); k(f'v_mul_f32 v{WL+8+jj}, v{WL+8+jj}, v5')
        k(f'v_cvt_pk_bf16_f32 v{WL+jj}, v{WL+jj}, v{WL+8+jj}')
    k(f's_mul_i32 s50, s2, {XWB}'); k(f's_add_u32 s50, s50, {WS_XW}')
    k('v_lshlrev_b32 v4, 4, v0')
    k(f's_add_u32 s51, s50, {XB}'); k(f'buffer_store_dwordx4 v[{WL}:{WL+3}], v4, {WS}, s51 offen sc1')
    k(f's_add_u32 s51, s50, {XB+PL}'); k(f'buffer_store_dwordx4 v[{WL+4}:{WL+7}], v4, {WS}, s51 offen sc1')
    k('s_mov_b32 s52, 0x05040100'); k('s_mov_b32 s53, 0x07060302')
    k('s_waitcnt lgkmcnt(0)')
    for p in range(4):
        k(f'v_perm_b32 v{24+p}, v{17+2*p}, v{16+2*p}, s52'); k(f'v_perm_b32 v{28+p}, v{17+2*p}, v{16+2*p}, s53')
    k(f'buffer_store_dwordx4 v[24:27], v4, {WS}, s50 offen sc1')
    k(f's_add_u32 s51, s50, {PL}'); k(f'buffer_store_dwordx4 v[28:31], v4, {WS}, s51 offen sc1')
    k('s_mov_b64 exec, s[56:57]')
    return 4

def w_to_lds(k, L_EXW):
    k('v_cmp_gt_u32 vcc, 0x141, v0'); k('s_and_saveexec_b64 s[56:57], vcc')
    lab=k.label('xs'); k(f's_cbranch_execz {lab}')
    k('v_cmp_eq_u32 vcc, 0, v0'); k('v_mov_b32 v4, 0x140'); k('v_cmp_eq_u32 s[58:59], v4, v0'); k('s_or_b64 vcc, vcc, s[58:59]')
    k('v_mov_b32 v5, 1.0'); k('v_mov_b32 v6, 0.5'); k('v_cndmask_b32 v5, v5, v6, vcc')
    for jj in range(8):
        k(f'v_lshlrev_b32 v{WL+jj}, 16, v{WL+jj}'); k(f'v_lshlrev_b32 v{WL+8+jj}, 16, v{WL+8+jj}')
        k(f'v_mul_f32 v{WL+jj}, v{WL+jj}, v5'); k(f'v_mul_f32 v{WL+8+jj}, v{WL+8+jj}, v5')
        k(f'v_cvt_pk_bf16_f32 v{WL+jj}, v{WL+jj}, v{WL+8+jj}')
    k('v_lshlrev_b32 v3, 5, v0'); k(f'v_add_u32 v3, {L_EXW}, v3')
    k(f'ds_write_b128 v3, v[{WL}:{WL+3}]'); k(f'ds_write_b128 v3, v[{WL+4}:{WL+7}] offset:16')
    k(f'{lab}:'); k('s_mov_b64 exec, s[56:57]')
def xw_store(k, L_EX):
    k(f's_mul_i32 s50, s2, {XWB}'); k(f's_add_u32 s50, s50, {WS_XW}')
    k('v_lshlrev_b32 v3, 4, v0'); k(f'v_add_u32 v4, {L_EX}, v3')
    k('ds_read_b128 v[16:19], v4'); k('ds_read_b128 v[20:23], v4 offset:8192'); k('ds_read_b128 v[24:27], v4 offset:16384')
    k('s_waitcnt lgkmcnt(0)')
    k(f'buffer_store_dwordx4 v[16:19], v3, {WS}, s50 offen sc1')
    k('s_add_u32 s50, s50, 8192'); k(f'buffer_store_dwordx4 v[20:23], v3, {WS}, s50 offen sc1')
    k('s_add_u32 s50, s50, 8192'); k(f'v_cmp_gt_u32 vcc, {(2*XB-16384)//16}, v0'); k('s_and_saveexec_b64 s[56:57], vcc')
    k(f'buffer_store_dwordx4 v[24:27], v3, {WS}, s50 offen sc1')
    k('s_mov_b64 exec, s[56:57]')
    return 3

CT0=T.FR['c_t64c00']; CT1=T.FR['c_w2s13']+1; NCT=CT1-CT0
def col_issue(k, s_col):
    k.c('==== column FFT loads')
    XF=16; WW=48; D=80; TF=144; TB=176; TW=212
    k('v_and_b32 v3, 31, v1'); k('v_lshrrev_b32 v4, 5, v1')
    k(f's_lshl_b32 s48, s{s_col}, 13')
    k(f's_lshl_b32 s50, s{s_col}, 4'); k(f's_add_u32 s50, s50, {WS_XW}')
    k('v_lshl_add_u32 v8, v4, 6, v3'); k(f's_mov_b32 s51, {XWB}'); k('v_mul_lo_u32 v8, v8, s51')
    for u in range(2):
        for tau in range(2):
            for c in range(2):
                k(f's_add_u32 s49, s50, {(128*tau+32*u)*XWB+c*PL}')
                r=XF+16*u+8*c+4*tau
                k(f'buffer_load_dwordx4 v[{r}:{r+3}], v8, {WS}, s49 offen sc1')
    k('v_mul_lo_u32 v9, v3, s51'); k(f'v_mul_u32_u24 v10, {PL}, v4'); k('v_add_u32 v9, v9, v10')
    for tg in range(8):
        k(f's_add_u32 s49, s50, {tg*32*XWB+XB}')
        k(f'buffer_load_dwordx4 v[{WW+4*tg}:{WW+4*tg+3}], v9, {WS}, s49 offen sc1')

def col_fft(k, s_col, L_T, L_YS):
    k.c('==== column FFT duty')
    XF=16; WW=48; D=80; TF=144; TB=176; TW=212
    def toff(name): return (T.FR[name]-CT0)*1024
    k(f's_lshl_b32 s48, s{s_col}, 13')
    if k.o.get('tcol'): k.tc(0)
    k(f'v_lshlrev_b32 v10, 4, v1'); k(f'v_add_u32 v10, {L_T}, v10'); k('v_add_u32 v11, 0x8000, v10')
    def tr(dst,name):
        o=toff(name)
        if o<32768: k(f'ds_read_b128 v[{dst}:{dst+3}], v10 offset:{o}')
        else: k(f'ds_read_b128 v[{dst}:{dst+3}], v11 offset:{o-32768}')
    for tau in range(2):
        for x,nm in enumerate('csn'): tr(TB+12*tau+4*x,f'c_t32{nm}{tau}')
    def mf(d, a, b, first):
        c='0' if first else f'v[{d}:{d+15}]'
        k(f'v_mfma_f32_32x32x16_bf16 v[{d}:{d+15}], v[{a}:{a+3}], v[{b}:{b+3}], {c}')
    def twl(prefix,n):
        a,g=n>>2,n&3; b=TW+8*(n&1)
        tr(b,f'{prefix}c{a}{g}'); tr(b+4,f'{prefix}s{a}{g}')
    k('s_waitcnt lgkmcnt(0)')
    for u in range(2):
        dre=D+32*u; dim=dre+16
        for tau in range(2):
            xr=XF+16*u+4*tau; xi=XF+16*u+8+4*tau; C=TB+12*tau; S=C+4; N=C+8
            mf(dre,xr,C,tau==0); mf(dim,xi,C,tau==0); mf(dre,xi,S,False); mf(dim,xr,N,False)
    TT=TW+16
    def t64l(n):
        t,tau=n>>2,n&3; b=TB+12*(n%3)
        for x,nm in enumerate('csn'): tr(b+4*x,f'c_t64{nm}{t}{tau}')
    def twiddle_pack(prefix):
        for n in range(8):
            a,g=n>>2,n&3; b=TW+8*(n&1)
            dre=D+32*a; dim=dre+16
            k(f's_waitcnt lgkmcnt({2 if n<7 else 0})')
            for i in (0,2): cmul_fwd(k,TT+i,TT+4+i,dre+4*g+i,dim+4*g+i,b+i,b+4+i)
            if n+2<8: twl(prefix,n+2)
            st=2*a+(g>>1); o=2*(g&1)
            for jj in range(2):
                k(f'v_cvt_pk_bf16_f32 v{TF+4*st+o+jj}, v{TT+2*jj}, v{TT+2*jj+1}')
                k(f'v_cvt_pk_bf16_f32 v{TF+16+4*st+o+jj}, v{TT+4+2*jj}, v{TT+5+2*jj}')
    def stage64(data_is_A, pre=None):
        t64l(0); t64l(1)
        for n in range(8):
            t,tau=n>>2,n&3; b=TB+12*(n%3)
            if n+2<8:
                t64l(n+2); k('s_waitcnt lgkmcnt(6)')
            elif n+1<8: k('s_waitcnt lgkmcnt(3)')
            else: k('s_waitcnt lgkmcnt(0)')
            C=b; S=b+4; N=b+8
            dre=D+32*t; dim=dre+16; re=TF+4*tau; im=TF+16+4*tau
            if data_is_A: mf(dre,re,C,tau==0); mf(dim,im,C,tau==0); mf(dre,im,S,False); mf(dim,re,N,False)
            else: mf(dre,C,re,tau==0); mf(dim,C,im,tau==0); mf(dre,S,im,False); mf(dim,N,re,False)
    if k.o.get('tcol'): k.tc(1)
    twl('c_w1',0); twl('c_w1',1)
    k('s_nop 13')
    twiddle_pack('c_w1')
    if k.o.get('tcol'): k.tc(2)
    k('s_nop 1')
    stage64(False)
    k('s_waitcnt vmcnt(0)')
    if k.o.get('tcol'): k.tc(3)
    k('s_nop 15')
    for t in range(2):
        dre=D+32*t; dim=dre+16
        for g in range(4):
            w=WW+4*(4*t+g)
            for i in range(4):
                k(f'v_lshlrev_b32 v{TW+i}, 16, v{w+i}'); k(f'v_and_b32 v{TW+4+i}, 0xffff0000, v{w+i}')
            for i in (0,2):
                r=4*g+i
                pk(k,'mul',TT+i,dre+r,TW+i); pk(k,'mul',TT+4+i,dre+r,TW+4+i)
                pk(k,'fma',TT+i,dim+r,TW+4+i,TT+i,nega=True); pk(k,'fma',TT+4+i,dim+r,TW+i,TT+4+i)
            st=2*t+(g>>1); o=2*(g&1)
            for jj in range(2):
                k(f'v_cvt_pk_bf16_f32 v{TF+4*st+o+jj}, v{TT+2*jj}, v{TT+2*jj+1}')
                k(f'v_cvt_pk_bf16_f32 v{TF+16+4*st+o+jj}, -v{TT+4+2*jj}, -v{TT+5+2*jj}')
    if k.o.get('tcol'): k.tc(4)
    k('s_nop 1')
    stage64(True)
    if k.o.get('tcol'): k.tc(5)
    twl('c_w2',0); twl('c_w2',1)
    k('s_nop 13')
    twiddle_pack('c_w2')
    if k.o.get('tcol'): k.tc(7)
    for tau in range(2):
        for x,nm in enumerate('csn'): tr(TB+12*tau+4*x,f'c_t32{nm}{tau}')
    k('s_waitcnt lgkmcnt(0)')
    for u in range(2):
        dre=D+32*u; dim=dre+16
        for sg in range(2):
            C=TB+12*sg; S=C+4; N=C+8; st=2*u+sg; re=TF+4*st; im=TF+16+4*st
            mf(dre,C,re,sg==0); mf(dim,C,im,sg==0); mf(dre,S,im,False); mf(dim,N,re,False)
    k('s_nop 15')
    if k.o.get('tcol'): k.tc(8)
    k('v_and_b32 v9, 7, v3')
    for u in range(2):
        dre=D+32*u; dim=dre+16
        for tau in range(2):
            ob=XF+8*(2*u+tau)
            for j in range(8):
                r=4*(2*tau+(j>>2))+(j&3)
                k(f'v_cvt_pk_bf16_f32 v{ob+j}, v{dre+r}, -v{dim+r}')
            for half in range(2):
                k(f'v_lshlrev_b32 v12, 1, v4'); k(f'v_add_u32 v12, {4*tau+half}, v12'); k('v_xor_b32 v12, v12, v9'); k('v_lshlrev_b32 v12, 4, v12')
                k('v_lshl_add_u32 v12, v3, 7, v12'); k(f'v_add_u32 v12, s{s_col+1}, v12')
                k(f'ds_write_b128 v12, v[{ob+4*half}:{ob+4*half+3}] offset:{u*4096}')
    k('v_lshrrev_b32 v12, 3, v1'); k('v_and_b32 v13, 7, v1'); k('v_and_b32 v14, 7, v12'); k('v_xor_b32 v13, v13, v14'); k('v_lshlrev_b32 v13, 4, v13'); k('v_lshl_add_u32 v12, v12, 7, v13')
    k(f'v_add_u32 v12, s{s_col+1}, v12')
    k('s_waitcnt lgkmcnt(0)')
    for i in range(8): k(f'ds_read_b128 v[{D+4*i}:{D+4*i+3}], v12 offset:{1024*i}')
    k('v_lshlrev_b32 v8, 4, v1'); k(f's_add_u32 s49, s48, {WS_Y1}')
    for i in range(8):
        k(f's_waitcnt lgkmcnt({7-i})')
        if i in (4,): k('s_add_u32 s49, s49, 4096')
        k(f'buffer_store_dwordx4 v[{D+4*i}:{D+4*i+3}], v8, {WS}, s49 offen offset:{1024*(i&3)} sc1')

IB1R,IB1I,IB1X,ITC,ITS,IBC,IBS=100,104,108,112,128,144,152
IC_FIRST=T.FR['i_b1r0']; IC_N=11
def irow_issue(k):
    k('s_lshr_b32 s48, s2, 6'); k('s_and_b32 s49, s2, 63')
    k('s_lshl_b32 s50, s49, 7'); k('s_lshl_b32 s51, s48, 5'); k('s_add_u32 s50, s50, s51'); k(f's_add_u32 s50, s50, {WS_Y1}')
    k('v_min_u32 v8, 0x140, v0'); k('v_lshlrev_b32 v8, 13, v8')
    k(f'buffer_load_dwordx4 v[16:19], v8, {WS}, s50 offen sc1'); k(f'buffer_load_dwordx4 v[20:23], v8, {WS}, s50 offen offset:16 sc1')
    return 2
def irow_consts_read(k, L_IC):
    k('v_lshlrev_b32 v3, 4, v1'); k(f'v_add_u32 v3, {L_IC}, v3')
    m={'i_b1r0':IB1R,'i_b1i0':IB1I,'i_b1x1':IB1X}
    for g in range(4): m[f'i_tc{g}']=ITC+4*g; m[f'i_ts{g}']=ITS+4*g
    for nm,dst in m.items(): k(f'ds_read_b128 v[{dst}:{dst+3}], v3 offset:{(T.FR[nm]-IC_FIRST)*1024}')
    for x,dst in enumerate((IBC,IBS,IBC+4,IBS+4)): k(f'ds_read_b128 v[{dst}:{dst+3}], v3 offset:{(11+x)*1024}')
def irow_consts_dma(k, L_IC):
    n=frags_dma(k,IC_FIRST,IC_N,L_IC)
    k('v_lshlrev_b32 v3, 4, v1')
    names=['c_t32c0','c_t32n0','c_t32c1','c_t32n1']
    k(f's_and_b32 s48, s{S_WAVE}, 3')
    b=T.FR['c_t32c0']; assert [T.FR[x]-b for x in names]==[0,2,3,5]
    k('s_cmp_gt_u32 s48, 0'); k('s_addc_u32 s49, s48, 0'); k('s_cmp_gt_u32 s48, 2'); k('s_addc_u32 s49, s49, 0')
    k(f's_add_u32 s49, s49, {b}'); k('s_lshl_b32 s49, s49, 10'); k('v_add_u32 v4, s49, v3')
    k(f'v_mov_b32 v5, s{S_TBL+1}'); k(f'v_add_co_u32 v4, vcc, s{S_TBL}, v4'); k('v_addc_co_u32 v5, vcc, 0, v5, vcc')
    k('s_lshl_b32 s48, s48, 10'); k(f's_add_u32 m0, s48, {L_IC+11*1024}'); k('s_nop 0')
    k('global_load_lds_dwordx4 v[4:5], off')
    return n+1
def irow_stage(k, LA, LB):
    k('v_cmp_gt_u32 vcc, 0x141, v0'); k('s_and_saveexec_b64 s[56:57], vcc')
    lab=k.label('is'); k(f's_cbranch_execz {lab}')
    k('v_and_b32 v8, 31, v0'); k('v_mul_u32_u24 v8, 48, v8'); k('v_lshrrev_b32 v9, 5, v0'); k('v_lshl_add_u32 v8, v9, 2, v8')
    k(f'v_add_u32 v9, {LB}, v8'); k(f'v_add_u32 v8, {LA}, v8')
    for j in range(4): k(f'ds_write_b32 v8, v{16+j} offset:{j*1536}')
    for j in range(4): k(f'ds_write_b32 v9, v{20+j} offset:{j*1536}')
    k(f'{lab}:'); k('s_mov_b64 exec, s[56:57]')
def irow_compute(k, LA, LB, L_BS):
    YA=16; UR=24; UI=40; TM=56; VR=88; VI=160; DO=168
    k('v_and_b32 v3, 31, v1'); k('v_lshrrev_b32 v4, 5, v1')
    k(f's_and_b32 s50, s{S_WAVE}, 3'); k('s_mul_i32 s50, s50, 1536'); k(f's_cmp_lt_u32 s{S_WAVE}, 4'); k(f's_cselect_b32 s51, {LA}, {LB}'); k('s_add_u32 s50, s50, s51')
    k('v_mul_u32_u24 v9, 48, v3'); k('v_add_u32 v9, s50, v9'); k('v_lshl_add_u32 v12, v4, 3, v9'); k('v_lshl_add_u32 v9, v4, 4, v9')
    k(f'ds_read_b128 v[{YA}:{YA+3}], v9'); k(f'ds_read_b64 v[{YA+4}:{YA+5}], v12 offset:32')
    k('v_cmp_eq_u32 s[62:63], 0, v4'); k('v_cmp_eq_u32 s[58:59], 0, v3'); k('s_or_b64 s[58:59], s[58:59], s[62:63]')
    k('s_lshr_b32 s48, s2, 6'); k('s_and_b32 s49, s2, 63')
    k('s_lshr_b32 s50, s48, 1'); k('s_and_b32 s51, s48, 1'); k('s_lshl_b32 s50, s50, 4'); k('s_lshl_b32 s51, s51, 2'); k('s_add_u32 s50, s50, s51')
    k(f's_lshr_b32 s51, s{S_WAVE}, 2'); k('s_lshl_b32 s51, s51, 3'); k('s_add_u32 s50, s50, s51'); k(f's_and_b32 s51, s{S_WAVE}, 3'); k('s_add_u32 s50, s50, s51')
    k('s_lshl_b32 s50, s50, 6'); k('s_add_u32 s50, s50, s49'); k('s_mul_i32 s50, s50, 1280'); k(f's_add_u32 s50, s50, {WS_B}')
    k('v_mul_u32_u24 v13, 40, v3'); k('v_lshl_add_u32 v13, v4, 3, v13')
    k('s_waitcnt lgkmcnt(0)')
    b=YA
    k(f'v_cndmask_b32 v{b+4}, 0, v{b+4}, s[58:59]'); k(f'v_cndmask_b32 v{b+5}, 0, v{b+5}, s[62:63]')
    k(f'v_mfma_f32_32x32x16_bf16 v[{UR}:{UR+15}], v[{b}:{b+3}], v[{IB1R}:{IB1R+3}], 0')
    k(f'v_mfma_f32_32x32x16_bf16 v[{UI}:{UI+15}], v[{b}:{b+3}], v[{IB1I}:{IB1I+3}], 0')
    k(f'v_mfma_f32_32x32x8_bf16 v[{UR}:{UR+15}], v[{b+4}:{b+5}], v[{IB1X}:{IB1X+1}], v[{UR}:{UR+15}]')
    k(f'v_mfma_f32_32x32x8_bf16 v[{UI}:{UI+15}], v[{b+4}:{b+5}], v[{IB1X+2}:{IB1X+3}], v[{UI}:{UI+15}]')
    k('s_nop 15')
    for r in range(0,16,2): cmul_inv(k,TM+r,TM+16+r,UR+r,UI+r,ITC+r,ITS+r)
    for jj in range(8):
        k(f'v_cvt_pk_bf16_f32 v{VR+jj}, v{TM+2*jj}, v{TM+2*jj+1}'); k(f'v_cvt_pk_bf16_f32 v{VI+jj}, v{TM+16+2*jj}, v{TM+17+2*jj}')
    k('s_nop 1')
    k(f'v_mfma_f32_32x32x16_bf16 v[{DO}:{DO+15}], v[{VR}:{VR+3}], v[{IBC}:{IBC+3}], 0')
    k(f'v_mfma_f32_32x32x16_bf16 v[{DO}:{DO+15}], v[{VI}:{VI+3}], v[{IBS}:{IBS+3}], v[{DO}:{DO+15}]')
    k(f'v_mfma_f32_32x32x16_bf16 v[{DO}:{DO+15}], v[{VR+4}:{VR+7}], v[{IBC+4}:{IBC+7}], v[{DO}:{DO+15}]')
    k(f'v_mfma_f32_32x32x16_bf16 v[{DO}:{DO+15}], v[{VI+4}:{VI+7}], v[{IBS+4}:{IBS+7}], v[{DO}:{DO+15}]')
    k('s_nop 15')
    ob=TM
    for jj in range(6): k(f'v_cvt_pk_bf16_f32 v{ob+jj}, v{DO+2*jj}, v{DO+2*jj+1}')
    k(f's_mul_i32 s51, s{S_WAVE}, 1280'); k(f's_add_u32 s51, s51, {L_BS}')
    k('v_add_u32 v14, s51, v13')
    k(f'ds_write_b64 v14, v[{ob}:{ob+1}]'); k(f'ds_write_b64 v14, v[{ob+2}:{ob+3}] offset:16')
    k('s_mov_b32 exec_hi, 0'); k(f'ds_write_b64 v14, v[{ob+4}:{ob+5}] offset:32'); k('s_mov_b64 exec, -1')
    k('v_lshlrev_b32 v15, 4, v1'); k('v_add_u32 v14, s51, v15')
    k('s_waitcnt lgkmcnt(0)')
    k(f'ds_read_b128 v[{ob}:{ob+3}], v14'); k(f'ds_read_b128 v[{ob+4}:{ob+7}], v14 offset:1024')
    k('s_waitcnt lgkmcnt(0)')
    k(f'buffer_store_dwordx4 v[{ob}:{ob+3}], v15, {WS}, s50 offen sc1')
    k('s_mov_b64 exec, 0xffff')
    k(f'buffer_store_dwordx4 v[{ob+4}:{ob+7}], v15, {WS}, s50 offen offset:1024 sc1')
    k('s_mov_b64 exec, -1')


def row_ifft_duty(k, L_ST, L_IC):
    k.c('==== row iFFT duty (single wave)')
    k('v_and_b32 v3, 31, v1'); k('v_lshrrev_b32 v4, 5, v1')
    k('s_lshr_b32 s48, s2, 6'); k('s_and_b32 s49, s2, 63')
    k('s_lshl_b32 s50, s49, 7'); k('s_lshl_b32 s51, s48, 5'); k('s_add_u32 s50, s50, s51'); k(f's_add_u32 s50, s50, {WS_Y1}')
    LD=16
    for p in range(6):
        k(f'v_add_u32 v8, {64*p}, v1'); k('v_lshlrev_b32 v8, 13, v8')
        if p==5: k('s_mov_b64 exec, 1')
        k(f'buffer_load_dwordx4 v[{LD+8*p}:{LD+8*p+3}], v8, {WS}, s50 offen sc1')
        k(f'buffer_load_dwordx4 v[{LD+8*p+4}:{LD+8*p+7}], v8, {WS}, s50 offen offset:16 sc1')
    k('s_mov_b64 exec, -1')
    B1R,B1I,B1X=64,68,72
    TC_,TS_=76,92
    BC,BS=108,116
    k('v_lshlrev_b32 v10, 4, v1'); k(f'v_add_u32 v10, {L_IC}, v10')
    m={'i_b1r0':B1R,'i_b1i0':B1I,'i_b1x1':B1X}
    for g in range(4): m[f'i_tc{g}']=TC_+4*g; m[f'i_ts{g}']=TS_+4*g
    for nm,dst in m.items(): k(f'ds_read_b128 v[{dst}:{dst+3}], v10 offset:{(T.FR[nm]-IC_FIRST)*1024}')
    for x,dst in enumerate((BC,BS,BC+4,BS+4)): k(f'ds_read_b128 v[{dst}:{dst+3}], v10 offset:{(11+x)*1024}')
    k(f'v_mul_u32_u24 v8, 48, v3'); k(f'v_lshl_add_u32 v8, v4, 2, v8'); k(f'v_add_u32 v8, {L_ST}, v8')
    k(f'v_mul_u32_u24 v9, 48, v3'); k(f'v_add_u32 v9, {L_ST}, v9'); k(f'v_lshl_add_u32 v12, v4, 3, v9'); k(f'v_lshl_add_u32 v9, v4, 4, v9')
    k(f'v_cmp_eq_u32 s[62:63], 0, v4'); k(f'v_cmp_eq_u32 s[58:59], 0, v3'); k('s_or_b64 s[58:59], s[58:59], s[62:63]')
    k('s_lshr_b32 s50, s48, 1'); k('s_and_b32 s51, s48, 1'); k('s_lshl_b32 s50, s50, 4'); k('s_lshl_b32 s51, s51, 2'); k('s_add_u32 s50, s50, s51')
    k(f'v_mul_u32_u24 v13, 40, v3'); k(f'v_lshl_add_u32 v13, v4, 3, v13'); k(f'v_add_u32 v13, {L_ST}, v13')
    k('v_lshlrev_b32 v15, 4, v1'); k(f'v_add_u32 v14, {L_ST}, v15')
    YA=124; UR=136; UI=152; TM=168; VR=200; VI=208; DO=216; OB=232
    k('s_waitcnt vmcnt(0) lgkmcnt(0)')
    for half in range(2):
        for p in range(6):
            if p==5: k('s_mov_b64 exec, 1')
            for j in range(4):
                k(f'ds_write_b32 v8, v{LD+8*p+4*half+j} offset:{j*1536+p*8}')
        k('s_mov_b64 exec, -1')
        k('s_waitcnt lgkmcnt(0)')
        def rd(j):
            b=YA+6*(j&1)
            k(f'ds_read_b128 v[{b}:{b+3}], v9 offset:{j*1536}')
            k(f'ds_read_b64 v[{b+4}:{b+5}], v12 offset:{j*1536+32}')
        def st1(j):
            b=YA+6*(j&1)
            k(f'v_cndmask_b32 v{b+4}, 0, v{b+4}, s[58:59]'); k(f'v_cndmask_b32 v{b+5}, 0, v{b+5}, s[62:63]')
            k(f'v_mfma_f32_32x32x16_bf16 v[{UR}:{UR+15}], v[{b}:{b+3}], v[{B1R}:{B1R+3}], 0')
            k(f'v_mfma_f32_32x32x16_bf16 v[{UI}:{UI+15}], v[{b}:{b+3}], v[{B1I}:{B1I+3}], 0')
            k(f'v_mfma_f32_32x32x8_bf16 v[{UR}:{UR+15}], v[{b+4}:{b+5}], v[{B1X}:{B1X+1}], v[{UR}:{UR+15}]')
            k(f'v_mfma_f32_32x32x8_bf16 v[{UI}:{UI+15}], v[{b+4}:{b+5}], v[{B1X+2}:{B1X+3}], v[{UI}:{UI+15}]')
        def out(j, jg):
            ob=OB
            for jj in range(6): k(f'v_cvt_pk_bf16_f32 v{ob+jj}, v{DO+2*jj}, v{DO+2*jj+1}')
            k(f'ds_write_b64 v13, v[{ob}:{ob+1}] offset:{j*1536}'); k(f'ds_write_b64 v13, v[{ob+2}:{ob+3}] offset:{j*1536+16}')
            k('s_mov_b32 exec_hi, 0'); k(f'ds_write_b64 v13, v[{ob+4}:{ob+5}] offset:{j*1536+32}'); k('s_mov_b64 exec, -1')
        def store(j, jg):
            ob=238+8*(j&1)
            k(f'ds_read_b128 v[{ob}:{ob+3}], v14 offset:{j*1536}'); k(f'ds_read_b128 v[{ob+4}:{ob+7}], v14 offset:{j*1536+1024}')
            k(f's_add_u32 s51, s50, {8*(jg>>2)+(jg&3)}'); k('s_lshl_b32 s51, s51, 6'); k('s_add_u32 s51, s51, s49'); k('s_mul_i32 s51, s51, 1280'); k(f's_add_u32 s51, s51, {WS_B}')
            k('s_waitcnt lgkmcnt(0)')
            k(f'buffer_store_dwordx4 v[{ob}:{ob+3}], v15, {WS}, s51 offen sc1')
            k('s_mov_b64 exec, 0xffff')
            k(f'buffer_store_dwordx4 v[{ob+4}:{ob+7}], v15, {WS}, s51 offen offset:1024 sc1')
            k('s_mov_b64 exec, -1')
        rd(0); rd(1)
        k('s_waitcnt lgkmcnt(2)')
        st1(0)
        for j in range(4):
            if j==0: k('s_nop 15')
            for r in range(0,16,2): cmul_inv(k,TM+r,TM+16+r,UR+r,UI+r,TC_+r,TS_+r)
            if j+1<4:
                k('s_waitcnt lgkmcnt(0)')
                st1(j+1)
                if j+2<4: rd(j+2)
            if j>0: out(j-1, 4*half+j-1)
            for jj in range(8):
                k(f'v_cvt_pk_bf16_f32 v{VR+jj}, v{TM+2*jj}, v{TM+2*jj+1}'); k(f'v_cvt_pk_bf16_f32 v{VI+jj}, v{TM+16+2*jj}, v{TM+17+2*jj}')
            k('s_nop 1')
            k(f'v_mfma_f32_32x32x16_bf16 v[{DO}:{DO+15}], v[{VR}:{VR+3}], v[{BC}:{BC+3}], 0')
            k(f'v_mfma_f32_32x32x16_bf16 v[{DO}:{DO+15}], v[{VI}:{VI+3}], v[{BS}:{BS+3}], v[{DO}:{DO+15}]')
            k(f'v_mfma_f32_32x32x16_bf16 v[{DO}:{DO+15}], v[{VR+4}:{VR+7}], v[{BC+4}:{BC+7}], v[{DO}:{DO+15}]')
            k(f'v_mfma_f32_32x32x16_bf16 v[{DO}:{DO+15}], v[{VI+4}:{VI+7}], v[{BS+4}:{BS+7}], v[{DO}:{DO+15}]')
            if j>0:
                k('s_waitcnt lgkmcnt(0)'); store(j-1, 4*half+j-1)
        k('s_nop 15')
        out(3, 4*half+3)
        k('s_waitcnt lgkmcnt(0)'); store(3, 4*half+3)
    k('s_waitcnt vmcnt(0)')
    k('s_mov_b32 s60, s2'); set_flag(k,WS_FB,60)


def early_issue(k, L_RST, L_RC, L_WR):
    k('s_lshr_b32 s48, s2, 6'); k('s_and_b32 s49, s2, 63')
    k('s_lshr_b32 s50, s48, 1'); k('s_and_b32 s51, s48, 1'); k('s_lshl_b32 s50, s50, 4'); k('s_lshl_b32 s51, s51, 2'); k('s_add_u32 s50, s50, s51')
    k(f's_lshr_b32 s51, s{S_WAVE}, 2'); k('s_lshl_b32 s51, s51, 3'); k('s_add_u32 s50, s50, s51'); k(f's_and_b32 s51, s{S_WAVE}, 3'); k('s_add_u32 s50, s50, s51')
    k('s_lshl_b32 s50, s50, 6'); k('s_add_u32 s50, s50, s49'); k('s_mul_i32 s50, s50, 1280')
    k('v_lshlrev_b32 v3, 4, v1')
    k(f's_mul_i32 s51, s{S_WAVE}, {RS}'); k(f's_add_u32 m0, s51, {L_RST}'); k('s_nop 0')
    k(f'buffer_load_dwordx4 v3, s[{S_X}:{S_X+3}], s50 offen lds')
    k(f's_add_u32 m0, s51, {L_RST+1024}'); k('s_add_u32 s50, s50, 1024'); k('s_mov_b64 exec, 0xffff')
    k(f'buffer_load_dwordx4 v3, s[{S_X}:{S_X+3}], s50 offen lds'); k('s_mov_b64 exec, -1')
    for m in range(2):
        k(f's_add_u32 s48, s{S_WAVE}, {8*m}'); k(f's_min_u32 s48, s48, 12'); k('s_lshl_b32 s48, s48, 10')
        k('v_add_u32 v4, s48, v3')
        k(f'v_mov_b32 v5, s{S_TBL+1}'); k(f'v_add_co_u32 v4, vcc, s{S_TBL}, v4'); k('v_addc_co_u32 v5, vcc, 0, v5, vcc')
        k(f's_add_u32 m0, s48, {L_RC}'); k('s_nop 0')
        k('global_load_lds_dwordx4 v[4:5], off')
    k('s_and_b32 s48, s2, 31'); k('s_lshr_b32 s49, s2, 5'); k('s_lshl_b32 s50, s49, 8'); k('s_add_u32 s50, s50, s48')
    k(f's_lshl_b32 s51, s{S_WAVE}, 1'); k('s_and_b32 s51, s51, 7'); k('s_lshl_b32 s51, s51, 5'); k('s_add_u32 s50, s50, s51')
    labI=k.label('wi'); labD=k.label('wd')
    k(f's_cmp_ge_u32 s{S_WAVE}, 4'); k(f's_cbranch_scc1 {labI}')
    for arr,lab in ((S_WR,None),(S_WI,labI)):
        if lab: k(f'{lab}:')
        for i in range(2):
            k(f's_add_u32 s52, s50, {32*i}'); k('s_mul_i32 s52, s52, 642'); k('s_and_b32 s52, s52, 0xfffffffc')
            k(f's_lshl_b32 s53, s{S_WAVE}, 1'); k(f's_add_u32 s53, s53, {i}'); k('s_mul_i32 s53, s53, 672'); k(f's_add_u32 m0, s53, {L_WR}')
            k('s_mov_b64 exec, 0x1ffffffffff')if False else (k('s_mov_b32 exec_lo, -1'), k('s_mov_b32 exec_hi, 0x1ff'))
            k(f'buffer_load_dwordx4 v3, s[{arr}:{arr+3}], s52 offen lds')
            k('s_mov_b64 exec, -1')
        if not lab: k(f's_branch {labD}')
    k(f'{labD}:')
    return 6

def w_read_lds(k, L_WR):
    k('s_and_b32 s48, s2, 1'); k('s_lshl_b32 s48, s48, 1'); k(f's_add_u32 s48, s48, {L_WR}')
    k('v_min_u32 v3, 0x140, v0'); k('v_lshlrev_b32 v3, 1, v3'); k('v_add_u32 v3, s48, v3')
    for r in range(16): k(f'ds_read_u16 v{WL+r}, v3 offset:{r*672}')


def early_issue_kv(k, L_RST, L_RC):
    k('s_lshr_b32 s48, s2, 6'); k('s_and_b32 s49, s2, 63')
    k('s_lshr_b32 s50, s48, 1'); k('s_and_b32 s51, s48, 1'); k('s_lshl_b32 s50, s50, 4'); k('s_lshl_b32 s51, s51, 2'); k('s_add_u32 s50, s50, s51')
    k(f's_lshr_b32 s51, s{S_WAVE}, 2'); k('s_lshl_b32 s51, s51, 3'); k('s_add_u32 s50, s50, s51'); k(f's_and_b32 s51, s{S_WAVE}, 3'); k('s_add_u32 s50, s50, s51')
    k('s_lshl_b32 s50, s50, 6'); k('s_add_u32 s50, s50, s49'); k('s_mul_i32 s50, s50, 1280')
    k('v_lshlrev_b32 v3, 4, v1')
    k(f's_mul_i32 s51, s{S_WAVE}, {RS}'); k(f's_add_u32 m0, s51, {L_RST}'); k('s_nop 0')
    k(f'buffer_load_dwordx4 v3, s[{S_X}:{S_X+3}], s50 offen lds')
    k(f's_add_u32 m0, s51, {L_RST+1024}'); k('s_add_u32 s50, s50, 1024'); k('s_mov_b64 exec, 0xffff')
    k(f'buffer_load_dwordx4 v3, s[{S_X}:{S_X+3}], s50 offen lds'); k('s_mov_b64 exec, -1')
    for m in range(2):
        k(f's_add_u32 s48, s{S_WAVE}, {8*m}'); k(f's_min_u32 s48, s48, 12'); k('s_lshl_b32 s48, s48, 10')
        k('v_add_u32 v4, s48, v3')
        k(f'v_mov_b32 v5, s{S_TBL+1}'); k(f'v_add_co_u32 v4, vcc, s{S_TBL}, v4'); k('v_addc_co_u32 v5, vcc, 0, v5, vcc')
        k(f's_add_u32 m0, s48, {L_RC}'); k('s_nop 0')
        k('global_load_lds_dwordx4 v[4:5], off')
    k('s_and_b32 s48, s2, 31'); k('s_lshr_b32 s49, s2, 5'); k('s_lshl_b32 s50, s49, 8'); k('s_add_u32 s50, s50, s48'); k('s_mul_i32 s50, s50, 642')
    k('v_min_u32 v3, 0x140, v0'); k('v_lshlrev_b32 v4, 1, v3')
    for jj in range(8):
        k(f's_add_u32 s52, s50, {jj*32*642}')
        k(f'buffer_load_ushort v{WL+jj}, v4, s[{S_WR}:{S_WR+3}], s52 offen')
        k(f'buffer_load_ushort v{WL+8+jj}, v4, s[{S_WI}:{S_WI+3}], s52 offen')
```

```python
import sys, math
from asmgen import *
import fft10 as F
F.WS_FY2=F.WS_FY+1024
import fft2
import tables as T
NAME='gated_mix__grouped_kv_mqa__spectral_gfnet__prompt_kernel'
WS_EPOCH=0
WS_FKV=0x1000; WS_FX=F.WS_FX; WS_FY=F.WS_FY; WS_FB=F.WS_FB; WS_FO=0x5000; WS_FY2=F.WS_FY2
WS_KV=0x10000; WS_KM=0x52000; WS_TS=0x60000
WS_O=0x100000; WS_XW=F.WS_XW; WS_Y1=F.WS_Y1; WS_B=F.WS_B; WS_SIZE=0x1000000
XS=272; XCH=17408; WCH=24576; ENT=XCH+WCH
L_WKV=87040; L_RST=138240; L_RCc=148608; L_GW=161920; L_SCRc=136192
def xpos(kv,p): return p*XCH if kv else (p%3)*ENT
def wpos(kv,p): return (L_WKV+(p%3)*WCH) if kv else (p%3)*ENT+XCH
L_Q1=0; L_Q2=8192; L_ZERO=10240; L_M=10272; L_CNT=10304; L_Z=10368; L_O=11392; OT=21*256
L_IST=L_O+8*OT
L_WO=L_IST+6144
L_EX=L_WO
L_RC=L_RCc
L_YS0=131072; L_YS1=139264
L_IC=L_WO+3*25600+160+10*1024
WOSUB=25600; WOPAD=[0,32,128,160]
assert L_WO+4*WOSUB+160<=163840 and L_WO%16==0 and L_WO+F.NCT*1024<=L_YS0 and L_IC+15*1024<=163840
LDS_TOTAL=163840
S_X=4; S_WQ=8; S_WK=12; S_WV=16; S_WO=20; S_WR=24; S_WI=28; S_GW=32; S_OUT=36; S_WS=40
S_WAVE=44; S_RB=45; S_HG=46; S_TAG=47; S_TS=64; S_IT=70; S_QT=71; S_TBL=72
WS=f's[{S_WS}:{S_WS+3}]'
CSCALE=(20**-0.5)*1.4426950408889634
def f2u(x):
    import struct
    return struct.unpack('<I',struct.pack('<f',x))[0]
VWQ=240

class G(Kern):
    def __init__(s, opts):
        super().__init__(NAME,256,512,LDS_TOTAL,vgpr=256,sgpr=102); s.o=opts
    def ts(s, idx):
        if not s.o.get('ts'): return
        s(f's_memrealtime s[{S_TS}:{S_TS+1}]'); s('s_waitcnt lgkmcnt(0)'); s(f'v_writelane_b32 v255, s{S_TS}, {idx}')
    def tc(s, idx):
        if not s.o.get('ts'): return
        s(f's_memtime s[{S_TS}:{S_TS+1}]'); s('s_waitcnt lgkmcnt(0)'); s(f'v_writelane_b32 v255, s{S_TS}, {idx}')
    def ts_flush(s):
        if not s.o.get('ts'): return
        s(f's_lshl_b32 s{S_TS}, s2, 3'); s(f's_add_u32 s{S_TS}, s{S_TS}, s{S_WAVE}'); s(f's_lshl_b32 s{S_TS}, s{S_TS}, 6')
        s(f's_add_u32 s{S_TS}, s{S_TS}, {WS_TS}')
        s('v_mbcnt_lo_u32_b32 v254, -1, 0'); s('v_mbcnt_hi_u32_b32 v254, -1, v254')
        s('v_lshlrev_b32 v253, 2, v254'); s(f'v_add_u32 v253, s{S_TS}, v253')
        s('v_cmp_gt_u32 vcc, 16, v254')
        s(f's_and_saveexec_b64 s[{S_TS+2}:{S_TS+3}], vcc')
        s(f'buffer_store_dword v255, v253, {WS}, 0 offen')
        s(f's_mov_b64 exec, s[{S_TS+2}:{S_TS+3}]')

def prologue(k):
    k('s_cmp_ge_u32 s2, 256'); k(f's_cbranch_scc1 {NAME}_end')
    k('s_load_dwordx8 s[48:55], s[0:1], 0'); k('s_load_dwordx2 s[56:57], s[0:1], 32')
    k('s_load_dwordx4 s[60:63], s[0:1], 48'); k('s_load_dwordx4 s[64:67], s[0:1], 64'); k('s_load_dwordx2 s[68:69], s[0:1], 88')
    k('v_and_b32 v1, 63, v0'); k('v_lshrrev_b32 v2, 6, v0')
    k('s_lshr_b32 s74, s2, 3'); k('s_and_b32 s45, s74, 28'); k('s_and_b32 s75, s2, 3'); k('s_or_b32 s45, s45, s75')
    k('s_and_b32 s46, s2, 4'); k('s_and_b32 s75, s74, 3'); k('s_or_b32 s46, s46, s75')
    k('v_readfirstlane_b32 s44, v2')
    k(f's_getpc_b64 s[{S_TBL}:{S_TBL+1}]')
    k(f'{NAME}_pc:')
    k(f's_add_u32 s{S_TBL}, s{S_TBL}, {NAME}_tbl-{NAME}_pc'); k(f's_addc_u32 s{S_TBL+1}, s{S_TBL+1}, 0')
    k('s_waitcnt lgkmcnt(0)')
    for (sr,src,name) in [(S_X,48,'x'),(S_WQ,50,'wq'),(S_WK,52,'wk'),(S_WV,54,'wv'),(S_WO,56,'wo'),(S_WR,60,'wr'),(S_WI,62,'wi'),(S_GW,64,'gw'),(S_OUT,66,'out'),(S_WS,68,'ws')]:
        k(f's_mov_b32 s{sr}, s{src}'); k(f's_mov_b32 s{sr+1}, s{src+1}')
        k(f's_mov_b32 s{sr+2}, {WS_SIZE if name=="ws" else SIZES[name]}'); k(f's_mov_b32 s{sr+3}, 0x20000')
    k(f's_load_dword s{S_TAG}, s[{S_WS}:{S_WS+1}], {WS_EPOCH}')
    if k.o.get('ts'): k('v_mov_b32 v255, 0')
    k.ts(0)

L_SCR=L_WKV+WCH
VXA=236
S_KAP=80
S_COL=89
S_XW=85; S_WW=86
def setup_dma(k):
    k('s_lshr_b32 s48, s2, 3'); k('s_lshr_b32 s49, s48, 3'); k('s_lshl_b32 s49, s49, 6'); k('s_and_b32 s50, s2, 7'); k('s_lshl_b32 s50, s50, 3'); k('s_add_u32 s49, s49, s50'); k('s_and_b32 s48, s48, 7'); k(f's_add_u32 s{S_COL}, s49, s48')
    k(f's_lshr_b32 s48, s{S_RB}, 3'); k(f's_add_u32 s48, s48, s{S_HG}')
    k('s_mul_i32 s49, s48, 52'); k('s_lshr_b32 s49, s49, 8'); k('s_mul_i32 s49, s49, 5'); k(f's_sub_u32 s{S_KAP}, s48, s49')
    for i in range(1,5):
        k(f's_add_u32 s{S_KAP+i}, s{S_KAP+i-1}, 1'); k(f's_cmp_eq_u32 s{S_KAP+i}, 5'); k(f's_cselect_b32 s{S_KAP+i}, 0, s{S_KAP+i}')
    k(f's_mul_i32 s{S_XW}, s{S_WAVE}, {136*16}'); k(f's_mul_i32 s{S_WW}, s{S_WAVE}, 3072')
    magic=(2**32+16)//17
    for c in range(1088+64): assert (c*magic)>>32==c//17
    k(f's_mov_b32 s48, {magic}'); k(f's_mul_i32 s49, s{S_RB}, {64*1280}'); k(f's_mul_i32 s50, s{S_WAVE}, 136')
    for m in range(3):
        k(f's_add_u32 s51, s50, {64*m}'); k('v_add_u32 v3, s51, v1')
        k('v_mul_hi_u32 v4, v3, s48'); k('v_mul_u32_u24 v5, 17, v4'); k('v_sub_u32 v5, v3, v5'); k('v_min_u32 v5, 15, v5')
        k('v_mul_u32_u24 v4, 1280, v4'); k('v_lshlrev_b32 v5, 4, v5'); k(f'v_add3_u32 v{VXA+m}, v4, v5, s49')
    magic=(2**32+11)//12
    for c in range(1536): assert (c*magic)>>32==c//12
    k(f's_mov_b32 s48, {magic}'); k(f's_mul_i32 s49, s{S_HG}, 160'); k('s_and_b32 s49, s49, 0xffffffc0'); k(f's_mul_i32 s50, s{S_WAVE}, 192')
    for m in range(3):
        k(f's_add_u32 s51, s50, {64*m}'); k('v_add_u32 v3, s51, v1')
        k('v_mul_hi_u32 v4, v3, s48'); k('v_mul_u32_u24 v5, 12, v4'); k('v_sub_u32 v5, v3, v5')
        k('v_mul_u32_u24 v4, 1280, v4'); k('v_lshlrev_b32 v5, 4, v5'); k(f'v_add3_u32 v{VWQ+m}, v4, v5, s49')
def op_x(k, pos, kv, m):
    def f():
        k(f's_add_u32 m0, s{S_XW}, {xpos(kv,pos)+1024*m}'); k(f's_lshl_b32 s52, s{S_KAP+pos}, 8')
        if m==2: k('s_mov_b64 exec, 0xff')
        k(f'buffer_load_dwordx4 v{VXA+m}, s[{S_X}:{S_X+3}], s52 offen lds')
        if m==2: k('s_mov_b64 exec, -1')
    return f
def op_w(k, pos, kv, m):
    def f():
        k(f's_mul_i32 s52, s{S_KAP+pos}, {128*1280}'); k(f's_add_u32 m0, s{S_WW}, {wpos(kv,pos)+1024*m}'); k('s_nop 0')
        k(f'buffer_load_dwordx4 v{VWQ+m}, s[{S_WQ}:{S_WQ+3}], s52 offen lds')
    return f
def ops_x(k,pos,kv): return [(f'X{pos}',op_x(k,pos,kv,m)) for m in range(3)]
def ops_w(k,pos,kv): return [(f'W{pos}',op_w(k,pos,kv,m)) for m in range(3)]
def dma_xchunk(k,pos,kv):
    for t,f in ops_x(k,pos,kv): f()
def dma_wchunk(k,pos,kv):
    for t,f in ops_w(k,pos,kv): f()
class VM:
    def __init__(s): s.L=[]
    def issue(s,tag,f,n=1):
        f(); s.L+= [tag]*n
    def younger(s,tags):
        last=max(i for i,t in enumerate(s.L) if t in tags)
        return len(s.L)-1-last
def dma_wo(k, starts, limit, step=8):
    k('s_mov_b32 s48, 0xCCCCCCCD'); k(f's_mul_i32 s49, s{S_HG}, 160')
    for st in starts:
        lab=k.label('wo')
        k(f's_add_u32 s50, s{S_WAVE}, {st}')
        if st+step>limit:
            k(f's_min_u32 s50, s50, {limit-1}')
        k('s_mul_i32 s51, s50, 41'); k('s_lshr_b32 s51, s51, 10')
        k('s_mul_i32 s52, s51, 25'); k('s_sub_u32 s52, s50, s52')
        k('s_lshl_b32 s53, s52, 6'); k('v_add_u32 v3, s53, v1')
        k('v_mul_hi_u32 v4, v3, s48'); k('v_lshrrev_b32 v4, 3, v4'); k('v_mul_u32_u24 v5, 10, v4'); k('v_sub_u32 v5, v3, v5')
        k('v_mul_u32_u24 v4, 5120, v4'); k('v_lshlrev_b32 v5, 4, v5'); k('s_mul_i32 s53, s51, 1280'); k('s_add_u32 s53, s53, s49'); k('v_add3_u32 v4, v4, v5, s53')
        k(f's_mul_i32 s53, s51, {WOSUB}'); k('s_and_b32 s54, s51, 1'); k('s_lshl_b32 s54, s54, 5'); k('s_add_u32 s53, s53, s54'); k('s_lshr_b32 s54, s51, 1'); k('s_lshl_b32 s54, s54, 7'); k('s_add_u32 s53, s53, s54')
        k('s_lshl_b32 s52, s52, 10'); k('s_add_u32 s53, s53, s52'); k(f's_add_u32 m0, s53, {L_WO}'); k('s_nop 0')
        k(f'buffer_load_dwordx4 v4, s[{S_WO}:{S_WO+3}], 0 offen lds')
for n in range(100): assert (n*41)>>10==n//25

def dma_lin(k, srd, per_wave_chunks, ldsbase):
    n=(per_wave_chunks+63)//64
    k(f's_mul_i32 s51, s{S_WAVE}, {per_wave_chunks*16}'); k('v_lshlrev_b32 v3, 4, v1'); k('v_add_u32 v3, s51, v3')
    for m in range(n):
        rem=per_wave_chunks-64*m
        k(f's_add_u32 m0, s51, {ldsbase+1024*m}')
        if rem<64: k(f's_mov_b64 exec, {hex((1<<rem)-1)}')
        else: k('s_nop 0')
        k(f'buffer_load_dwordx4 v3, s[{srd}:{srd+3}], 0 offen offset:{1024*m} lds' if False else f'buffer_load_dwordx4 v3, s[{srd}:{srd+3}], 0 offen lds')
        if m+1<n: k('v_add_u32 v3, 1024, v3')
    k('s_mov_b64 exec, -1')
    return n

def wave_max32(k, v):
    for sh in (1,2,4,8):
        k('s_nop 1'); k(f'v_max_f32_dpp v{v}, v{v}, v{v} row_shr:{sh} row_mask:0xf bank_mask:0xf')
    k('s_nop 1'); k(f'v_max_f32_dpp v{v}, v{v}, v{v} row_bcast:15 row_mask:0xa bank_mask:0xf')

def poll_flags(k, off, nlanes, per_lane_dwords=1, vtmp=4, sleep=1):
    lab=k.label('poll'); done=k.label('polld')
    k('s_mov_b64 s[56:57], exec')
    if nlanes<64: k(f's_mov_b64 exec, {hex((1<<nlanes)-1)}')
    k(f'v_lshlrev_b32 v{vtmp}, {2+int(math.log2(per_lane_dwords))}, v1')
    k(f'{lab}:')
    if per_lane_dwords==1:
        k(f'buffer_load_dword v{vtmp+1}, v{vtmp}, {WS}, {off} offen sc1'); k('s_waitcnt vmcnt(0)')
        k(f'v_cmp_ne_u32 vcc, s{S_TAG}, v{vtmp+1}')
    else:
        assert (vtmp+2)%2==0
        k(f'buffer_load_dwordx4 v[{vtmp+2}:{vtmp+5}], v{vtmp}, {WS}, {off} offen sc1'); k('s_waitcnt vmcnt(0)')
        for j in range(4): k(f'v_xor_b32 v{vtmp+2+j}, s{S_TAG}, v{vtmp+2+j}')
        k(f'v_or_b32 v{vtmp+2}, v{vtmp+2}, v{vtmp+3}'); k(f'v_or_b32 v{vtmp+4}, v{vtmp+4}, v{vtmp+5}'); k(f'v_or_b32 v{vtmp+2}, v{vtmp+2}, v{vtmp+4}')
        k(f'v_cmp_ne_u32 vcc, 0, v{vtmp+2}')
    k(f's_cbranch_vccz {done}'); k(f's_sleep {sleep}'); k(f's_branch {lab}')
    k(f'{done}:'); k('s_mov_b64 exec, s[56:57]')
set_flag=fft2.set_flag

def kv_proj(k, vm):
    k.c('==== K/V projection')
    k(f's_and_b32 s48, s{S_WAVE}, 1'); k(f's_bfe_u32 s49, s{S_WAVE}, 0x10001'); k(f's_lshr_b32 s50, s{S_WAVE}, 2')
    k('v_and_b32 v3, 31, v1'); k('v_lshrrev_b32 v4, 5, v1')
    k('s_lshl_b32 s51, s48, 5'); k('v_add_u32 v5, s51, v3'); k(f'v_mul_u32_u24 v5, {XS}, v5')
    k('v_lshlrev_b32 v6, 4, v4'); k('s_lshl_b32 s51, s50, 7'); k('v_add3_u32 v12, v5, v6, s51')
    k('v_and_b32 v5, 15, v1'); k('v_lshrrev_b32 v6, 2, v5'); k('v_lshl_add_u32 v6, v4, 3, v6'); k('v_mul_u32_u24 v6, 40, v6')
    k('v_and_b32 v5, 3, v5'); k('v_lshlrev_b32 v5, 3, v5'); k('v_bfe_u32 v7, v1, 4, 1'); k('v_lshlrev_b32 v7, 5, v7'); k('v_add3_u32 v6, v6, v5, v7')
    k(f's_mul_i32 s51, s49, 25600'); k('s_mul_i32 s52, s50, 2560'); k('s_add_u32 s51, s51, s52'); k(f's_add_u32 s51, s51, {L_WKV}')
    k('v_add_u32 v13, s51, v6')
    ACC=16; XF=32; WF=48
    labV=k.label('V'); labJ=k.label('J')
    k('s_cmp_eq_u32 s49, 1'); k(f's_cbranch_scc1 {labV}')
    for isV in (0,1):
        if isV: k(f'{labV}:')
        for pos in range(5):
            ny=vm.younger([f'X{pos}','WK','WV','G'])
            k(f"s_waitcnt vmcnt({ny})"); k('s_barrier')
            k(f's_mul_i32 s51, s{S_KAP+pos}, 5120'); k('v_add_u32 v14, s51, v13')
            if pos: k(f'v_add_u32 v12, {XCH}, v12')
            for t in range(4):
                k(f'ds_read_b128 v[{XF+4*t}:{XF+4*t+3}], v12 offset:{32*t}')
                k(f'ds_read_b64_tr_b16 v[{WF+4*t}:{WF+4*t+1}], v14 offset:{640*t}')
                k(f'ds_read_b64_tr_b16 v[{WF+4*t+2}:{WF+4*t+3}], v14 offset:{640*t+160}')
            for t in range(4):
                k(f's_waitcnt lgkmcnt({3*(3-t)})')
                c='0' if (pos==0 and t==0) else f'v[{ACC}:{ACC+15}]'
                X=f'v[{XF+4*t}:{XF+4*t+3}]'; W=f'v[{WF+4*t}:{WF+4*t+3}]'
                k(f'v_mfma_f32_32x32x16_bf16 v[{ACC}:{ACC+15}], {X if isV else W}, {W if isV else X}, {c}')
        if not isV: k(f's_branch {labJ}')
    k(f'{labJ}:')
    k('s_barrier')
    dma_wchunk(k,0,True)
    k(f's_and_b32 s51, s{S_WAVE}, 3'); k(f's_lshl_b32 s51, s51, 12'); k(f's_add_u32 s51, s51, {L_SCR}')
    k('v_lshlrev_b32 v5, 4, v1'); k('v_add_u32 v5, s51, v5')
    labR=k.label('R'); labE=k.label('E')
    k('s_cmp_eq_u32 s50, 0'); k(f's_cbranch_scc1 {labR}')
    for r in range(4): k(f'ds_write_b128 v5, v[{ACC+4*r}:{ACC+4*r+3}] offset:{1024*r}')
    k('s_waitcnt lgkmcnt(0)'); k('s_barrier'); k(f's_branch {labE}')
    k(f'{labR}:')
    k('s_barrier')
    for r in range(4): k(f'ds_read_b128 v[{XF+4*r}:{XF+4*r+3}], v5 offset:{1024*r}')
    k('s_waitcnt lgkmcnt(0)')
    for r in range(16): k(f'v_add_f32 v{ACC+r}, v{ACC+r}, v{XF+r}')
    k(f's_lshl_b32 s51, s{S_RB}, 1'); k('s_add_u32 s51, s51, s48'); k('s_lshl_b32 s52, s51, 12'); k(f's_add_u32 s52, s52, {WS_KV}')
    labFV=k.label('FV')
    k('s_cmp_eq_u32 s49, 1'); k(f's_cbranch_scc1 {labFV}')
    for j in range(6): k(f'v_cvt_pk_bf16_f32 v{48+j}, v{ACC+2*j}, v{ACC+2*j+1}')
    k('v_cmp_gt_u32 vcc, 32, v1'); k('s_nop 1')
    k('v_cndmask_b32 v52, 0, v52, vcc'); k('v_cndmask_b32 v53, 0, v53, vcc')
    k('v_lshlrev_b32 v6, 4, v1'); k('v_lshlrev_b32 v7, 3, v1')
    k(f'buffer_store_dwordx4 v[48:51], v6, {WS}, s52 offen sc1')
    k(f'buffer_store_dwordx2 v[52:53], v7, {WS}, s52 offen offset:3072 sc1')
    k(f'v_mul_f32 v54, v{ACC}, v{ACC}')
    for r in range(1,8): k(f'v_fmac_f32 v54, v{ACC+r}, v{ACC+r}')
    k(f'v_mul_f32 v55, v{ACC+8}, v{ACC+8}')
    for r in range(9,12): k(f'v_fmac_f32 v55, v{ACC+r}, v{ACC+r}')
    k('v_cndmask_b32 v55, 0, v55, vcc'); k('v_add_f32 v54, v54, v55'); k('v_mov_b32 v55, v54'); k('s_nop 1')
    k('v_permlane32_swap_b32 v54, v55'); k('s_nop 1'); k('v_add_f32 v54, v54, v55')
    wave_max32(k,54)
    k('s_nop 0'); k('v_readlane_b32 s53, v54, 31')
    k(f's_lshl_b32 s55, s51, 3'); k(f's_add_u32 s55, s55, {WS_KM}')
    k('v_mov_b32 v57, s53'); k('v_mov_b32 v7, 0'); k('s_mov_b64 exec, 1')
    k(f'buffer_store_dword v57, v7, {WS}, s55 offen sc1'); k('s_mov_b64 exec, -1')
    k(f's_branch {labE}')
    k(f'{labFV}:')
    for j in range(8): k(f'v_cvt_pk_bf16_f32 v{48+j}, v{ACC+2*j}, v{ACC+2*j+1}')
    k('v_and_b32 v7, 31, v1'); k('v_cmp_eq_u32 vcc, 20, v7'); k('v_cmp_lt_u32 s[58:59], 20, v7'); k('v_mov_b32 v6, 0x3f803f80')
    for j in range(8):
        k(f'v_cndmask_b32 v{48+j}, v{48+j}, v6, vcc'); k(f'v_cndmask_b32 v{48+j}, v{48+j}, 0, s[58:59]')
    k('v_lshlrev_b32 v6, 4, v1')
    k(f'buffer_store_dwordx4 v[48:51], v6, {WS}, s52 offen offset:1024 sc1')
    k(f'buffer_store_dwordx4 v[52:55], v6, {WS}, s52 offen offset:2048 sc1')
    k(f'v_and_b32 v56, 0x7fffffff, v{ACC}')
    for r in range(1,16): k(f'v_max_f32 v56, v56, abs(v{ACC+r})')
    k('v_cmp_gt_u32 vcc, 20, v7'); k('s_nop 1'); k('v_cndmask_b32 v56, 0, v56, vcc')
    k('v_mov_b32 v57, v56'); k('s_nop 1'); k('v_permlane32_swap_b32 v56, v57'); k('s_nop 1'); k('v_max_f32 v56, v56, v57')
    wave_max32(k,56)
    k('s_nop 0'); k('v_readlane_b32 s53, v56, 31')
    k(f's_lshl_b32 s55, s51, 3'); k(f's_add_u32 s55, s55, {WS_KM+4}')
    k('v_mov_b32 v57, s53'); k('v_mov_b32 v7, 0'); k('s_mov_b64 exec, 1')
    k(f'buffer_store_dword v57, v7, {WS}, s55 offen sc1'); k('s_mov_b64 exec, -1')
    k(f'{labE}:')

QACC=16; QGA=32; QXF=48; QWF=64; QGF=176
def q_proj_setup(k):
    k(f's_and_b32 s48, s{S_WAVE}, 1'); k(f's_lshr_b32 s49, s{S_WAVE}, 1')
    k('v_and_b32 v3, 31, v1'); k('v_lshrrev_b32 v4, 5, v1')
    k('s_lshl_b32 s51, s48, 5'); k('v_add_u32 v5, s51, v3'); k(f'v_mul_u32_u24 v5, {XS}, v5'); k('v_lshl_add_u32 v8, v4, 4, v5')
    k('v_and_b32 v5, 15, v1'); k('v_lshrrev_b32 v6, 2, v5'); k('v_lshl_add_u32 v6, v4, 3, v6'); k('v_mul_u32_u24 v6, 192, v6')
    k('v_and_b32 v5, 3, v5'); k('v_lshlrev_b32 v5, 3, v5'); k('v_bfe_u32 v7, v1, 4, 1'); k('v_lshlrev_b32 v7, 5, v7'); k('v_add3_u32 v6, v6, v5, v7')
    k('s_mul_i32 s51, s49, 40'); k(f's_and_b32 s52, s{S_HG}, 1'); k('s_lshl_b32 s52, s52, 5'); k('s_add_u32 s51, s51, s52'); k('v_add_u32 v9, s51, v6')
    k('s_lshl_b32 s51, s49, 5'); k(f's_add_u32 s51, s51, {L_GW}'); k('v_lshl_add_u32 v14, v4, 4, s51')
    k('s_lshl_b32 s60, s49, 5'); k('v_add_u32 v10, s60, v8')
def q_proj_all(k, kv, vm, sched, first_tags, need, first_hook=None, post={}, kvpoll=False):
    q_proj_setup(k)
    def rd(s):
        p,tt=s>>3,s&7; b=s&3
        if tt==0:
            k(f'v_add_u32 v12, {xpos(kv,p)}, v8'); k(f'v_add_u32 v13, {wpos(kv,p)}, v9')
        k(f'ds_read_b128 v[{QXF+4*b}:{QXF+4*b+3}], v12 offset:{32*tt}')
        k(f'ds_read_b64_tr_b16 v[{QWF+4*b}:{QWF+4*b+1}], v13 offset:{3072*tt}')
        k(f'ds_read_b64_tr_b16 v[{QWF+4*b+2}:{QWF+4*b+3}], v13 offset:{3072*tt+768}')
    def rdg(p):
        g=QGF+16*(p&1)
        k(f's_lshl_b32 s51, s{S_KAP+p}, 8'); k('v_add_u32 v15, s51, v14'); k(f'v_add_u32 v11, {xpos(kv,p)}, v10')
        for i in range(2):
            k(f'ds_read_b128 v[{g+4*i}:{g+4*i+3}], v15 offset:{128*i}')
            k(f'ds_read_b128 v[{g+8+4*i}:{g+8+4*i+3}], v11 offset:{128*i}')
    k(f's_waitcnt vmcnt({vm.younger(first_tags)})'); k('s_barrier')
    if first_hook: first_hook()
    k.ts(3)
    if k.o.get('stop1'): k.tc(4)
    rd(0); rdg(0); rd(1); rd(2)
    for s in range(40):
        p,tt=s>>3,s&7
        if tt==5 and p<4:
            if k.o.get('stop1'): k.tc(5+2*p)
            k(f's_waitcnt vmcnt({vm.younger(need[p+1])}) lgkmcnt(0)')
            if k.o.get('stop1') and p==1: k.tc(15)
            k('s_barrier')
            if k.o.get('stop1'): k.tc(6+2*p)
            if p in post: post[p]()
        if s+3<40:
            rd(s+3)
            if (s+3)&7==0: rdg((s+3)>>3)
        if tt==0: k('s_waitcnt lgkmcnt(13)')
        elif tt<=4: k('s_waitcnt lgkmcnt(9)')
        elif p==4: k(f's_waitcnt lgkmcnt({3*(7-tt)})')
        b=s&3
        c='0' if s==0 else f'v[{QACC}:{QACC+15}]'
        k(f'v_mfma_f32_32x32x16_bf16 v[{QACC}:{QACC+15}], v[{QWF+4*b}:{QWF+4*b+3}], v[{QXF+4*b}:{QXF+4*b+3}], {c}')
        if tt in (2,4):
            i=(tt-2)>>1; g=QGF+16*(p&1)
            c='0' if (p==0 and i==0) else f'v[{QGA}:{QGA+15}]'
            k(f'v_mfma_f32_32x32x16_bf16 v[{QGA}:{QGA+15}], v[{g+4*i}:{g+4*i+3}], v[{g+8+4*i}:{g+8+4*i+3}], {c}')
        for (tag,fn,n) in sched.get(s,[]): vm.issue(tag,fn,n)
    if kvpoll:
        lab=k.label('kp'); k(f's_cmp_lg_u32 s{S_WAVE}, 7'); k(f's_cbranch_scc1 {lab}')
        k('s_and_b32 s53, s2, 7'); k('s_lshl_b32 s53, s53, 7'); k(f's_add_u32 s53, s53, {WS_FKV}'); poll_flags(k,'s53',32,sleep=2)
        k(f'{lab}:')

def spread(ops, steps):
    d={}
    for i,(tag,fn) in enumerate(ops):
        st=steps[min(i*len(steps)//len(ops), len(steps)-1)]
        d.setdefault(st,[]).append((tag,fn,1))
    return d
def merge(*ds):
    o={}
    for d in ds:
        for kk,v in d.items(): o.setdefault(kk,[]).extend(v)
    return o

def q_finalize(k):
    ACC=QACC
    k('s_nop 15')
    k(f's_mov_b32 s50, {f2u(CSCALE):#x}')
    for r in range(12): k(f'v_mul_f32 v{ACC+r}, s50, v{ACC+r}')
    for j in range(6): k(f'v_cvt_pk_bf16_f32 v{48+j}, v{ACC+2*j}, v{ACC+2*j+1}')
    k('v_cmp_gt_u32 vcc, 32, v1')
    k(f'v_mul_f32 v54, v{ACC}, v{ACC}')
    for r in range(1,8): k(f'v_fmac_f32 v54, v{ACC+r}, v{ACC+r}')
    k(f'v_mul_f32 v55, v{ACC+8}, v{ACC+8}')
    for r in range(9,12): k(f'v_fmac_f32 v55, v{ACC+r}, v{ACC+r}')
    k('v_cndmask_b32 v55, 0, v55, vcc')
    k('v_cndmask_b32 v52, 0, v52, vcc'); k('v_cndmask_b32 v53, 0, v53, vcc')
    k('v_add_f32 v54, v54, v55'); k('v_mov_b32 v55, v54'); k('s_nop 1')
    k('v_permlane32_swap_b32 v54, v55'); k('s_nop 1'); k('v_add_f32 v54, v54, v55')
    wave_max32(k,54)

K1=24; K2=56; VV=72; SS=136; PP=168; OO=176; Q1=208; Q2=216
VOA=220; VQ1A=221; VQ2A=222; VOB=223; VQ2S=23
def load_kv(k):
    k('v_lshlrev_b32 v3, 4, v1'); k('v_lshlrev_b32 v4, 3, v1')
    k(f's_lshl_b32 s48, s{S_WAVE}, 15'); k(f's_add_u32 s48, s48, {WS_KV}')
    for t in range(8):
        k(f'buffer_load_dwordx4 v[{K1+4*t}:{K1+4*t+3}], v3, {WS}, s48 offen sc1')
        k(f'buffer_load_dwordx2 v[{K2+2*t}:{K2+2*t+1}], v4, {WS}, s48 offen offset:3072 sc1')
        k(f'buffer_load_dwordx4 v[{VV+8*t}:{VV+8*t+3}], v3, {WS}, s48 offen offset:1024 sc1')
        k(f'buffer_load_dwordx4 v[{VV+8*t+4}:{VV+8*t+7}], v3, {WS}, s48 offen offset:2048 sc1')
        k('s_add_u32 s48, s48, 4096')
VKA=248; VKB=249; S_KVB=90
def load_kv_setup(k):
    k(f'v_lshlrev_b32 v{VKA}, 4, v1'); k(f'v_lshlrev_b32 v{VKB}, 3, v1')
    k(f's_lshl_b32 s{S_KVB}, s{S_WAVE}, 15'); k(f's_add_u32 s{S_KVB}, s{S_KVB}, {WS_KV}')
def load_kv_tile(k,t):
    k(f's_add_u32 s51, s{S_KVB}, {4096*t}')
    k(f'buffer_load_dwordx4 v[{K1+4*t}:{K1+4*t+3}], v{VKA}, {WS}, s51 offen sc1')
    k(f'buffer_load_dwordx2 v[{K2+2*t}:{K2+2*t+1}], v{VKB}, {WS}, s51 offen offset:3072 sc1')
    k(f'buffer_load_dwordx4 v[{VV+8*t}:{VV+8*t+3}], v{VKA}, {WS}, s51 offen offset:1024 sc1')
    k(f'buffer_load_dwordx4 v[{VV+8*t+4}:{VV+8*t+7}], v{VKA}, {WS}, s51 offen offset:2048 sc1')
CI=6
def attn_addr(k):
    k('v_lshlrev_b32 v3, 4, v1'); k(f'v_add_u32 v{VQ1A}, {L_Q1}, v3'); k('v_lshlrev_b32 v4, 3, v1'); k(f'v_add_u32 v{VQ2A}, {L_Q2}, v4')
    k('v_cmp_gt_u32 vcc, 32, v1'); k(f'v_mov_b32 v3, {L_ZERO}'); k('v_mov_b32 v4, 0x100')
    k(f'v_cndmask_b32 v{VQ2A}, v3, v{VQ2A}, vcc'); k(f'v_cndmask_b32 v{VQ2S}, 0, v4, vcc')
    k('v_and_b32 v8, 31, v1'); k('v_lshrrev_b32 v9, 5, v1'); k('v_lshlrev_b32 v8, 3, v8'); k('v_lshl_add_u32 v8, v9, 10, v8'); k(f'v_add_u32 v{VOB}, {L_O}, v8')
def read_q(k, par):
    k(f's_lshl_b32 s49, s{S_QT}, 10'); k(f'v_add_u32 v3, s49, v{VQ1A}'); k(f'v_mad_u32_u24 v4, s{S_QT}, v{VQ2S}, v{VQ2A}')
    k(f'ds_read_b128 v[{Q1+4*par}:{Q1+4*par+3}], v3'); k(f'ds_read_b64 v[{Q2+2*par}:{Q2+2*par+1}], v4')
def flush_O(k, O):
    Tm=224; idx=0
    for g in range(3):
        for i in range(4):
            k(f'v_cvt_f64_f32 v[{Tm+2*idx}:{Tm+2*idx+1}], v{O+4*g+i}'); idx+=1
    idx=0
    for g in range(3):
        for i in range(4):
            if g==2 and i==1: k('s_mov_b32 exec_hi, 0')
            k(f'ds_add_f64 v{VOA}, v[{Tm+2*idx}:{Tm+2*idx+1}] offset:{(8*g+i)*256}'); idx+=1
    k('s_mov_b64 exec, -1')
def attn_qtile(k, par, first, loads=False, slow=False):
    S=lambda b: SS+16*b
    O=OO+16*par; Oprev=OO+16*(1-par)
    q1=f'v[{Q1+4*par}:{Q1+4*par+3}]'; q2=f'v[{Q2+2*par}:{Q2+2*par+1}]'
    def smfma(t, half):
        b=t&1
        if half==0: k(f'v_mfma_f32_32x32x16_bf16 v[{S(b)}:{S(b)+15}], v[{K1+4*t}:{K1+4*t+3}], {q1}, '+(f'v[{CI}:{CI+15}]' if slow else '0'))
        else: k(f'v_mfma_f32_32x32x8_bf16 v[{S(b)}:{S(b)+15}], v[{K2+2*t}:{K2+2*t+1}], {q2}, v[{S(b)}:{S(b)+15}]')
    def pv(t, s):
        c='0' if (t==0 and s==0) else f'v[{O}:{O+15}]'
        k(f'v_mfma_f32_32x32x16_bf16 v[{O}:{O+15}], v[{VV+8*t+4*s}:{VV+8*t+4*s+3}], v[{PP+4*s}:{PP+4*s+3}], {c}')
    if slow:
        k(f's_lshl_b32 s49, s{S_QT}, 7'); k('v_and_b32 v3, 31, v1'); k('v_lshlrev_b32 v3, 2, v3'); k('v_add_u32 v3, s49, v3')
        k(f'ds_read_b32 v4, v3 offset:{L_IST}')
        k('s_waitcnt lgkmcnt(0)')
        for r in range(16): k(f'v_sub_f32 v{CI+r}, 0, v4')
        k('s_nop 1')
    k('s_waitcnt lgkmcnt(0)')
    if loads: k('s_waitcnt vmcnt(6)')
    smfma(0,0); smfma(0,1)
    if not first: flush_O(k, Oprev)
    k(f's_add_u32 s48, s{S_QT}, 1'); k('s_and_b32 s48, s48, 7')
    k('s_lshl_b32 s49, s48, 10'); k(f'v_add_u32 v3, s49, v{VQ1A}')
    k(f'v_mad_u32_u24 v4, s48, v{VQ2S}, v{VQ2A}')
    k(f'ds_read_b128 v[{Q1+4*(1-par)}:{Q1+4*(1-par)+3}], v3')
    k(f'ds_read_b64 v[{Q2+2*(1-par)}:{Q2+2*(1-par)+1}], v4')
    k(f's_mul_i32 s49, s{S_QT}, {OT}'); k(f'v_add_u32 v{VOA}, s49, v{VOB}')
    if first: k('s_nop 3')
    for t in range(8):
        b=t&1; s0=S(b); sp=S(1-b)
        E=lambda r: k(f'v_exp_f32 v{s0+r}, v{s0+r}')
        C=lambda j: k(f'v_cvt_pk_bf16_f32 v{PP+j}, v{s0+2*j}, v{s0+2*j+1}')
        Cp=lambda j: k(f'v_cvt_pk_bf16_f32 v{PP+j}, v{sp+2*j}, v{sp+2*j+1}')
        if loads:
            if t+2<8: load_kv_tile(k,t+2); k('s_waitcnt vmcnt(6)')
            elif t==6: k('s_waitcnt vmcnt(2)')
            else: k('s_waitcnt vmcnt(0)')
        if k.o.get('prioalt'):
            la=k.label('pa'); lb=k.label('pb')
            k(f's_bitcmp1_b32 s92, 0'); k(f's_cbranch_scc1 {la}'); k(f's_setprio {t&1}'); k(f's_branch {lb}'); k(f'{la}:'); k(f's_setprio {1-(t&1)}'); k(f'{lb}:')
        E(0); E(1)
        if t>0: Cp(6)
        E(2)
        if t>0: Cp(7)
        if t<7: smfma(t+1,0)
        E(3); E(4); C(0); E(5)
        if t>0: pv(t-1,1)
        E(6); C(1); E(7); E(8)
        if t<7: smfma(t+1,1)
        C(2); E(9); E(10); C(3); E(11); E(12)
        pv(t,0)
        C(4); E(13); E(14); C(5); E(15)
    s0=S(1)
    k('s_nop 0')
    k(f'v_cvt_pk_bf16_f32 v{PP+6}, v{s0+12}, v{s0+13}'); k(f'v_cvt_pk_bf16_f32 v{PP+7}, v{s0+14}, v{s0+15}')
    k('s_nop 1')
    pv(7,1)
    k(f's_mov_b32 s{S_QT}, s48')
    if k.o.get('tq'):
        k(f's_memtime s[{S_TS}:{S_TS+1}]'); k('s_waitcnt lgkmcnt(0)'); k('s_add_u32 s93, s93, 1'); k('s_mov_b32 m0, s93'); k('s_nop 1'); k(f'v_writelane_b32 v255, s{S_TS}, m0')
def attn_pairs(k, npairs, loads=False, slow=False):
    read_q(k,0)
    attn_qtile(k,0,True,loads,slow); attn_qtile(k,1,False,False,slow)
    if npairs>1:
        k(f's_mov_b32 s{S_IT}, 1')
        lp=k.label('attn'); k(f'{lp}:')
        attn_qtile(k,0,False,False,slow); attn_qtile(k,1,False,False,slow)
        k(f's_add_u32 s{S_IT}, s{S_IT}, 1'); k(f's_cmp_lt_u32 s{S_IT}, {npairs}'); k(f's_cbranch_scc1 {lp}')
    k('s_nop 15')
    flush_O(k,OO+16)

def code_prefetch(k):
    k('s_lshr_b32 s48, s2, 3'); k('s_lshl_b32 s48, s48, 3'); k(f's_add_u32 s48, s48, s{S_WAVE}'); k('s_lshl_b32 s48, s48, 10')
    k(f's_min_u32 s48, s48, {NAME}_tblend-{NAME}-1024')
    k(f's_sub_u32 s50, s{S_TBL}, {NAME}_tbl-{NAME}'); k(f's_subb_u32 s51, s{S_TBL+1}, 0')
    k('v_lshlrev_b32 v3, 4, v1'); k('v_add_u32 v3, s48, v3'); k('v_mov_b32 v5, s51'); k('v_add_co_u32 v4, vcc, s50, v3'); k('v_addc_co_u32 v5, vcc, 0, v5, vcc')
    k('global_load_dwordx4 v[244:247], v[4:5], off')

def early_phase(k, kv, vm, landed=False):
    L_WR = 83968
    E=k.o.get('tearly')
    if not landed:
        ne=vm.younger(['E'])
        k(f's_waitcnt vmcnt({ne})'); k('s_barrier')
    F.row_consts_read(k,L_RC)
    if not kv: F.w_read_lds(k,L_WR)
    F.row_compute_regs(k,L_RST)
    if E: k.tc(8)
    F.row_write_ex(k,L_RST)
    k('s_waitcnt lgkmcnt(0)')
    if E: k.tc(10)
    k('s_barrier')
    if E: k.tc(11)
    def st(): F.xw_store2(k,L_RST)
    vm.issue('XS',st,4)
    if E:
        k.tc(12); k.ts_flush(); k('s_endpgm')

def slow_maxpass(k):
    k('v_and_b32 v5, 31, v1'); k('v_lshlrev_b32 v5, 2, v5'); k(f'v_add_u32 v5, {L_IST}, v5')
    k(f's_mov_b32 s{S_IT}, 0')
    lp=k.label('mx'); k(f'{lp}:')
    k(f's_mov_b32 s{S_QT}, s{S_IT}')
    read_q(k,0)
    k('v_mov_b32 v6, 0xff800000')
    k('s_waitcnt lgkmcnt(0)')
    for t in range(8):
        k(f'v_mfma_f32_32x32x16_bf16 v[{SS}:{SS+15}], v[{K1+4*t}:{K1+4*t+3}], v[{Q1}:{Q1+3}], 0')
        k(f'v_mfma_f32_32x32x8_bf16 v[{SS}:{SS+15}], v[{K2+2*t}:{K2+2*t+1}], v[{Q2}:{Q2+1}], v[{SS}:{SS+15}]')
        k('s_nop 15')
        for r in range(0,16,2): k(f'v_max3_f32 v6, v6, v{SS+r}, v{SS+r+1}')
    k(f's_lshl_b32 s49, s{S_IT}, 7'); k('v_add_u32 v7, s49, v5')
    k('ds_max_f32 v7, v6')
    k(f's_add_u32 s{S_IT}, s{S_IT}, 1'); k(f's_cmp_lt_u32 s{S_IT}, 8'); k(f's_cbranch_scc1 {lp}')
    k('s_waitcnt lgkmcnt(0)')

def lds_count_last(k, cnt_off, target, do):
    lab=k.label('cl')
    k(f'v_mov_b32 v5, {L_CNT+cnt_off}'); k('v_mov_b32 v6, 1'); k('s_mov_b64 s[58:59], exec'); k('s_mov_b64 exec, 1')
    k('ds_add_rtn_u32 v7, v5, v6'); k('s_waitcnt lgkmcnt(0)'); k('s_mov_b64 exec, s[58:59]')
    k('v_readfirstlane_b32 s55, v7'); k(f's_cmp_lg_u32 s55, {target-1}'); k(f's_cbranch_scc1 {lab}')
    do()
    k(f'{lab}:')

def build(opts):
    k=G(opts)
    prologue(k)
    isKV=k.label('KV'); join=k.label('JQ')
    setup_dma(k)
    k(f's_cmp_eq_u32 s{S_HG}, 0'); k(f's_cbranch_scc1 {isKV}')
    def fx_hook():
        labP=k.label('FX'); k(f's_cmp_lg_u32 s{S_WAVE}, 0'); k(f's_cbranch_scc1 {labP}')
        k('s_mov_b32 s74, s2'); set_flag(k,WS_FX,74); k.ts(15); k(f'{labP}:')
    vm=VM()
    vm.issue('E',lambda: F.early_issue(k,L_RST,L_RC,83968),6)
    if opts.get('pf'): vm.issue('PF',lambda: code_prefetch(k))
    vm.issue('G',lambda: dma_lin(k,S_GW,10,L_GW))
    for p in range(2):
        for t,f in ops_x(k,p,False)+ops_w(k,p,False): vm.issue(t,f)
    k('s_waitcnt lgkmcnt(0)'); k(f's_add_u32 s{S_TAG}, s{S_TAG}, 1')
    k.ts(1)
    early_phase(k,False,vm)
    k.ts(2)
    P=lambda p: ops_x(k,p,False)+ops_w(k,p,False)
    sched=merge(spread(P(2),[0,1,2,3,4]), spread(P(3),[5,6,7,8,9,10]), spread(P(4),[13,14,15,16,17,18]))
    need=[None]+[(f'X{p}',f'W{p}') for p in range(1,5)]
    q_proj_all(k,False,vm,sched,('X0','W0'),need,post={1:fx_hook},kvpoll=True)
    k(f's_branch {join}')
    k(f'{isKV}:')
    vm=VM()
    vm.issue('G',lambda: dma_lin(k,S_GW,10,L_GW))
    vm.issue('WK',lambda: dma_lin(k,S_WK,200,L_WKV),4); vm.issue('WV',lambda: dma_lin(k,S_WV,200,L_WKV+25600),4)
    for p in range(5):
        for t,f in ops_x(k,p,True): vm.issue(t,f)
    vm.issue('E',lambda: F.early_issue_kv(k,L_RST,L_RC),20)
    k('s_waitcnt lgkmcnt(0)'); k(f's_add_u32 s{S_TAG}, s{S_TAG}, 1')
    k.ts(1)
    kv_proj(k,vm)
    k('s_waitcnt vmcnt(0)'); k('s_barrier')
    labP=k.label('P')
    k(f's_cmp_lg_u32 s{S_WAVE}, 0'); k(f's_cbranch_scc1 {labP}')
    k(f's_lshl_b32 s54, s{S_RB}, 2'); k(f's_add_u32 s54, s54, {WS_FKV}')
    k(f'v_mov_b32 v5, s{S_TAG}'); k('v_lshlrev_b32 v6, 7, v1'); k('s_mov_b64 exec, 0xff')
    k(f'buffer_store_dword v5, v6, {WS}, s54 offen sc1'); k('s_mov_b64 exec, -1')
    k(f'{labP}:')
    k.ts(2)
    vm=VM(); vm.L+=['FL']
    for t,f in ops_w(k,1,True): vm.issue(t,f)
    early_phase(k,True,vm,landed=True)
    Wp=lambda p: ops_w(k,p,True)
    sched=merge(spread(Wp(2),[0,1,2]), spread(Wp(3),[5,6,7]), spread(Wp(4),[13,14,15]))
    need=[None]+[(f'W{p}',) for p in range(1,5)]
    q_proj_all(k,True,vm,sched,('W1',),need,post={1:fx_hook},kvpoll=True)
    k(f'{join}:')
    q_finalize(k)
    k('s_nop 1'); k('v_readlane_b32 s50, v54, 31')
    if opts.get('stop1'): k.tc(13)
    k('s_barrier')
    if opts.get('stop1'):
        k.tc(14); k.ts_flush(); k(f'{NAME}_end:'); k('s_endpgm'); k.L.append(T.table_text(f'{NAME}_tbl')+f'{NAME}_tblend:\n'); return k
    k.ts(4)
    if opts.get('stop1'):
        k.ts_flush(); k(f'{NAME}_end:'); k('s_endpgm'); k.L.append(T.table_text(f'{NAME}_tbl')+f'{NAME}_tblend:\n'); return k
    k(f's_lshl_b32 s51, s{S_WAVE}, 10'); k('v_lshlrev_b32 v3, 4, v1'); k(f'v_add_u32 v3, s51, v3'); k(f'ds_write_b128 v3, v[48:51] offset:{L_Q1}')
    k(f's_lshl_b32 s51, s{S_WAVE}, 8'); k('v_lshlrev_b32 v4, 3, v1'); k(f'v_add_u32 v4, s51, v4')
    k('v_cmp_gt_u32 vcc, 32, v1'); k(f'v_mov_b32 v7, {L_ZERO-L_Q2}'); k('s_nop 0'); k('v_cndmask_b32 v4, v7, v4, vcc'); k(f'ds_write_b64 v4, v[52:53] offset:{L_Q2}')
    k(f's_lshl_b32 s51, s{S_WAVE}, 2'); k(f's_add_u32 s51, s51, {L_M}'); k('v_mov_b32 v5, s51'); k('v_mov_b32 v6, s50'); k('ds_write_b32 v5, v6')
    k(f's_lshr_b32 s51, s{S_WAVE}, 1'); k('s_lshl_b32 s51, s51, 8'); k(f's_and_b32 s52, s{S_WAVE}, 1'); k('s_lshl_b32 s52, s52, 7'); k('s_add_u32 s51, s51, s52'); k(f's_add_u32 s51, s51, {L_Z}')
    k('v_lshlrev_b32 v5, 2, v1'); k('v_add_u32 v5, s51, v5'); k('s_mov_b32 exec_hi, 0'); k(f'ds_write_b32 v5, v{QGA}'); k('s_mov_b64 exec, -1')
    load_kv_setup(k)
    lab=k.label('ekv'); k(f's_cmp_lt_u32 s{S_WAVE}, 2'); k(f's_cbranch_scc1 {lab}')
    k('s_waitcnt lgkmcnt(0)')
    k('v_lshlrev_b32 v5, 3, v1'); k(f's_mov_b32 s48, {WS_KM}')
    k(f'buffer_load_dwordx2 v[20:21], v5, {WS}, s48 offen sc1')
    load_kv_tile(k,0); load_kv_tile(k,1)
    k(f'{lab}:')
    k('v_mov_b32 v6, 0xff800000'); k('v_lshlrev_b32 v5, 2, v1'); k(f's_lshl_b32 s51, s{S_WAVE}, 7'); k('v_add_u32 v5, s51, v5'); k('s_mov_b32 exec_hi, 0'); k(f'ds_write_b32 v5, v6 offset:{L_IST}'); k('s_mov_b64 exec, -1')
    for j in range(4): k(f'v_mov_b32 v{16+j}, 0')
    k('v_lshlrev_b32 v5, 4, v0'); k(f'v_add_u32 v5, {L_O}, v5')
    for j in range(5): k(f'ds_write_b128 v5, v[16:19] offset:{8192*j}')
    k('v_cmp_gt_u32 vcc, 128, v0'); k('s_and_saveexec_b64 s[56:57], vcc'); k(f'ds_write_b128 v5, v[16:19] offset:{8192*5}'); k('s_mov_b64 exec, s[56:57]')
    k(f'v_lshlrev_b32 v5, 2, v1'); k(f'v_add_u32 v5, {L_CNT}, v5'); k('s_mov_b64 exec, 0xffff'); k('ds_write_b32 v5, v16'); k('s_mov_b64 exec, -1')
    k('s_waitcnt lgkmcnt(0)')
    def tables_dma_4waves():
        per=(F.NCT+3)//4
        k('v_lshlrev_b32 v3, 4, v1'); k(f's_sub_u32 s50, s{S_WAVE}, 4')
        for m in range(per):
            k(f's_add_u32 s48, s50, {4*m}'); k(f's_min_u32 s48, s48, {F.NCT-1}'); k('s_lshl_b32 s48, s48, 10')
            k(f's_add_u32 s49, s48, {F.CT0*1024}'); k('v_add_u32 v4, s49, v3')
            k(f'v_mov_b32 v5, s{S_TBL+1}'); k(f'v_add_co_u32 v4, vcc, s{S_TBL}, v4'); k('v_addc_co_u32 v5, vcc, 0, v5, vcc')
            k(f's_add_u32 m0, s48, {L_WO}'); k('s_nop 0')
            k('global_load_lds_dwordx4 v[4:5], off')
    def consts_dma():
        k('v_lshlrev_b32 v3, 4, v1')
        fl=[F.IC_FIRST+i for i in range(F.IC_N)]+[T.FR[x] for x in ('c_t32c0','c_t32n0','c_t32c1','c_t32n1')]
        for i,fr in enumerate(fl):
            k(f'v_add_u32 v4, {fr*1024}, v3'); k(f'v_mov_b32 v5, s{S_TBL+1}'); k(f'v_add_co_u32 v4, vcc, s{S_TBL}, v4'); k('v_addc_co_u32 v5, vcc, 0, v5, vcc')
            k(f's_mov_b32 m0, {L_IC+1024*i}'); k('s_nop 0'); k('global_load_lds_dwordx4 v[4:5], off')
    def lds_add(off):
        k(f'v_mov_b32 v5, {L_CNT+off}'); k('v_mov_b32 v6, 1'); k('s_mov_b64 exec, 1'); k('ds_add_u32 v5, v6'); k('s_mov_b64 exec, -1')
    def lds_wait(off, target):
        lp=k.label('lw'); lq=k.label('lq'); k(f'v_mov_b32 v5, {L_CNT+off}'); k(f'{lp}:'); k('ds_read_b32 v6, v5'); k('s_waitcnt lgkmcnt(0)'); k('v_readfirstlane_b32 s48, v6')
        k(f's_cmp_lt_u32 s48, {target}'); k(f's_cbranch_scc0 {lq}'); k('s_sleep 2'); k(f's_branch {lp}'); k(f'{lq}:')
    k('s_barrier')
    k.ts(5)
    lkv=k.label('kv'); ljoin=k.label('kj'); lno=k.label('noc'); l7=k.label('w7'); l3=k.label('w3a'); lw=k.label('lw2')
    k(f's_cmp_lt_u32 s{S_WAVE}, 2'); k(f's_cbranch_scc0 {lkv}')
    k('v_lshlrev_b32 v6, 4, v1'); k(f's_mov_b32 s53, {WS_FX}')
    k(f'buffer_load_dwordx4 v[8:11], v6, {WS}, s53 offen sc1')
    half=F.NCT//2
    k('v_lshlrev_b32 v3, 4, v1'); k(f's_mul_i32 s48, s{S_WAVE}, {half*1024}'); k(f's_add_u32 s49, s48, {F.CT0*1024}'); k('v_add_u32 v3, s49, v3')
    k(f'v_mov_b32 v5, s{S_TBL+1}'); k(f'v_add_co_u32 v4, vcc, s{S_TBL}, v3'); k('v_addc_co_u32 v5, vcc, 0, v5, vcc')
    for n in range(half):
        k(f's_add_u32 m0, s48, {L_WO+1024*n}')
        if n:
            k('v_add_co_u32 v4, vcc, 0x400, v4'); k('v_addc_co_u32 v5, vcc, 0, v5, vcc')
        else: k('s_nop 0')
        k('global_load_lds_dwordx4 v[4:5], off')
    k(f's_waitcnt vmcnt({half})')
    for j in range(4): k(f'v_xor_b32 v{8+j}, s{S_TAG}, v{8+j}')
    k('v_or_b32 v8, v8, v9'); k('v_or_b32 v10, v10, v11'); k('v_or_b32 v8, v8, v10'); k('v_cmp_ne_u32 vcc, 0, v8')
    lok=k.label('fxok'); k(f's_cbranch_vccz {lok}')
    k(f's_mov_b32 s53, {WS_FX}'); poll_flags(k,'s53',64,4,sleep=8)
    k(f'{lok}:')
    lab=k.label('ep'); k('s_cmp_lg_u32 s2, 0'); k(f's_cbranch_scc1 {lab}'); k(f's_cmp_lg_u32 s{S_WAVE}, 0'); k(f's_cbranch_scc1 {lab}'); k('s_mov_b32 s60, 0'); set_flag(k,WS_EPOCH,60); k(f'{lab}:')
    lhas=k.label('has'); lskip=k.label('skp')
    k(f's_cmp_eq_u32 s{S_WAVE}, 0'); k(f's_cbranch_scc1 {lhas}')
    k(f's_cmp_lt_u32 s{S_COL}, 65'); k(f's_cbranch_scc1 {lhas}')
    k('s_waitcnt vmcnt(0)'); lds_add(28)
    k(f's_branch {lno}')
    k(f'{lhas}:')
    k(f's_lshl_b32 s61, s{S_WAVE}, 8'); k(f's_add_u32 s61, s61, s{S_COL}')
    k(f's_mul_i32 s62, s{S_WAVE}, {L_YS1-L_YS0}'); k(f's_add_u32 s62, s62, {L_YS0}')
    F.col_issue(k,61)
    k('s_waitcnt vmcnt(16)'); lds_add(28)
    k('s_waitcnt vmcnt(0)')
    lds_wait(28,2)
    k.ts(13)
    F.col_fft(k,61,L_WO,None)
    k.ts(14)
    k(f'{lno}:')
    load_kv(k)
    k('s_waitcnt vmcnt(32)')
    k(f's_mul_i32 s61, s{S_WAVE}, {WS_FY2-WS_FY}'); k(f's_add_u32 s61, s61, {WS_FY}')
    k(f's_lshl_b32 s54, s2, 2'); k('s_add_u32 s54, s54, s61')
    k(f'v_mov_b32 v5, s{S_TAG}'); k('v_mov_b32 v6, 0'); k('s_mov_b64 exec, 1')
    k(f'buffer_store_dword v5, v6, {WS}, s54 offen sc1'); k('s_mov_b64 exec, -1')
    lds_add(4)
    k('v_lshlrev_b32 v5, 3, v1'); k(f's_mov_b32 s48, {WS_KM}')
    k(f'buffer_load_dwordx2 v[20:21], v5, {WS}, s48 offen sc1')
    k('s_waitcnt vmcnt(0)')
    k(f's_mov_b32 s91, 0')
    k(f's_branch {ljoin}')
    k(f'{lkv}:')
    k(f's_mov_b32 s91, 1')
    k('s_waitcnt vmcnt(8)')
    k(f'{ljoin}:')
    k(f'v_mov_b32 v5, {L_M}'); k('ds_read_b128 v[12:15], v5'); k('ds_read_b128 v[16:19], v5 offset:16')
    attn_addr(k)
    k('s_waitcnt lgkmcnt(0)')
    k.ts(6); k.tc(10)
    k('v_max_f32 v12, v12, v13'); k('v_max_f32 v14, v14, v15'); k('v_max_f32 v16, v16, v17'); k('v_max_f32 v18, v18, v19')
    k('v_max_f32 v12, v12, v14'); k('v_max_f32 v16, v16, v18'); k('v_max_f32 v12, v12, v16')
    for v in (20,21):
        k(f'v_mov_b32 v10, v{v}'); k('s_nop 1'); k(f'v_permlane32_swap_b32 v{v}, v10'); k('s_nop 1'); k(f'v_max_f32 v{v}, v{v}, v10'); wave_max32(k,v)
    k('s_nop 0'); k('v_readlane_b32 s48, v20, 31'); k('v_readlane_b32 s49, v21, 31'); k('s_nop 1')
    k('v_mul_f32 v12, s48, v12')
    TH=3600.0 if not opts.get('forceslow') else -1.0
    k(f'v_mov_b32 v13, {f2u(TH):#x}'); k('v_cmp_le_f32 vcc, v12, v13')
    k(f'v_mov_b32 v14, s49'); k(f'v_mov_b32 v13, {f2u(2.0**40):#x}'); k('v_cmp_le_f32 s[58:59], v14, v13'); k('s_nop 1')
    k('s_and_b64 vcc, vcc, s[58:59]')
    lslow=k.label('slow'); lend=k.label('aend'); lres=k.label('res'); ldone=k.label('adone')
    k(f's_mov_b32 s{S_QT}, s{S_WAVE}')
    k(f's_lshr_b32 s92, s{S_WAVE}, 2')
    if opts.get('tq'): k.tc(0); k('s_mov_b32 s93, 0')
    if opts.get('priohi'):
        lab=k.label('ph'); k(f's_cmp_lt_u32 s{S_WAVE}, 4'); k(f's_cbranch_scc1 {lab}'); k('s_setprio 1'); k(f'{lab}:')
    k(f's_cbranch_vccz {lslow}')
    k('s_cmp_eq_u32 s91, 0'); k(f's_cbranch_scc1 {lres}')
    attn_pairs(k,1,loads=True)
    lab=k.label('c3'); k(f's_cmp_lg_u32 s{S_WAVE}, 3'); k(f's_cbranch_scc1 {lab}')
    consts_dma(); k('s_waitcnt vmcnt(0)'); lds_add(20)
    k(f'{lab}:')
    attn_pairs(k,3)
    k(f's_branch {ldone}')
    k(f'{lres}:')
    attn_pairs(k,4)
    k(f's_branch {ldone}')
    k(f'{lslow}:')
    lab=k.label('sl1'); k('s_cmp_eq_u32 s91, 0'); k(f's_cbranch_scc1 {lab}')
    for t in range(2,8): load_kv_tile(k,t)
    k(f'{lab}:')
    lab=k.label('sl3'); k(f's_cmp_lg_u32 s{S_WAVE}, 3'); k(f's_cbranch_scc1 {lab}')
    consts_dma(); k('s_waitcnt vmcnt(0)'); lds_add(20)
    k(f'{lab}:')
    k('s_waitcnt vmcnt(0)')
    slow_maxpass(k)
    k('s_barrier')
    k(f's_mov_b32 s{S_QT}, s{S_WAVE}')
    attn_pairs(k,4,slow=True)
    k('s_waitcnt lgkmcnt(0)'); k('s_barrier')
    k(f'{ldone}:')
    k('s_setprio 0')
    k.tc(11); k.ts(12)
    l3=k.label('w3'); l2=k.label('w2')
    k(f's_cmp_eq_u32 s{S_WAVE}, 3'); k(f's_cbranch_scc1 {l3}')
    k(f's_cmp_eq_u32 s{S_WAVE}, 2'); k(f's_cbranch_scc1 {l2}')
    k(f's_branch {lend}')
    k(f'{l3}:')
    lds_wait(4,2)
    k(f's_mov_b32 s62, s{S_WAVE}')
    k(f's_mov_b32 s{S_WAVE}, 0')
    dma_wo(k,range(0,85),85,step=1)
    k(f's_mov_b32 s{S_WAVE}, s62')
    k(f's_branch {lend}')
    k(f'{l2}:')
    lp=k.label('pyy'); dn=k.label('pyd')
    k('v_lshlrev_b32 v4, 4, v1'); k(f's_mov_b32 s53, {WS_FY}')
    k(f'{lp}:')
    k(f'buffer_load_dwordx4 v[6:9], v4, {WS}, s53 offen sc1'); k(f'buffer_load_dwordx4 v[10:13], v4, {WS}, s53 offen offset:1024 sc1'); k('s_waitcnt vmcnt(0)')
    for j in range(8): k(f'v_xor_b32 v{6+j}, s{S_TAG}, v{6+j}')
    for j in range(1,8): k(f'v_or_b32 v6, v6, v{6+j}')
    k('v_cmp_ne_u32 vcc, 0, v6'); k(f's_cbranch_vccz {dn}'); k('s_sleep 10'); k(f's_branch {lp}'); k(f'{dn}:')
    lds_wait(20,1)
    k.ts(13); F.row_ifft_duty(k,L_IST,L_IC); k.ts(14)
    k(f's_mov_b32 s62, s{S_WAVE}'); k(f's_mov_b32 s{S_WAVE}, 0')
    dma_wo(k,range(85,100),100,step=1)
    k(f's_mov_b32 s{S_WAVE}, s62')
    k(f'{lend}:')
    k('s_waitcnt vmcnt(0) lgkmcnt(0)'); k('s_barrier')
    k.ts(7)
    def norm_task(tau_sgpr):
        k('v_lshrrev_b32 v3, 5, v1'); k(f'v_mul_u32_u24 v3, {OT}, v3'); k('v_and_b32 v4, 31, v1'); k('v_lshl_add_u32 v3, v4, 3, v3'); k(f'v_add_u32 v3, {L_O}, v3')
        for a in range(2):
            k(f's_lshl_b32 s50, s{tau_sgpr}, 1'); k(f's_add_u32 s50, s50, {a}')
            k('s_mul_i32 s51, s50, 52'); k('s_lshr_b32 s51, s51, 8'); k('s_mul_i32 s52, s51, 5'); k('s_sub_u32 s52, s50, s52')
            k(f's_mul_i32 s51, s51, {2*OT}'); k('v_add_u32 v4, s51, v3')
            k(f'ds_read_b64 v[{32+2*a}:{33+2*a}], v4 offset:{20*256}')
            k('s_lshl_b32 s52, s52, 10'); k('v_add_u32 v4, s52, v4')
            for i in range(4): k(f'ds_read_b64 v[{40+8*a+2*i}:{41+8*a+2*i}], v4 offset:{256*i}')
        k('s_waitcnt lgkmcnt(0)')
        for a in range(2):
            k(f'v_cvt_f32_f64 v{28+a}, v[{32+2*a}:{33+2*a}]')
            for i in range(4): k(f'v_cvt_f32_f64 v{56+4*a+i}, v[{40+8*a+2*i}:{41+8*a+2*i}]')
        k('v_rcp_f32 v28, v28'); k('v_rcp_f32 v29, v29'); k('s_nop 0')
        for a in range(2):
            for i in range(4): k(f'v_mul_f32 v{56+4*a+i}, v{56+4*a+i}, v{28+a}')
        for j in range(4): k(f'v_cvt_pk_bf16_f32 v{64+j}, v{56+2*j}, v{57+2*j}')
        k(f's_mul_i32 s50, s{S_HG}, 10'); k(f's_add_u32 s50, s50, s{tau_sgpr}')
        k('s_lshr_b32 s51, s50, 2'); k('s_and_b32 s52, s50, 3'); k('s_lshl_b32 s51, s51, 10'); k('s_lshl_b32 s52, s52, 8'); k('s_add_u32 s51, s51, s52')
        k(f's_mul_i32 s52, s{S_RB}, {4*20*1024}'); k('s_add_u32 s51, s51, s52'); k(f's_add_u32 s51, s51, {WS_O}')
        k('v_lshrrev_b32 v5, 4, v1'); k(f'v_mul_u32_u24 v5, {20*1024}, v5'); k('v_and_b32 v6, 15, v1'); k('v_lshl_add_u32 v5, v6, 4, v5')
        k(f'buffer_store_dwordx4 v[64:67], v5, {WS}, s51 offen sc1')
    k(f's_mov_b32 s60, s{S_WAVE}'); norm_task(60)
    lab=k.label('n2'); k(f's_cmp_ge_u32 s{S_WAVE}, 2'); k(f's_cbranch_scc1 {lab}'); k(f's_add_u32 s60, s{S_WAVE}, 8'); norm_task(60); k(f'{lab}:')
    def setFO():
        k(f's_lshl_b32 s60, s{S_RB}, 5'); k(f's_add_u32 s60, s60, s{S_HG}'); set_flag(k,WS_FO,60)
    if opts.get('tt'): k.ts(1)
    k('s_waitcnt vmcnt(0)')
    if opts.get('tt'): k.ts(2)
    lds_count_last(k,8,8,setFO)
    if opts.get('tt'): k.ts(3)
    lab=k.label('nf'); lab2=k.label('nf2')
    k(f's_cmp_lg_u32 s{S_WAVE}, 0'); k(f's_cbranch_scc1 {lab}')
    lp=k.label('po'); dn=k.label('pod')
    k('s_mov_b64 exec, 0xff'); k('v_lshlrev_b32 v4, 2, v1'); k(f's_lshl_b32 s53, s{S_RB}, 7'); k(f's_add_u32 s53, s53, {WS_FO}')
    k(f'{lp}:'); k(f'buffer_load_dword v5, v4, {WS}, s53 offen sc1'); k('s_waitcnt vmcnt(0)'); k(f'v_cmp_ne_u32 vcc, s{S_TAG}, v5')
    k(f's_cbranch_vccz {dn}'); k('s_sleep 1'); k(f's_branch {lp}'); k(f'{dn}:'); k('s_mov_b64 exec, -1')
    k(f's_branch {lab2}')
    k(f'{lab}:')
    k(f's_cmp_lg_u32 s{S_WAVE}, 1'); k(f's_cbranch_scc1 {lab2}')
    k(f's_lshr_b32 s48, s{S_RB}, 4'); k('s_lshl_b32 s48, s48, 1'); k(f's_bfe_u32 s49, s{S_RB}, 0x10002'); k('s_add_u32 s48, s48, s49')
    k('s_lshl_b32 s53, s48, 8'); k(f's_add_u32 s53, s53, {WS_FB}'); poll_flags(k,'s53',64,sleep=3)
    k('s_mov_b32 s48, 0xCCCCCCCD'); k(f's_mul_i32 s49, s{S_RB}, {64*1280}'); k(f's_mul_i32 s50, s{S_HG}, 160'); k('s_add_u32 s49, s49, s50'); k(f's_add_u32 s49, s49, {WS_B}')
    for i in range(10):
        k(f'v_add_u32 v3, {64*i}, v1'); k('v_mul_hi_u32 v4, v3, s48'); k('v_lshrrev_b32 v4, 3, v4'); k('v_mul_u32_u24 v5, 10, v4'); k('v_sub_u32 v5, v3, v5')
        k('v_mul_u32_u24 v4, 1280, v4'); k('v_lshl_add_u32 v4, v5, 4, v4')
        k(f'buffer_load_dwordx4 v[{100+4*i}:{103+4*i}], v4, {WS}, s49 offen sc1')
    k('v_lshlrev_b32 v3, 4, v1')
    for i in range(10):
        k(f's_waitcnt vmcnt({9-i})'); k(f'ds_write_b128 v3, v[{100+4*i}:{103+4*i}] offset:{1024*i}')
    k('s_waitcnt lgkmcnt(0)')
    k(f'{lab2}:')
    if opts.get('tt'): k.ts(4)
    k('s_barrier')
    k.ts(8)
    OF=16; AC=64; AF=96
    k(f's_and_b32 s48, s{S_WAVE}, 3'); k(f's_lshr_b32 s49, s{S_WAVE}, 2')
    k(f's_lshl_b32 s50, s{S_RB}, 2'); k('s_add_u32 s50, s50, s48'); k('s_mul_i32 s50, s50, 20'); k('s_mul_i32 s51, s49, 10'); k('s_add_u32 s50, s50, s51'); k('s_lshl_b32 s50, s50, 10'); k(f's_add_u32 s50, s50, {WS_O}')
    k('v_lshlrev_b32 v3, 4, v1')
    for t in range(10):
        k(f'buffer_load_dwordx4 v[{OF+4*t}:{OF+4*t+3}], v3, {WS}, s50 offen sc1'); k('s_add_u32 s50, s50, 1024')
    k(f's_lshl_b32 s50, s{S_RB}, 6'); k('s_lshl_b32 s51, s48, 4'); k('s_add_u32 s50, s50, s51')
    k('v_and_b32 v4, 15, v1'); k('v_add_u32 v4, s50, v4')
    k('v_and_b32 v8, 15, v1'); k('s_lshl_b32 s52, s48, 6'); k('v_lshl_add_u32 v8, v8, 2, s52'); k(f'v_add_u32 v8, {L_Z}, v8')
    for hd in range(4): k(f'ds_read_b32 v{10+hd}, v8 offset:{256*hd}')
    k('v_and_b32 v7, 15, v1'); k('v_lshrrev_b32 v6, 2, v7'); k(f'v_mul_u32_u24 v9, {WOSUB}, v6'); k('v_and_b32 v14, 1, v6'); k('v_lshl_add_u32 v9, v14, 5, v9'); k('v_lshrrev_b32 v14, 1, v6'); k('v_lshl_add_u32 v9, v14, 7, v9')
    k('v_lshrrev_b32 v14, 4, v1'); k('v_mul_u32_u24 v14, 320, v14'); k('v_add_u32 v9, v9, v14'); k('v_and_b32 v7, 3, v7'); k('v_lshl_add_u32 v9, v7, 3, v9')
    k('s_mul_i32 s53, s49, 12800'); k(f's_add_u32 s53, s53, {L_WO}'); k('v_add_u32 v9, s53, v9')
    k('s_waitcnt lgkmcnt(0)')
    k('v_add_f32 v10, v10, v11'); k('v_add_f32 v12, v12, v13'); k('v_add_f32 v10, v10, v12')
    k(f'v_mul_f32 v10, {f2u(-1.4426950408889634):#x}, v10'); k('v_exp_f32 v10, v10'); k('s_nop 0'); k('v_add_f32 v10, 1.0, v10'); k('v_rcp_f32 v8, v10')
    def rdA(t):
        b=t&1
        for mu in range(5):
            k(f'ds_read_b64_tr_b16 v[{AF+20*b+4*mu}:{AF+20*b+4*mu+1}], v9 offset:{t*1280+mu*32}')
            k(f'ds_read_b64_tr_b16 v[{AF+20*b+4*mu+2}:{AF+20*b+4*mu+3}], v9 offset:{t*1280+mu*32+160}')
    if opts.get('tt'): k.ts(5)
    rdA(0)
    for t in range(10):
        if t==1 and opts.get('tt'): k.ts(6)
        if t+1<10:
            rdA(t+1); k(f's_waitcnt vmcnt({9-t}) lgkmcnt(10)')
        else: k('s_waitcnt vmcnt(0) lgkmcnt(0)')
        b=t&1
        for mu in range(5):
            c='0' if t==0 else f'v[{AC+4*mu}:{AC+4*mu+3}]'
            k(f'v_mfma_f32_16x16x32_bf16 v[{AC+4*mu}:{AC+4*mu+3}], v[{AF+20*b+4*mu}:{AF+20*b+4*mu+3}], v[{OF+4*t}:{OF+4*t+3}], {c}')
    if opts.get('tt'): k.ts(13)
    k('s_nop 9')
    k(f's_mul_i32 s52, s48, {5*1024}'); k('v_lshlrev_b32 v7, 4, v1'); k('v_add_u32 v7, s52, v7'); k(f'v_add_u32 v7, {L_O}, v7')
    labA=k.label('ra'); labB=k.label('rb')
    k('s_cmp_eq_u32 s49, 0'); k(f's_cbranch_scc1 {labA}')
    for mu in range(5): k(f'ds_write_b128 v7, v[{AC+4*mu}:{AC+4*mu+3}] offset:{1024*mu}')
    k('s_waitcnt lgkmcnt(0)'); k('s_barrier'); k(f's_branch {labB}')
    k(f'{labA}:')
    k('s_barrier')
    for mu in range(5): k(f'ds_read_b128 v[{AF+4*mu}:{AF+4*mu+3}], v7 offset:{1024*mu}')
    k('v_and_b32 v5, 15, v1'); k('s_lshl_b32 s52, s48, 4'); k('v_add_u32 v5, s52, v5'); k('v_mul_u32_u24 v5, 160, v5'); k('v_lshrrev_b32 v6, 4, v1'); k('v_lshl_add_u32 v5, v6, 3, v5')
    for mu in range(5): k(f'ds_read_b64 v[{AF+40+2*mu}:{AF+41+2*mu}], v5 offset:{32*mu}')
    k('s_waitcnt lgkmcnt(0)')
    for r in range(20): k(f'v_add_f32 v{AC+r}, v{AC+r}, v{AF+r}')
    k('v_sub_f32 v9, 1.0, v8')
    for mu in range(5):
        for jj in range(2):
            w=AF+40+2*mu+jj
            k(f'v_lshlrev_b32 v10, 16, v{w}'); k(f'v_and_b32 v11, 0xffff0000, v{w}')
            k(f'v_mul_f32 v10, v10, v9'); k('v_mul_f32 v11, v11, v9')
            k(f'v_fma_f32 v{AC+4*mu+2*jj}, v{AC+4*mu+2*jj}, v8, v10'); k(f'v_fma_f32 v{AC+4*mu+2*jj+1}, v{AC+4*mu+2*jj+1}, v8, v11')
    for j in range(10): k(f'v_cvt_pk_bf16_f32 v{AF+j}, v{AC+2*j}, v{AC+2*j+1}')
    for mu in range(5): k(f'ds_write_b64 v5, v[{AF+2*mu}:{AF+2*mu+1}] offset:{32*mu}')
    k('s_mul_i32 s52, s48, 2560'); k('v_lshlrev_b32 v6, 4, v1'); k('v_add_u32 v6, s52, v6')
    k('s_mov_b32 s53, 0xCCCCCCCD'); k(f's_lshl_b32 s54, s{S_RB}, 6'); k('s_lshl_b32 s55, s48, 4'); k('s_add_u32 s54, s54, s55'); k('s_mul_i32 s54, s54, 1280'); k(f's_mul_i32 s55, s{S_HG}, 160'); k('s_add_u32 s54, s54, s55')
    k('s_waitcnt lgkmcnt(0)')
    for i in range(3): k(f'ds_read_b128 v[{AF+16+4*i}:{AF+19+4*i}], v6 offset:{1024*i}')
    for i in range(3):
        k(f'v_add_u32 v3, {64*i}, v1'); k('v_mul_hi_u32 v4, v3, s53'); k('v_lshrrev_b32 v4, 3, v4'); k('v_mul_u32_u24 v10, 10, v4'); k('v_sub_u32 v10, v3, v10')
        k('v_mul_u32_u24 v4, 1280, v4'); k(f'v_lshl_add_u32 v{12+i}, v10, 4, v4')
    k('s_waitcnt lgkmcnt(0)')
    for i in range(3):
        if i==2: k('s_mov_b32 exec_hi, 0')
        k(f'buffer_store_dwordx4 v[{AF+16+4*i}:{AF+19+4*i}], v{12+i}, s[{S_OUT}:{S_OUT+3}], s54 offen')
    k('s_mov_b64 exec, -1')
    k(f'{labB}:')
    k.ts(9)
    k.ts_flush()
    k(f'{NAME}_end:')
    k('s_endpgm')
    k.L.append(T.table_text(f'{NAME}_tbl')+f'{NAME}_tblend:\n')
    return k

if __name__=='__main__':
    opts={a:True for a in sys.argv[2:]}
    emit([build(opts)],sys.argv[1],single=True)
```

```python
import numpy as np, struct
def bf16bits(x):
    x=np.asarray(x,dtype=np.float32)
    u=x.view(np.uint32).astype(np.uint64)
    r=((u+0x7fff+((u>>16)&1))>>16).astype(np.uint32)
    return r&0xffff
def pack_bf16(vals):
    b=bf16bits(vals)
    return (b[:,0::2]|(b[:,1::2]<<16)).astype(np.uint32)
def f32bits(vals):
    return np.asarray(vals,dtype=np.float32).view(np.uint32)
L=np.arange(64); IDX=L&31; H=L>>5
def cs(num,den):
    r=np.mod(num,den)
    a=2*np.pi*r/den
    c=np.cos(a); s=np.sin(a)
    c[np.abs(c)<1e-12]=0; s[np.abs(s)<1e-12]=0
    return c,s
FR={}; order=[]
def add(name,arr):
    arr=np.asarray(arr,dtype=np.uint32); assert arr.shape==(64,4),(name,arr.shape)
    FR[name]=len(order); order.append(arr)
def perm(j,base=0): return base+8*(j>>2)+4*H+(j&3)
for tau in range(2):
    m=np.stack([16*tau+8*H+j for j in range(8)],1)
    c,s=cs(IDX[:,None]*m,32)
    add(f'r_b1c{tau}',pack_bf16(c)); add(f'r_b1s{tau}',pack_bf16(-s))
for g in range(3):
    n2=np.stack([8*g+4*H+i for i in range(4)],1)
    c,s=cs(IDX[:,None]*n2,640)
    add(f'r_tc{g}',f32bits(c)); add(f'r_ts{g}',f32bits(s))
rho=IDX; gp=rho>>3; hp=(rho>>2)&1; ip=rho&3; k2=4*gp+2*hp+(ip>>1); cc=ip&1; valid=(k2<=10)
def a2(n2):
    c,s=cs(k2[:,None]*n2,20)
    re=np.where(cc[:,None]==0,c,-s); im=np.where(cc[:,None]==0,s,c)
    v=valid[:,None]&(n2<20)
    return np.where(v,re,0),np.where(v,im,0)
n2=np.stack([perm(j) for j in range(8)],1); re,im=a2(n2); add('r_a2r0',pack_bf16(re)); add('r_a2i0',pack_bf16(im))
n2=np.stack([16+4*H+j for j in range(4)],1); re,im=a2(n2)
add('r_a2x1',np.concatenate([pack_bf16(np.concatenate([re,re],1))[:,:2], pack_bf16(np.concatenate([im,im],1))[:,:2]],1))
for t in range(2):
    for tau in range(4):
        m=np.stack([perm(j,16*tau) for j in range(8)],1)
        c,s=cs((32*t+IDX)[:,None]*m,64)
        add(f'c_t64c{t}{tau}',pack_bf16(c)); add(f'c_t64s{t}{tau}',pack_bf16(s)); add(f'c_t64n{t}{tau}',pack_bf16(-s))
for tau in range(2):
    m=np.stack([perm(j,16*tau) for j in range(8)],1)
    c,s=cs(IDX[:,None]*m,32)
    add(f'c_t32c{tau}',pack_bf16(c)); add(f'c_t32s{tau}',pack_bf16(s)); add(f'c_t32n{tau}',pack_bf16(-s))
for a in range(2):
    for g in range(4):
        n2=np.stack([32*a+8*g+4*H+i for i in range(4)],1)
        c,s=cs(IDX[:,None]*n2,2048)
        add(f'c_w1c{a}{g}',f32bits(c)); add(f'c_w1s{a}{g}',f32bits(s))
for a in range(2):
    for g in range(4):
        k1=np.stack([8*g+4*H+i for i in range(4)],1)
        c,s=cs((IDX+32*a)[:,None]*k1,2048)
        SC=2.0/(2048*640)
        add(f'c_w2c{a}{g}',f32bits(c*SC)); add(f'c_w2s{a}{g}',f32bits(s*SC))
def b1(k2s,cs_):
    c,s=cs(IDX[:,None]*k2s,20)
    re=np.where(cs_==0,c,-s); im=np.where(cs_==0,s,c)
    v=(IDX[:,None]<20)&(k2s<=10)
    return np.where(v,re,0),np.where(v,im,0)
k2s=np.stack([4*H+(j>>1) for j in range(8)],1); cs_=np.stack([np.full(64,j&1) for j in range(8)],1)
re,im=b1(k2s,cs_); add('i_b1r0',pack_bf16(re)); add('i_b1i0',pack_bf16(im))
k2s=np.stack([8+2*H+(j>>1) for j in range(4)],1); cs_=np.stack([np.full(64,j&1) for j in range(4)],1)
re,im=b1(k2s,cs_)
add('i_b1x1',np.concatenate([pack_bf16(np.concatenate([re,re],1))[:,:2], pack_bf16(np.concatenate([im,im],1))[:,:2]],1))
for g in range(4):
    k1=np.stack([8*g+4*H+i for i in range(4)],1)
    c,s=cs(IDX[:,None]*k1,640)
    add(f'i_tc{g}',f32bits(c)); add(f'i_ts{g}',f32bits(s))
def _hg(i): return ((i>>2)&1)*4+((i>>3)&3)
cm=np.full(256,511|(511<<9),dtype=np.uint32)
groups=list(range(40))
nonkv={c:[i for i in range(256) if (i&7)==c and _hg(i)!=0] for c in range(8)}
g=0
for c in range(8):
    ids=nonkv[c]; assert len(ids)%8==0
    for j,i in enumerate(ids):
        col=8*(g+j//8)+(j%8); cm[i]=(cm[i]&~np.uint32(511))|np.uint32(col)
    g+=len(ids)//8
assert g==28
for c in range(4):
    ids=nonkv[c]
    for j,i in enumerate(ids):
        col=8*(g+j//8)+(j%8); cm[i]=(cm[i]&np.uint32(511))|np.uint32(col<<9)
    g+=3
assert g==40
i=nonkv[4][0]; cm[i]=(cm[i]&np.uint32(511))|np.uint32(320<<9)
cols=sorted([int(x&511) for x in cm if (x&511)!=511]+[int((x>>9)&511) for x in cm if ((x>>9)&511)!=511])
assert cols==list(range(321))
add('colmap',cm.reshape(64,4))
def table_text(label):
    a=np.concatenate([o.reshape(-1) for o in order])
    out=[f'.p2align 8',f'.type {label},@object',f'{label}:']
    for i in range(0,len(a),8):
        out.append('.long '+','.join(hex(int(x)) for x in a[i:i+8]))
    out.append(f'.size {label}, {len(a)*4}')
    return '\n'.join(out)+'\n'
if __name__=='__main__':
    print(len(order),'frags', len(table_text('T')),'chars'); print(FR)
```

```python
import sys, math
from asmgen import *
import fft10 as F
F.WS_FY2=F.WS_FY+1024
import fft2
import tables as T
NAME='gated_mix__grouped_kv_mqa__spectral_gfnet__prompt_kernel'
WS_EPOCH=0
WS_FKV=0x1000; WS_FX=F.WS_FX; WS_FY=F.WS_FY; WS_FB=F.WS_FB; WS_FO=0x5000; WS_FY2=F.WS_FY2
WS_KV=0x10000; WS_KM=0x52000; WS_TS=0x60000
WS_O=0x100000; WS_XW=F.WS_XW; WS_Y1=F.WS_Y1; WS_B=F.WS_B; WS_SIZE=0x1000000
XS=272; XCH=17408; WCH=24576; ENT=XCH+WCH
L_WKV=87040; L_RST=138240; L_RCc=148608; L_GW=161920; L_SCRc=136192
def xpos(kv,p): return p*XCH if kv else (p%3)*ENT
def wpos(kv,p): return (L_WKV+(p%3)*WCH) if kv else (p%3)*ENT+XCH
L_Q1=0; L_Q2=8192; L_ZERO=10240; L_M=10272; L_CNT=10304; L_Z=10368; L_O=11392; OT=21*256
L_IST=L_O+8*OT
L_WO=L_IST+6144
L_EX=L_WO
L_RC=L_RCc
L_YS0=131072; L_YS1=139264
L_IC=L_WO+3*25600+160+10*1024
WOSUB=25600; WOPAD=[0,32,128,160]
assert L_WO+4*WOSUB+160<=163840 and L_WO%16==0 and L_WO+F.NCT*1024<=L_YS0 and L_IC+15*1024<=163840
LDS_TOTAL=163840
S_X=4; S_WQ=8; S_WK=12; S_WV=16; S_WO=20; S_WR=24; S_WI=28; S_GW=32; S_OUT=36; S_WS=40
S_WAVE=44; S_RB=45; S_HG=46; S_TAG=47; S_TS=64; S_IT=70; S_QT=71; S_TBL=72
WS=f's[{S_WS}:{S_WS+3}]'
CSCALE=(20**-0.5)*1.4426950408889634
def f2u(x):
    import struct
    return struct.unpack('<I',struct.pack('<f',x))[0]
VWQ=240

class G(Kern):
    def __init__(s, opts):
        super().__init__(NAME,256,512,LDS_TOTAL,vgpr=256,sgpr=102); s.o=opts
    def ts(s, idx):
        if not s.o.get('ts'): return
        s(f's_memrealtime s[{S_TS}:{S_TS+1}]'); s('s_waitcnt lgkmcnt(0)'); s(f'v_writelane_b32 v255, s{S_TS}, {idx}')
    def tc(s, idx):
        if not s.o.get('ts'): return
        s(f's_memtime s[{S_TS}:{S_TS+1}]'); s('s_waitcnt lgkmcnt(0)'); s(f'v_writelane_b32 v255, s{S_TS}, {idx}')
    def ts_flush(s):
        if not s.o.get('ts'): return
        s(f's_lshl_b32 s{S_TS}, s2, 3'); s(f's_add_u32 s{S_TS}, s{S_TS}, s{S_WAVE}'); s(f's_lshl_b32 s{S_TS}, s{S_TS}, 6')
        s(f's_add_u32 s{S_TS}, s{S_TS}, {WS_TS}')
        s('v_mbcnt_lo_u32_b32 v254, -1, 0'); s('v_mbcnt_hi_u32_b32 v254, -1, v254')
        s('v_lshlrev_b32 v253, 2, v254'); s(f'v_add_u32 v253, s{S_TS}, v253')
        s('v_cmp_gt_u32 vcc, 16, v254')
        s(f's_and_saveexec_b64 s[{S_TS+2}:{S_TS+3}], vcc')
        s(f'buffer_store_dword v255, v253, {WS}, 0 offen')
        s(f's_mov_b64 exec, s[{S_TS+2}:{S_TS+3}]')

def prologue(k):
    k('s_cmp_ge_u32 s2, 256'); k(f's_cbranch_scc1 {NAME}_end')
    k('s_load_dwordx8 s[48:55], s[0:1], 0'); k('s_load_dwordx2 s[56:57], s[0:1], 32')
    k('s_load_dwordx4 s[60:63], s[0:1], 48'); k('s_load_dwordx4 s[64:67], s[0:1], 64'); k('s_load_dwordx2 s[68:69], s[0:1], 88')
    k('v_and_b32 v1, 63, v0'); k('v_lshrrev_b32 v2, 6, v0')
    k('s_lshr_b32 s74, s2, 3'); k('s_and_b32 s45, s74, 28'); k('s_and_b32 s75, s2, 3'); k('s_or_b32 s45, s45, s75')
    k('s_and_b32 s46, s2, 4'); k('s_and_b32 s75, s74, 3'); k('s_or_b32 s46, s46, s75')
    k('v_readfirstlane_b32 s44, v2')
    k(f's_getpc_b64 s[{S_TBL}:{S_TBL+1}]')
    k(f'{NAME}_pc:')
    k(f's_add_u32 s{S_TBL}, s{S_TBL}, {NAME}_tbl-{NAME}_pc'); k(f's_addc_u32 s{S_TBL+1}, s{S_TBL+1}, 0')
    k('s_waitcnt lgkmcnt(0)')
    for (sr,src,name) in [(S_X,48,'x'),(S_WQ,50,'wq'),(S_WK,52,'wk'),(S_WV,54,'wv'),(S_WO,56,'wo'),(S_WR,60,'wr'),(S_WI,62,'wi'),(S_GW,64,'gw'),(S_OUT,66,'out'),(S_WS,68,'ws')]:
        k(f's_mov_b32 s{sr}, s{src}'); k(f's_mov_b32 s{sr+1}, s{src+1}')
        k(f's_mov_b32 s{sr+2}, {WS_SIZE if name=="ws" else SIZES[name]}'); k(f's_mov_b32 s{sr+3}, 0x20000')
    k(f's_load_dword s{S_TAG}, s[{S_WS}:{S_WS+1}], {WS_EPOCH}')
    if k.o.get('ts'): k('v_mov_b32 v255, 0')
    k.ts(0)

L_SCR=L_WKV+WCH
VXA=236
S_KAP=80
S_COL=89
S_XW=85; S_WW=86
def setup_dma(k):
    k('s_lshr_b32 s48, s2, 3'); k('s_lshr_b32 s49, s48, 3'); k('s_lshl_b32 s49, s49, 6'); k('s_and_b32 s50, s2, 7'); k('s_lshl_b32 s50, s50, 3'); k('s_add_u32 s49, s49, s50'); k('s_and_b32 s48, s48, 7'); k(f's_add_u32 s{S_COL}, s49, s48')
    k(f's_lshr_b32 s48, s{S_RB}, 3'); k(f's_add_u32 s48, s48, s{S_HG}')
    k('s_mul_i32 s49, s48, 52'); k('s_lshr_b32 s49, s49, 8'); k('s_mul_i32 s49, s49, 5'); k(f's_sub_u32 s{S_KAP}, s48, s49')
    for i in range(1,5):
        k(f's_add_u32 s{S_KAP+i}, s{S_KAP+i-1}, 1'); k(f's_cmp_eq_u32 s{S_KAP+i}, 5'); k(f's_cselect_b32 s{S_KAP+i}, 0, s{S_KAP+i}')
    k(f's_mul_i32 s{S_XW}, s{S_WAVE}, {136*16}'); k(f's_mul_i32 s{S_WW}, s{S_WAVE}, 3072')
    magic=(2**32+16)//17
    for c in range(1088+64): assert (c*magic)>>32==c//17
    k(f's_mov_b32 s48, {magic}'); k(f's_mul_i32 s49, s{S_RB}, {64*1280}'); k(f's_mul_i32 s50, s{S_WAVE}, 136')
    for m in range(3):
        k(f's_add_u32 s51, s50, {64*m}'); k('v_add_u32 v3, s51, v1')
        k('v_mul_hi_u32 v4, v3, s48'); k('v_mul_u32_u24 v5, 17, v4'); k('v_sub_u32 v5, v3, v5'); k('v_min_u32 v5, 15, v5')
        k('v_mul_u32_u24 v4, 1280, v4'); k('v_lshlrev_b32 v5, 4, v5'); k(f'v_add3_u32 v{VXA+m}, v4, v5, s49')
    magic=(2**32+11)//12
    for c in range(1536): assert (c*magic)>>32==c//12
    k(f's_mov_b32 s48, {magic}'); k(f's_mul_i32 s49, s{S_HG}, 160'); k('s_and_b32 s49, s49, 0xffffffc0'); k(f's_mul_i32 s50, s{S_WAVE}, 192')
    for m in range(3):
        k(f's_add_u32 s51, s50, {64*m}'); k('v_add_u32 v3, s51, v1')
        k('v_mul_hi_u32 v4, v3, s48'); k('v_mul_u32_u24 v5, 12, v4'); k('v_sub_u32 v5, v3, v5')
        k('v_mul_u32_u24 v4, 1280, v4'); k('v_lshlrev_b32 v5, 4, v5'); k(f'v_add3_u32 v{VWQ+m}, v4, v5, s49')
def op_x(k, pos, kv, m):
    def f():
        k(f's_add_u32 m0, s{S_XW}, {xpos(kv,pos)+1024*m}'); k(f's_lshl_b32 s52, s{S_KAP+pos}, 8')
        if m==2: k('s_mov_b64 exec, 0xff')
        k(f'buffer_load_dwordx4 v{VXA+m}, s[{S_X}:{S_X+3}], s52 offen lds')
        if m==2: k('s_mov_b64 exec, -1')
    return f
def op_w(k, pos, kv, m):
    def f():
        k(f's_mul_i32 s52, s{S_KAP+pos}, {128*1280}'); k(f's_add_u32 m0, s{S_WW}, {wpos(kv,pos)+1024*m}'); k('s_nop 0')
        k(f'buffer_load_dwordx4 v{VWQ+m}, s[{S_WQ}:{S_WQ+3}], s52 offen lds')
    return f
def ops_x(k,pos,kv): return [(f'X{pos}',op_x(k,pos,kv,m)) for m in range(3)]
def ops_w(k,pos,kv): return [(f'W{pos}',op_w(k,pos,kv,m)) for m in range(3)]
def dma_xchunk(k,pos,kv):
    for t,f in ops_x(k,pos,kv): f()
def dma_wchunk(k,pos,kv):
    for t,f in ops_w(k,pos,kv): f()
class VM:
    def __init__(s): s.L=[]
    def issue(s,tag,f,n=1):
        f(); s.L+= [tag]*n
    def younger(s,tags):
        last=max(i for i,t in enumerate(s.L) if t in tags)
        return len(s.L)-1-last
def dma_wo(k, starts, limit, step=8):
    k('s_mov_b32 s48, 0xCCCCCCCD'); k(f's_mul_i32 s49, s{S_HG}, 160')
    for st in starts:
        lab=k.label('wo')
        k(f's_add_u32 s50, s{S_WAVE}, {st}')
        if st+step>limit:
            k(f's_min_u32 s50, s50, {limit-1}')
        k('s_mul_i32 s51, s50, 41'); k('s_lshr_b32 s51, s51, 10')
        k('s_mul_i32 s52, s51, 25'); k('s_sub_u32 s52, s50, s52')
        k('s_lshl_b32 s53, s52, 6'); k('v_add_u32 v3, s53, v1')
        k('v_mul_hi_u32 v4, v3, s48'); k('v_lshrrev_b32 v4, 3, v4'); k('v_mul_u32_u24 v5, 10, v4'); k('v_sub_u32 v5, v3, v5')
        k('v_mul_u32_u24 v4, 5120, v4'); k('v_lshlrev_b32 v5, 4, v5'); k('s_mul_i32 s53, s51, 1280'); k('s_add_u32 s53, s53, s49'); k('v_add3_u32 v4, v4, v5, s53')
        k(f's_mul_i32 s53, s51, {WOSUB}'); k('s_and_b32 s54, s51, 1'); k('s_lshl_b32 s54, s54, 5'); k('s_add_u32 s53, s53, s54'); k('s_lshr_b32 s54, s51, 1'); k('s_lshl_b32 s54, s54, 7'); k('s_add_u32 s53, s53, s54')
        k('s_lshl_b32 s52, s52, 10'); k('s_add_u32 s53, s53, s52'); k(f's_add_u32 m0, s53, {L_WO}'); k('s_nop 0')
        k(f'buffer_load_dwordx4 v4, s[{S_WO}:{S_WO+3}], 0 offen lds')
for n in range(100): assert (n*41)>>10==n//25

def dma_lin(k, srd, per_wave_chunks, ldsbase):
    n=(per_wave_chunks+63)//64
    k(f's_mul_i32 s51, s{S_WAVE}, {per_wave_chunks*16}'); k('v_lshlrev_b32 v3, 4, v1'); k('v_add_u32 v3, s51, v3')
    for m in range(n):
        rem=per_wave_chunks-64*m
        k(f's_add_u32 m0, s51, {ldsbase+1024*m}')
        if rem<64: k(f's_mov_b64 exec, {hex((1<<rem)-1)}')
        else: k('s_nop 0')
        k(f'buffer_load_dwordx4 v3, s[{srd}:{srd+3}], 0 offen offset:{1024*m} lds' if False else f'buffer_load_dwordx4 v3, s[{srd}:{srd+3}], 0 offen lds')
        if m+1<n: k('v_add_u32 v3, 1024, v3')
    k('s_mov_b64 exec, -1')
    return n

def wave_max32(k, v):
    for sh in (1,2,4,8):
        k('s_nop 1'); k(f'v_max_f32_dpp v{v}, v{v}, v{v} row_shr:{sh} row_mask:0xf bank_mask:0xf')
    k('s_nop 1'); k(f'v_max_f32_dpp v{v}, v{v}, v{v} row_bcast:15 row_mask:0xa bank_mask:0xf')

def poll_flags(k, off, nlanes, per_lane_dwords=1, vtmp=4, sleep=1):
    lab=k.label('poll'); done=k.label('polld')
    k('s_mov_b64 s[56:57], exec')
    if nlanes<64: k(f's_mov_b64 exec, {hex((1<<nlanes)-1)}')
    k(f'v_lshlrev_b32 v{vtmp}, {2+int(math.log2(per_lane_dwords))}, v1')
    k(f'{lab}:')
    if per_lane_dwords==1:
        k(f'buffer_load_dword v{vtmp+1}, v{vtmp}, {WS}, {off} offen sc1'); k('s_waitcnt vmcnt(0)')
        k(f'v_cmp_ne_u32 vcc, s{S_TAG}, v{vtmp+1}')
    else:
        assert (vtmp+2)%2==0
        k(f'buffer_load_dwordx4 v[{vtmp+2}:{vtmp+5}], v{vtmp}, {WS}, {off} offen sc1'); k('s_waitcnt vmcnt(0)')
        for j in range(4): k(f'v_xor_b32 v{vtmp+2+j}, s{S_TAG}, v{vtmp+2+j}')
        k(f'v_or_b32 v{vtmp+2}, v{vtmp+2}, v{vtmp+3}'); k(f'v_or_b32 v{vtmp+4}, v{vtmp+4}, v{vtmp+5}'); k(f'v_or_b32 v{vtmp+2}, v{vtmp+2}, v{vtmp+4}')
        k(f'v_cmp_ne_u32 vcc, 0, v{vtmp+2}')
    k(f's_cbranch_vccz {done}'); k(f's_sleep {sleep}'); k(f's_branch {lab}')
    k(f'{done}:'); k('s_mov_b64 exec, s[56:57]')
set_flag=fft2.set_flag

def kv_proj(k, vm):
    k.c('==== K/V projection')
    k(f's_and_b32 s48, s{S_WAVE}, 1'); k(f's_bfe_u32 s49, s{S_WAVE}, 0x10001'); k(f's_lshr_b32 s50, s{S_WAVE}, 2')
    k('v_and_b32 v3, 31, v1'); k('v_lshrrev_b32 v4, 5, v1')
    k('s_lshl_b32 s51, s48, 5'); k('v_add_u32 v5, s51, v3'); k(f'v_mul_u32_u24 v5, {XS}, v5')
    k('v_lshlrev_b32 v6, 4, v4'); k('s_lshl_b32 s51, s50, 7'); k('v_add3_u32 v12, v5, v6, s51')
    k('v_and_b32 v5, 15, v1'); k('v_lshrrev_b32 v6, 2, v5'); k('v_lshl_add_u32 v6, v4, 3, v6'); k('v_mul_u32_u24 v6, 40, v6')
    k('v_and_b32 v5, 3, v5'); k('v_lshlrev_b32 v5, 3, v5'); k('v_bfe_u32 v7, v1, 4, 1'); k('v_lshlrev_b32 v7, 5, v7'); k('v_add3_u32 v6, v6, v5, v7')
    k(f's_mul_i32 s51, s49, 25600'); k('s_mul_i32 s52, s50, 2560'); k('s_add_u32 s51, s51, s52'); k(f's_add_u32 s51, s51, {L_WKV}')
    k('v_add_u32 v13, s51, v6')
    ACC=16; XF=32; WF=48
    labV=k.label('V'); labJ=k.label('J')
    k('s_cmp_eq_u32 s49, 1'); k(f's_cbranch_scc1 {labV}')
    for isV in (0,1):
        if isV: k(f'{labV}:')
        for pos in range(5):
            ny=vm.younger([f'X{pos}','WK','WV','G'])
            k(f"s_waitcnt vmcnt({ny})"); k('s_barrier')
            k(f's_mul_i32 s51, s{S_KAP+pos}, 5120'); k('v_add_u32 v14, s51, v13')
            if pos: k(f'v_add_u32 v12, {XCH}, v12')
            for t in range(4):
                k(f'ds_read_b128 v[{XF+4*t}:{XF+4*t+3}], v12 offset:{32*t}')
                k(f'ds_read_b64_tr_b16 v[{WF+4*t}:{WF+4*t+1}], v14 offset:{640*t}')
                k(f'ds_read_b64_tr_b16 v[{WF+4*t+2}:{WF+4*t+3}], v14 offset:{640*t+160}')
            for t in range(4):
                k(f's_waitcnt lgkmcnt({3*(3-t)})')
                c='0' if (pos==0 and t==0) else f'v[{ACC}:{ACC+15}]'
                X=f'v[{XF+4*t}:{XF+4*t+3}]'; W=f'v[{WF+4*t}:{WF+4*t+3}]'
                k(f'v_mfma_f32_32x32x16_bf16 v[{ACC}:{ACC+15}], {X if isV else W}, {W if isV else X}, {c}')
        if not isV: k(f's_branch {labJ}')
    k(f'{labJ}:')
    k('s_barrier')
    dma_wchunk(k,0,True)
    k(f's_and_b32 s51, s{S_WAVE}, 3'); k(f's_lshl_b32 s51, s51, 12'); k(f's_add_u32 s51, s51, {L_SCR}')
    k('v_lshlrev_b32 v5, 4, v1'); k('v_add_u32 v5, s51, v5')
    labR=k.label('R'); labE=k.label('E')
    k('s_cmp_eq_u32 s50, 0'); k(f's_cbranch_scc1 {labR}')
    for r in range(4): k(f'ds_write_b128 v5, v[{ACC+4*r}:{ACC+4*r+3}] offset:{1024*r}')
    k('s_waitcnt lgkmcnt(0)'); k('s_barrier'); k(f's_branch {labE}')
    k(f'{labR}:')
    k('s_barrier')
    for r in range(4): k(f'ds_read_b128 v[{XF+4*r}:{XF+4*r+3}], v5 offset:{1024*r}')
    k('s_waitcnt lgkmcnt(0)')
    for r in range(16): k(f'v_add_f32 v{ACC+r}, v{ACC+r}, v{XF+r}')
    k(f's_lshl_b32 s51, s{S_RB}, 1'); k('s_add_u32 s51, s51, s48'); k('s_lshl_b32 s52, s51, 12'); k(f's_add_u32 s52, s52, {WS_KV}')
    labFV=k.label('FV')
    k('s_cmp_eq_u32 s49, 1'); k(f's_cbranch_scc1 {labFV}')
    for j in range(6): k(f'v_cvt_pk_bf16_f32 v{48+j}, v{ACC+2*j}, v{ACC+2*j+1}')
    k('v_cmp_gt_u32 vcc, 32, v1'); k('s_nop 1')
    k('v_cndmask_b32 v52, 0, v52, vcc'); k('v_cndmask_b32 v53, 0, v53, vcc')
    k('v_lshlrev_b32 v6, 4, v1'); k('v_lshlrev_b32 v7, 3, v1')
    k(f'buffer_store_dwordx4 v[48:51], v6, {WS}, s52 offen sc1')
    k(f'buffer_store_dwordx2 v[52:53], v7, {WS}, s52 offen offset:3072 sc1')
    k(f'v_mul_f32 v54, v{ACC}, v{ACC}')
    for r in range(1,8): k(f'v_fmac_f32 v54, v{ACC+r}, v{ACC+r}')
    k(f'v_mul_f32 v55, v{ACC+8}, v{ACC+8}')
    for r in range(9,12): k(f'v_fmac_f32 v55, v{ACC+r}, v{ACC+r}')
    k('v_cndmask_b32 v55, 0, v55, vcc'); k('v_add_f32 v54, v54, v55'); k('v_mov_b32 v55, v54'); k('s_nop 1')
    k('v_permlane32_swap_b32 v54, v55'); k('s_nop 1'); k('v_add_f32 v54, v54, v55')
    wave_max32(k,54)
    k('s_nop 0'); k('v_readlane_b32 s53, v54, 31')
    k(f's_lshl_b32 s55, s51, 3'); k(f's_add_u32 s55, s55, {WS_KM}')
    k('v_mov_b32 v57, s53'); k('v_mov_b32 v7, 0'); k('s_mov_b64 exec, 1')
    k(f'buffer_store_dword v57, v7, {WS}, s55 offen sc1'); k('s_mov_b64 exec, -1')
    k(f's_branch {labE}')
    k(f'{labFV}:')
    for j in range(8): k(f'v_cvt_pk_bf16_f32 v{48+j}, v{ACC+2*j}, v{ACC+2*j+1}')
    k('v_and_b32 v7, 31, v1'); k('v_cmp_eq_u32 vcc, 20, v7'); k('v_cmp_lt_u32 s[58:59], 20, v7'); k('v_mov_b32 v6, 0x3f803f80')
    for j in range(8):
        k(f'v_cndmask_b32 v{48+j}, v{48+j}, v6, vcc'); k(f'v_cndmask_b32 v{48+j}, v{48+j}, 0, s[58:59]')
    k('v_lshlrev_b32 v6, 4, v1')
    k(f'buffer_store_dwordx4 v[48:51], v6, {WS}, s52 offen offset:1024 sc1')
    k(f'buffer_store_dwordx4 v[52:55], v6, {WS}, s52 offen offset:2048 sc1')
    k(f'v_and_b32 v56, 0x7fffffff, v{ACC}')
    for r in range(1,16): k(f'v_max_f32 v56, v56, abs(v{ACC+r})')
    k('v_cmp_gt_u32 vcc, 20, v7'); k('s_nop 1'); k('v_cndmask_b32 v56, 0, v56, vcc')
    k('v_mov_b32 v57, v56'); k('s_nop 1'); k('v_permlane32_swap_b32 v56, v57'); k('s_nop 1'); k('v_max_f32 v56, v56, v57')
    wave_max32(k,56)
    k('s_nop 0'); k('v_readlane_b32 s53, v56, 31')
    k(f's_lshl_b32 s55, s51, 3'); k(f's_add_u32 s55, s55, {WS_KM+4}')
    k('v_mov_b32 v57, s53'); k('v_mov_b32 v7, 0'); k('s_mov_b64 exec, 1')
    k(f'buffer_store_dword v57, v7, {WS}, s55 offen sc1'); k('s_mov_b64 exec, -1')
    k(f'{labE}:')

QACC=16; QGA=32; QXF=48; QWF=64; QGF=176
def q_proj_setup(k):
    k(f's_and_b32 s48, s{S_WAVE}, 1'); k(f's_lshr_b32 s49, s{S_WAVE}, 1')
    k('v_and_b32 v3, 31, v1'); k('v_lshrrev_b32 v4, 5, v1')
    k('s_lshl_b32 s51, s48, 5'); k('v_add_u32 v5, s51, v3'); k(f'v_mul_u32_u24 v5, {XS}, v5'); k('v_lshl_add_u32 v8, v4, 4, v5')
    k('v_and_b32 v5, 15, v1'); k('v_lshrrev_b32 v6, 2, v5'); k('v_lshl_add_u32 v6, v4, 3, v6'); k('v_mul_u32_u24 v6, 192, v6')
    k('v_and_b32 v5, 3, v5'); k('v_lshlrev_b32 v5, 3, v5'); k('v_bfe_u32 v7, v1, 4, 1'); k('v_lshlrev_b32 v7, 5, v7'); k('v_add3_u32 v6, v6, v5, v7')
    k('s_mul_i32 s51, s49, 40'); k(f's_and_b32 s52, s{S_HG}, 1'); k('s_lshl_b32 s52, s52, 5'); k('s_add_u32 s51, s51, s52'); k('v_add_u32 v9, s51, v6')
    k('s_lshl_b32 s51, s49, 5'); k(f's_add_u32 s51, s51, {L_GW}'); k('v_lshl_add_u32 v14, v4, 4, s51')
    k('s_lshl_b32 s60, s49, 5'); k('v_add_u32 v10, s60, v8')
def q_proj_all(k, kv, vm, sched, first_tags, need, first_hook=None, post={}, kvpoll=False):
    q_proj_setup(k)
    def rd(s):
        p,tt=s>>3,s&7; b=s&3
        if tt==0:
            k(f'v_add_u32 v12, {xpos(kv,p)}, v8'); k(f'v_add_u32 v13, {wpos(kv,p)}, v9')
        k(f'ds_read_b128 v[{QXF+4*b}:{QXF+4*b+3}], v12 offset:{32*tt}')
        k(f'ds_read_b64_tr_b16 v[{QWF+4*b}:{QWF+4*b+1}], v13 offset:{3072*tt}')
        k(f'ds_read_b64_tr_b16 v[{QWF+4*b+2}:{QWF+4*b+3}], v13 offset:{3072*tt+768}')
    def rdg(p):
        g=QGF+16*(p&1)
        k(f's_lshl_b32 s51, s{S_KAP+p}, 8'); k('v_add_u32 v15, s51, v14'); k(f'v_add_u32 v11, {xpos(kv,p)}, v10')
        for i in range(2):
            k(f'ds_read_b128 v[{g+4*i}:{g+4*i+3}], v15 offset:{128*i}')
            k(f'ds_read_b128 v[{g+8+4*i}:{g+8+4*i+3}], v11 offset:{128*i}')
    k(f's_waitcnt vmcnt({vm.younger(first_tags)})'); k('s_barrier')
    if first_hook: first_hook()
    k.ts(3)
    if k.o.get('stop1'): k.tc(4)
    rd(0); rdg(0); rd(1); rd(2)
    for s in range(40):
        p,tt=s>>3,s&7
        if tt==5 and p<4:
            if k.o.get('stop1'): k.tc(5+2*p)
            k(f's_waitcnt vmcnt({vm.younger(need[p+1])}) lgkmcnt(0)')
            if k.o.get('stop1') and p==1: k.tc(15)
            k('s_barrier')
            if k.o.get('stop1'): k.tc(6+2*p)
            if p in post: post[p]()
        if s+3<40:
            rd(s+3)
            if (s+3)&7==0: rdg((s+3)>>3)
        if tt==0: k('s_waitcnt lgkmcnt(13)')
        elif tt<=4: k('s_waitcnt lgkmcnt(9)')
        elif p==4: k(f's_waitcnt lgkmcnt({3*(7-tt)})')
        b=s&3
        c='0' if s==0 else f'v[{QACC}:{QACC+15}]'
        k(f'v_mfma_f32_32x32x16_bf16 v[{QACC}:{QACC+15}], v[{QWF+4*b}:{QWF+4*b+3}], v[{QXF+4*b}:{QXF+4*b+3}], {c}')
        if tt in (2,4):
            i=(tt-2)>>1; g=QGF+16*(p&1)
            c='0' if (p==0 and i==0) else f'v[{QGA}:{QGA+15}]'
            k(f'v_mfma_f32_32x32x16_bf16 v[{QGA}:{QGA+15}], v[{g+4*i}:{g+4*i+3}], v[{g+8+4*i}:{g+8+4*i+3}], {c}')
        for (tag,fn,n) in sched.get(s,[]): vm.issue(tag,fn,n)
    if kvpoll:
        lab=k.label('kp'); k(f's_cmp_lg_u32 s{S_WAVE}, 7'); k(f's_cbranch_scc1 {lab}')
        k('s_and_b32 s53, s2, 7'); k('s_lshl_b32 s53, s53, 7'); k(f's_add_u32 s53, s53, {WS_FKV}'); poll_flags(k,'s53',32,sleep=2)
        k(f'{lab}:')

def spread(ops, steps):
    d={}
    for i,(tag,fn) in enumerate(ops):
        st=steps[min(i*len(steps)//len(ops), len(steps)-1)]
        d.setdefault(st,[]).append((tag,fn,1))
    return d
def merge(*ds):
    o={}
    for d in ds:
        for kk,v in d.items(): o.setdefault(kk,[]).extend(v)
    return o

def q_finalize(k):
    ACC=QACC
    k('s_nop 15')
    k(f's_mov_b32 s50, {f2u(CSCALE):#x}')
    for r in range(12): k(f'v_mul_f32 v{ACC+r}, s50, v{ACC+r}')
    for j in range(6): k(f'v_cvt_pk_bf16_f32 v{48+j}, v{ACC+2*j}, v{ACC+2*j+1}')
    k('v_cmp_gt_u32 vcc, 32, v1')
    k(f'v_mul_f32 v54, v{ACC}, v{ACC}')
    for r in range(1,8): k(f'v_fmac_f32 v54, v{ACC+r}, v{ACC+r}')
    k(f'v_mul_f32 v55, v{ACC+8}, v{ACC+8}')
    for r in range(9,12): k(f'v_fmac_f32 v55, v{ACC+r}, v{ACC+r}')
    k('v_cndmask_b32 v55, 0, v55, vcc')
    k('v_cndmask_b32 v52, 0, v52, vcc'); k('v_cndmask_b32 v53, 0, v53, vcc')
    k('v_add_f32 v54, v54, v55'); k('v_mov_b32 v55, v54'); k('s_nop 1')
    k('v_permlane32_swap_b32 v54, v55'); k('s_nop 1'); k('v_add_f32 v54, v54, v55')
    wave_max32(k,54)

K1=24; K2=56; VV=72; SS=136; PP=168; OO=176; Q1=208; Q2=216
VOA=220; VQ1A=221; VQ2A=222; VOB=223; VQ2S=23
def load_kv(k):
    k('v_lshlrev_b32 v3, 4, v1'); k('v_lshlrev_b32 v4, 3, v1')
    k(f's_lshl_b32 s48, s{S_WAVE}, 15'); k(f's_add_u32 s48, s48, {WS_KV}')
    for t in range(8):
        k(f'buffer_load_dwordx4 v[{K1+4*t}:{K1+4*t+3}], v3, {WS}, s48 offen sc1')
        k(f'buffer_load_dwordx2 v[{K2+2*t}:{K2+2*t+1}], v4, {WS}, s48 offen offset:3072 sc1')
        k(f'buffer_load_dwordx4 v[{VV+8*t}:{VV+8*t+3}], v3, {WS}, s48 offen offset:1024 sc1')
        k(f'buffer_load_dwordx4 v[{VV+8*t+4}:{VV+8*t+7}], v3, {WS}, s48 offen offset:2048 sc1')
        k('s_add_u32 s48, s48, 4096')
VKA=248; VKB=249; S_KVB=90
def load_kv_setup(k):
    k(f'v_lshlrev_b32 v{VKA}, 4, v1'); k(f'v_lshlrev_b32 v{VKB}, 3, v1')
    k(f's_lshl_b32 s{S_KVB}, s{S_WAVE}, 15'); k(f's_add_u32 s{S_KVB}, s{S_KVB}, {WS_KV}')
def load_kv_tile(k,t):
    k(f's_add_u32 s51, s{S_KVB}, {4096*t}')
    k(f'buffer_load_dwordx4 v[{K1+4*t}:{K1+4*t+3}], v{VKA}, {WS}, s51 offen sc1')
    k(f'buffer_load_dwordx2 v[{K2+2*t}:{K2+2*t+1}], v{VKB}, {WS}, s51 offen offset:3072 sc1')
    k(f'buffer_load_dwordx4 v[{VV+8*t}:{VV+8*t+3}], v{VKA}, {WS}, s51 offen offset:1024 sc1')
    k(f'buffer_load_dwordx4 v[{VV+8*t+4}:{VV+8*t+7}], v{VKA}, {WS}, s51 offen offset:2048 sc1')
CI=6
def attn_addr(k):
    k('v_lshlrev_b32 v3, 4, v1'); k(f'v_add_u32 v{VQ1A}, {L_Q1}, v3'); k('v_lshlrev_b32 v4, 3, v1'); k(f'v_add_u32 v{VQ2A}, {L_Q2}, v4')
    k('v_cmp_gt_u32 vcc, 32, v1'); k(f'v_mov_b32 v3, {L_ZERO}'); k('v_mov_b32 v4, 0x100')
    k(f'v_cndmask_b32 v{VQ2A}, v3, v{VQ2A}, vcc'); k(f'v_cndmask_b32 v{VQ2S}, 0, v4, vcc')
    k('v_and_b32 v8, 31, v1'); k('v_lshrrev_b32 v9, 5, v1'); k('v_lshlrev_b32 v8, 3, v8'); k('v_lshl_add_u32 v8, v9, 10, v8'); k(f'v_add_u32 v{VOB}, {L_O}, v8')
def read_q(k, par):
    k(f's_lshl_b32 s49, s{S_QT}, 10'); k(f'v_add_u32 v3, s49, v{VQ1A}'); k(f'v_mad_u32_u24 v4, s{S_QT}, v{VQ2S}, v{VQ2A}')
    k(f'ds_read_b128 v[{Q1+4*par}:{Q1+4*par+3}], v3'); k(f'ds_read_b64 v[{Q2+2*par}:{Q2+2*par+1}], v4')
def flush_O(k, O):
    Tm=224; idx=0
    for g in range(3):
        for i in range(4):
            k(f'v_cvt_f64_f32 v[{Tm+2*idx}:{Tm+2*idx+1}], v{O+4*g+i}'); idx+=1
    idx=0
    for g in range(3):
        for i in range(4):
            if g==2 and i==1: k('s_mov_b32 exec_hi, 0')
            k(f'ds_add_f64 v{VOA}, v[{Tm+2*idx}:{Tm+2*idx+1}] offset:{(8*g+i)*256}'); idx+=1
    k('s_mov_b64 exec, -1')
def attn_qtile(k, par, first, loads=False, slow=False):
    S=lambda b: SS+16*b
    O=OO+16*par; Oprev=OO+16*(1-par)
    q1=f'v[{Q1+4*par}:{Q1+4*par+3}]'; q2=f'v[{Q2+2*par}:{Q2+2*par+1}]'
    def smfma(t, half):
        b=t&1
        if half==0: k(f'v_mfma_f32_32x32x16_bf16 v[{S(b)}:{S(b)+15}], v[{K1+4*t}:{K1+4*t+3}], {q1}, '+(f'v[{CI}:{CI+15}]' if slow else '0'))
        else: k(f'v_mfma_f32_32x32x8_bf16 v[{S(b)}:{S(b)+15}], v[{K2+2*t}:{K2+2*t+1}], {q2}, v[{S(b)}:{S(b)+15}]')
    def pv(t, s):
        c='0' if (t==0 and s==0) else f'v[{O}:{O+15}]'
        k(f'v_mfma_f32_32x32x16_bf16 v[{O}:{O+15}], v[{VV+8*t+4*s}:{VV+8*t+4*s+3}], v[{PP+4*s}:{PP+4*s+3}], {c}')
    if slow:
        k(f's_lshl_b32 s49, s{S_QT}, 7'); k('v_and_b32 v3, 31, v1'); k('v_lshlrev_b32 v3, 2, v3'); k('v_add_u32 v3, s49, v3')
        k(f'ds_read_b32 v4, v3 offset:{L_IST}')
        k('s_waitcnt lgkmcnt(0)')
        for r in range(16): k(f'v_sub_f32 v{CI+r}, 0, v4')
        k('s_nop 1')
    k('s_waitcnt lgkmcnt(0)')
    if loads: k('s_waitcnt vmcnt(6)')
    smfma(0,0); smfma(0,1)
    if not first: flush_O(k, Oprev)
    k(f's_add_u32 s48, s{S_QT}, 1'); k('s_and_b32 s48, s48, 7')
    k('s_lshl_b32 s49, s48, 10'); k(f'v_add_u32 v3, s49, v{VQ1A}')
    k(f'v_mad_u32_u24 v4, s48, v{VQ2S}, v{VQ2A}')
    k(f'ds_read_b128 v[{Q1+4*(1-par)}:{Q1+4*(1-par)+3}], v3')
    k(f'ds_read_b64 v[{Q2+2*(1-par)}:{Q2+2*(1-par)+1}], v4')
    k(f's_mul_i32 s49, s{S_QT}, {OT}'); k(f'v_add_u32 v{VOA}, s49, v{VOB}')
    if first: k('s_nop 3')
    for t in range(8):
        b=t&1; s0=S(b); sp=S(1-b)
        E=lambda r: k(f'v_exp_f32 v{s0+r}, v{s0+r}')
        C=lambda j: k(f'v_cvt_pk_bf16_f32 v{PP+j}, v{s0+2*j}, v{s0+2*j+1}')
        Cp=lambda j: k(f'v_cvt_pk_bf16_f32 v{PP+j}, v{sp+2*j}, v{sp+2*j+1}')
        if loads:
            if t+2<8: load_kv_tile(k,t+2); k('s_waitcnt vmcnt(6)')
            elif t==6: k('s_waitcnt vmcnt(2)')
            else: k('s_waitcnt vmcnt(0)')
        if k.o.get('prioalt'):
            la=k.label('pa'); lb=k.label('pb')
            k(f's_bitcmp1_b32 s92, 0'); k(f's_cbranch_scc1 {la}'); k(f's_setprio {t&1}'); k(f's_branch {lb}'); k(f'{la}:'); k(f's_setprio {1-(t&1)}'); k(f'{lb}:')
        E(0); E(1)
        if t>0: Cp(6)
        E(2)
        if t>0: Cp(7)
        if t<7: smfma(t+1,0)
        E(3); E(4); C(0); E(5)
        if t>0: pv(t-1,1)
        E(6); C(1); E(7); E(8)
        if t<7: smfma(t+1,1)
        C(2); E(9); E(10); C(3); E(11); E(12)
        pv(t,0)
        C(4); E(13); E(14); C(5); E(15)
    s0=S(1)
    k('s_nop 0')
    k(f'v_cvt_pk_bf16_f32 v{PP+6}, v{s0+12}, v{s0+13}'); k(f'v_cvt_pk_bf16_f32 v{PP+7}, v{s0+14}, v{s0+15}')
    k('s_nop 1')
    pv(7,1)
    k(f's_mov_b32 s{S_QT}, s48')
    if k.o.get('tq'):
        k(f's_memtime s[{S_TS}:{S_TS+1}]'); k('s_waitcnt lgkmcnt(0)'); k('s_add_u32 s93, s93, 1'); k('s_mov_b32 m0, s93'); k('s_nop 1'); k(f'v_writelane_b32 v255, s{S_TS}, m0')
def attn_pairs(k, npairs, loads=False, slow=False):
    read_q(k,0)
    attn_qtile(k,0,True,loads,slow); attn_qtile(k,1,False,False,slow)
    if npairs>1:
        k(f's_mov_b32 s{S_IT}, 1')
        lp=k.label('attn'); k(f'{lp}:')
        attn_qtile(k,0,False,False,slow); attn_qtile(k,1,False,False,slow)
        k(f's_add_u32 s{S_IT}, s{S_IT}, 1'); k(f's_cmp_lt_u32 s{S_IT}, {npairs}'); k(f's_cbranch_scc1 {lp}')
    k('s_nop 15')
    flush_O(k,OO+16)

def code_prefetch(k):
    k('s_lshr_b32 s48, s2, 3'); k('s_lshl_b32 s48, s48, 3'); k(f's_add_u32 s48, s48, s{S_WAVE}'); k('s_lshl_b32 s48, s48, 10')
    k(f's_min_u32 s48, s48, {NAME}_tblend-{NAME}-1024')
    k(f's_sub_u32 s50, s{S_TBL}, {NAME}_tbl-{NAME}'); k(f's_subb_u32 s51, s{S_TBL+1}, 0')
    k('v_lshlrev_b32 v3, 4, v1'); k('v_add_u32 v3, s48, v3'); k('v_mov_b32 v5, s51'); k('v_add_co_u32 v4, vcc, s50, v3'); k('v_addc_co_u32 v5, vcc, 0, v5, vcc')
    k('global_load_dwordx4 v[244:247], v[4:5], off')

def pretouch(k):
    k('v_lshlrev_b32 v3, 20, v1'); k('s_mov_b64 exec, 0xffff')
    k(f'buffer_load_dword v246, v3, {WS}, 0 offen offset:2048')
    k('s_mov_b64 exec, 0x7')
    k(f'buffer_load_dword v247, v3, s[{S_OUT}:{S_OUT+3}], 0 offen')
    k('s_mov_b64 exec, 1')
    k(f'buffer_load_dword v245, v3, s[{S_WO}:{S_WO+3}], 0 offen')
    k('s_mov_b64 exec, -1')

def early_phase(k, kv, vm, landed=False):
    L_WR = 83968
    E=k.o.get('tearly')
    if not landed:
        ne=vm.younger(['E'])
        k(f's_waitcnt vmcnt({ne})'); k('s_barrier')
    F.row_consts_read(k,L_RC)
    if not kv: F.w_read_lds(k,L_WR)
    F.row_compute_regs(k,L_RST)
    if E: k.tc(8)
    F.row_write_ex(k,L_RST)
    k('s_waitcnt lgkmcnt(0)')
    if E: k.tc(10)
    k('s_barrier')
    if E: k.tc(11)
    def st(): F.xw_store2(k,L_RST)
    vm.issue('XS',st,4)
    if E:
        k.tc(12); k.ts_flush(); k('s_endpgm')

def slow_maxpass(k):
    k('v_and_b32 v5, 31, v1'); k('v_lshlrev_b32 v5, 2, v5'); k(f'v_add_u32 v5, {L_IST}, v5')
    k(f's_mov_b32 s{S_IT}, 0')
    lp=k.label('mx'); k(f'{lp}:')
    k(f's_mov_b32 s{S_QT}, s{S_IT}')
    read_q(k,0)
    k('v_mov_b32 v6, 0xff800000')
    k('s_waitcnt lgkmcnt(0)')
    for t in range(8):
        k(f'v_mfma_f32_32x32x16_bf16 v[{SS}:{SS+15}], v[{K1+4*t}:{K1+4*t+3}], v[{Q1}:{Q1+3}], 0')
        k(f'v_mfma_f32_32x32x8_bf16 v[{SS}:{SS+15}], v[{K2+2*t}:{K2+2*t+1}], v[{Q2}:{Q2+1}], v[{SS}:{SS+15}]')
        k('s_nop 15')
        for r in range(0,16,2): k(f'v_max3_f32 v6, v6, v{SS+r}, v{SS+r+1}')
    k(f's_lshl_b32 s49, s{S_IT}, 7'); k('v_add_u32 v7, s49, v5')
    k('ds_max_f32 v7, v6')
    k(f's_add_u32 s{S_IT}, s{S_IT}, 1'); k(f's_cmp_lt_u32 s{S_IT}, 8'); k(f's_cbranch_scc1 {lp}')
    k('s_waitcnt lgkmcnt(0)')

def lds_count_last(k, cnt_off, target, do):
    lab=k.label('cl')
    k(f'v_mov_b32 v5, {L_CNT+cnt_off}'); k('v_mov_b32 v6, 1'); k('s_mov_b64 s[58:59], exec'); k('s_mov_b64 exec, 1')
    k('ds_add_rtn_u32 v7, v5, v6'); k('s_waitcnt lgkmcnt(0)'); k('s_mov_b64 exec, s[58:59]')
    k('v_readfirstlane_b32 s55, v7'); k(f's_cmp_lg_u32 s55, {target-1}'); k(f's_cbranch_scc1 {lab}')
    do()
    k(f'{lab}:')

def build(opts):
    k=G(opts)
    prologue(k)
    isKV=k.label('KV'); join=k.label('JQ')
    setup_dma(k)
    k(f's_cmp_eq_u32 s{S_HG}, 0'); k(f's_cbranch_scc1 {isKV}')
    def fx_hook():
        labP=k.label('FX'); k(f's_cmp_lg_u32 s{S_WAVE}, 0'); k(f's_cbranch_scc1 {labP}')
        k('s_mov_b32 s74, s2'); set_flag(k,WS_FX,74); k.ts(15); k(f'{labP}:')
    vm=VM()
    vm.issue('E',lambda: F.early_issue(k,L_RST,L_RC,83968),6)
    if opts.get('pt'): vm.issue('PT',lambda: pretouch(k),3)
    if opts.get('pf'): vm.issue('PF',lambda: code_prefetch(k))
    vm.issue('G',lambda: dma_lin(k,S_GW,10,L_GW))
    for p in range(2):
        for t,f in ops_x(k,p,False)+ops_w(k,p,False): vm.issue(t,f)
    k('s_waitcnt lgkmcnt(0)'); k(f's_add_u32 s{S_TAG}, s{S_TAG}, 1')
    k.ts(1)
    early_phase(k,False,vm)
    k.ts(2)
    P=lambda p: ops_x(k,p,False)+ops_w(k,p,False)
    sched=merge(spread(P(2),[0,1,2,3,4]), spread(P(3),[5,6,7,8,9,10]), spread(P(4),[13,14,15,16,17,18]))
    need=[None]+[(f'X{p}',f'W{p}') for p in range(1,5)]
    q_proj_all(k,False,vm,sched,('X0','W0'),need,post={1:fx_hook},kvpoll=True)
    k(f's_branch {join}')
    k(f'{isKV}:')
    vm=VM()
    if opts.get('pt'): vm.issue('PT',lambda: pretouch(k),3)
    vm.issue('G',lambda: dma_lin(k,S_GW,10,L_GW))
    vm.issue('WK',lambda: dma_lin(k,S_WK,200,L_WKV),4); vm.issue('WV',lambda: dma_lin(k,S_WV,200,L_WKV+25600),4)
    for p in range(5):
        for t,f in ops_x(k,p,True): vm.issue(t,f)
    vm.issue('E',lambda: F.early_issue_kv(k,L_RST,L_RC),20)
    k('s_waitcnt lgkmcnt(0)'); k(f's_add_u32 s{S_TAG}, s{S_TAG}, 1')
    k.ts(1)
    kv_proj(k,vm)
    k('s_waitcnt vmcnt(0)'); k('s_barrier')
    labP=k.label('P')
    k(f's_cmp_lg_u32 s{S_WAVE}, 0'); k(f's_cbranch_scc1 {labP}')
    k(f's_lshl_b32 s54, s{S_RB}, 2'); k(f's_add_u32 s54, s54, {WS_FKV}')
    k(f'v_mov_b32 v5, s{S_TAG}'); k('v_lshlrev_b32 v6, 7, v1'); k('s_mov_b64 exec, 0xff')
    k(f'buffer_store_dword v5, v6, {WS}, s54 offen sc1'); k('s_mov_b64 exec, -1')
    k(f'{labP}:')
    k.ts(2)
    vm=VM(); vm.L+=['FL']
    for t,f in ops_w(k,1,True): vm.issue(t,f)
    early_phase(k,True,vm,landed=True)
    Wp=lambda p: ops_w(k,p,True)
    sched=merge(spread(Wp(2),[0,1,2]), spread(Wp(3),[5,6,7]), spread(Wp(4),[13,14,15]))
    need=[None]+[(f'W{p}',) for p in range(1,5)]
    q_proj_all(k,True,vm,sched,('W1',),need,post={1:fx_hook},kvpoll=True)
    k(f'{join}:')
    q_finalize(k)
    k('s_nop 1'); k('v_readlane_b32 s50, v54, 31')
    if opts.get('stop1'): k.tc(13)
    k('s_barrier')
    if opts.get('stop1'):
        k.tc(14); k.ts_flush(); k(f'{NAME}_end:'); k('s_endpgm'); k.L.append(T.table_text(f'{NAME}_tbl')+f'{NAME}_tblend:\n'); return k
    k.ts(4)
    if opts.get('stop1'):
        k.ts_flush(); k(f'{NAME}_end:'); k('s_endpgm'); k.L.append(T.table_text(f'{NAME}_tbl')+f'{NAME}_tblend:\n'); return k
    k(f's_lshl_b32 s51, s{S_WAVE}, 10'); k('v_lshlrev_b32 v3, 4, v1'); k(f'v_add_u32 v3, s51, v3'); k(f'ds_write_b128 v3, v[48:51] offset:{L_Q1}')
    k(f's_lshl_b32 s51, s{S_WAVE}, 8'); k('v_lshlrev_b32 v4, 3, v1'); k(f'v_add_u32 v4, s51, v4')
    k('v_cmp_gt_u32 vcc, 32, v1'); k(f'v_mov_b32 v7, {L_ZERO-L_Q2}'); k('s_nop 0'); k('v_cndmask_b32 v4, v7, v4, vcc'); k(f'ds_write_b64 v4, v[52:53] offset:{L_Q2}')
    k(f's_lshl_b32 s51, s{S_WAVE}, 2'); k(f's_add_u32 s51, s51, {L_M}'); k('v_mov_b32 v5, s51'); k('v_mov_b32 v6, s50'); k('ds_write_b32 v5, v6')
    k(f's_lshr_b32 s51, s{S_WAVE}, 1'); k('s_lshl_b32 s51, s51, 8'); k(f's_and_b32 s52, s{S_WAVE}, 1'); k('s_lshl_b32 s52, s52, 7'); k('s_add_u32 s51, s51, s52'); k(f's_add_u32 s51, s51, {L_Z}')
    k('v_lshlrev_b32 v5, 2, v1'); k('v_add_u32 v5, s51, v5'); k('s_mov_b32 exec_hi, 0'); k(f'ds_write_b32 v5, v{QGA}'); k('s_mov_b64 exec, -1')
    load_kv_setup(k)
    lab=k.label('ekv'); k(f's_cmp_lt_u32 s{S_WAVE}, 2'); k(f's_cbranch_scc1 {lab}')
    k('s_waitcnt lgkmcnt(0)')
    k('v_lshlrev_b32 v5, 3, v1'); k(f's_mov_b32 s48, {WS_KM}')
    k(f'buffer_load_dwordx2 v[20:21], v5, {WS}, s48 offen sc1')
    load_kv_tile(k,0); load_kv_tile(k,1)
    k(f'{lab}:')
    k('v_mov_b32 v6, 0xff800000'); k('v_lshlrev_b32 v5, 2, v1'); k(f's_lshl_b32 s51, s{S_WAVE}, 7'); k('v_add_u32 v5, s51, v5'); k('s_mov_b32 exec_hi, 0'); k(f'ds_write_b32 v5, v6 offset:{L_IST}'); k('s_mov_b64 exec, -1')
    for j in range(4): k(f'v_mov_b32 v{16+j}, 0')
    k('v_lshlrev_b32 v5, 4, v0'); k(f'v_add_u32 v5, {L_O}, v5')
    for j in range(5): k(f'ds_write_b128 v5, v[16:19] offset:{8192*j}')
    k('v_cmp_gt_u32 vcc, 128, v0'); k('s_and_saveexec_b64 s[56:57], vcc'); k(f'ds_write_b128 v5, v[16:19] offset:{8192*5}'); k('s_mov_b64 exec, s[56:57]')
    k(f'v_lshlrev_b32 v5, 2, v1'); k(f'v_add_u32 v5, {L_CNT}, v5'); k('s_mov_b64 exec, 0xffff'); k('ds_write_b32 v5, v16'); k('s_mov_b64 exec, -1')
    k('s_waitcnt lgkmcnt(0)')
    def tables_dma_4waves():
        per=(F.NCT+3)//4
        k('v_lshlrev_b32 v3, 4, v1'); k(f's_sub_u32 s50, s{S_WAVE}, 4')
        for m in range(per):
            k(f's_add_u32 s48, s50, {4*m}'); k(f's_min_u32 s48, s48, {F.NCT-1}'); k('s_lshl_b32 s48, s48, 10')
            k(f's_add_u32 s49, s48, {F.CT0*1024}'); k('v_add_u32 v4, s49, v3')
            k(f'v_mov_b32 v5, s{S_TBL+1}'); k(f'v_add_co_u32 v4, vcc, s{S_TBL}, v4'); k('v_addc_co_u32 v5, vcc, 0, v5, vcc')
            k(f's_add_u32 m0, s48, {L_WO}'); k('s_nop 0')
            k('global_load_lds_dwordx4 v[4:5], off')
    def consts_dma():
        k('v_lshlrev_b32 v3, 4, v1')
        fl=[F.IC_FIRST+i for i in range(F.IC_N)]+[T.FR[x] for x in ('c_t32c0','c_t32n0','c_t32c1','c_t32n1')]
        for i,fr in enumerate(fl):
            k(f'v_add_u32 v4, {fr*1024}, v3'); k(f'v_mov_b32 v5, s{S_TBL+1}'); k(f'v_add_co_u32 v4, vcc, s{S_TBL}, v4'); k('v_addc_co_u32 v5, vcc, 0, v5, vcc')
            k(f's_mov_b32 m0, {L_IC+1024*i}'); k('s_nop 0'); k('global_load_lds_dwordx4 v[4:5], off')
    def lds_add(off):
        k(f'v_mov_b32 v5, {L_CNT+off}'); k('v_mov_b32 v6, 1'); k('s_mov_b64 exec, 1'); k('ds_add_u32 v5, v6'); k('s_mov_b64 exec, -1')
    def lds_wait(off, target):
        lp=k.label('lw'); lq=k.label('lq'); k(f'v_mov_b32 v5, {L_CNT+off}'); k(f'{lp}:'); k('ds_read_b32 v6, v5'); k('s_waitcnt lgkmcnt(0)'); k('v_readfirstlane_b32 s48, v6')
        k(f's_cmp_lt_u32 s48, {target}'); k(f's_cbranch_scc0 {lq}'); k('s_sleep 2'); k(f's_branch {lp}'); k(f'{lq}:')
    k('s_barrier')
    k.ts(5)
    lkv=k.label('kv'); ljoin=k.label('kj'); lno=k.label('noc'); l7=k.label('w7'); l3=k.label('w3a'); lw=k.label('lw2')
    k(f's_cmp_lt_u32 s{S_WAVE}, 2'); k(f's_cbranch_scc0 {lkv}')
    k('v_lshlrev_b32 v6, 4, v1'); k(f's_mov_b32 s53, {WS_FX}')
    k(f'buffer_load_dwordx4 v[8:11], v6, {WS}, s53 offen sc1')
    half=F.NCT//2
    k('v_lshlrev_b32 v3, 4, v1'); k(f's_mul_i32 s48, s{S_WAVE}, {half*1024}'); k(f's_add_u32 s49, s48, {F.CT0*1024}'); k('v_add_u32 v3, s49, v3')
    k(f'v_mov_b32 v5, s{S_TBL+1}'); k(f'v_add_co_u32 v4, vcc, s{S_TBL}, v3'); k('v_addc_co_u32 v5, vcc, 0, v5, vcc')
    for n in range(half):
        k(f's_add_u32 m0, s48, {L_WO+1024*n}')
        if n:
            k('v_add_co_u32 v4, vcc, 0x400, v4'); k('v_addc_co_u32 v5, vcc, 0, v5, vcc')
        else: k('s_nop 0')
        k('global_load_lds_dwordx4 v[4:5], off')
    k(f's_waitcnt vmcnt({half})')
    for j in range(4): k(f'v_xor_b32 v{8+j}, s{S_TAG}, v{8+j}')
    k('v_or_b32 v8, v8, v9'); k('v_or_b32 v10, v10, v11'); k('v_or_b32 v8, v8, v10'); k('v_cmp_ne_u32 vcc, 0, v8')
    lok=k.label('fxok'); k(f's_cbranch_vccz {lok}')
    k(f's_mov_b32 s53, {WS_FX}'); poll_flags(k,'s53',64,4,sleep=8)
    k(f'{lok}:')
    lab=k.label('ep'); k('s_cmp_lg_u32 s2, 0'); k(f's_cbranch_scc1 {lab}'); k(f's_cmp_lg_u32 s{S_WAVE}, 0'); k(f's_cbranch_scc1 {lab}'); k('s_mov_b32 s60, 0'); set_flag(k,WS_EPOCH,60); k(f'{lab}:')
    lhas=k.label('has'); lskip=k.label('skp')
    k(f's_cmp_eq_u32 s{S_WAVE}, 0'); k(f's_cbranch_scc1 {lhas}')
    k(f's_cmp_lt_u32 s{S_COL}, 65'); k(f's_cbranch_scc1 {lhas}')
    k('s_waitcnt vmcnt(0)'); lds_add(28)
    k(f's_branch {lno}')
    k(f'{lhas}:')
    k(f's_lshl_b32 s61, s{S_WAVE}, 8'); k(f's_add_u32 s61, s61, s{S_COL}')
    k(f's_mul_i32 s62, s{S_WAVE}, {L_YS1-L_YS0}'); k(f's_add_u32 s62, s62, {L_YS0}')
    F.col_issue(k,61)
    k('s_waitcnt vmcnt(16)'); lds_add(28)
    k('s_waitcnt vmcnt(0)')
    lds_wait(28,2)
    k.ts(13)
    F.col_fft(k,61,L_WO,None)
    k.ts(14)
    k(f'{lno}:')
    load_kv(k)
    k('s_waitcnt vmcnt(32)')
    k(f's_mul_i32 s61, s{S_WAVE}, {WS_FY2-WS_FY}'); k(f's_add_u32 s61, s61, {WS_FY}')
    k(f's_lshl_b32 s54, s2, 2'); k('s_add_u32 s54, s54, s61')
    k(f'v_mov_b32 v5, s{S_TAG}'); k('v_mov_b32 v6, 0'); k('s_mov_b64 exec, 1')
    k(f'buffer_store_dword v5, v6, {WS}, s54 offen sc1'); k('s_mov_b64 exec, -1')
    lds_add(4)
    k('v_lshlrev_b32 v5, 3, v1'); k(f's_mov_b32 s48, {WS_KM}')
    k(f'buffer_load_dwordx2 v[20:21], v5, {WS}, s48 offen sc1')
    k('s_waitcnt vmcnt(0)')
    k(f's_mov_b32 s91, 0')
    k(f's_branch {ljoin}')
    k(f'{lkv}:')
    k(f's_mov_b32 s91, 1')
    k('s_waitcnt vmcnt(8)')
    k(f'{ljoin}:')
    k(f'v_mov_b32 v5, {L_M}'); k('ds_read_b128 v[12:15], v5'); k('ds_read_b128 v[16:19], v5 offset:16')
    attn_addr(k)
    k('s_waitcnt lgkmcnt(0)')
    k.ts(6); k.tc(10)
    k('v_max_f32 v12, v12, v13'); k('v_max_f32 v14, v14, v15'); k('v_max_f32 v16, v16, v17'); k('v_max_f32 v18, v18, v19')
    k('v_max_f32 v12, v12, v14'); k('v_max_f32 v16, v16, v18'); k('v_max_f32 v12, v12, v16')
    for v in (20,21):
        k(f'v_mov_b32 v10, v{v}'); k('s_nop 1'); k(f'v_permlane32_swap_b32 v{v}, v10'); k('s_nop 1'); k(f'v_max_f32 v{v}, v{v}, v10'); wave_max32(k,v)
    k('s_nop 0'); k('v_readlane_b32 s48, v20, 31'); k('v_readlane_b32 s49, v21, 31'); k('s_nop 1')
    k('v_mul_f32 v12, s48, v12')
    TH=3600.0 if not opts.get('forceslow') else -1.0
    k(f'v_mov_b32 v13, {f2u(TH):#x}'); k('v_cmp_le_f32 vcc, v12, v13')
    k(f'v_mov_b32 v14, s49'); k(f'v_mov_b32 v13, {f2u(2.0**40):#x}'); k('v_cmp_le_f32 s[58:59], v14, v13'); k('s_nop 1')
    k('s_and_b64 vcc, vcc, s[58:59]')
    lslow=k.label('slow'); lend=k.label('aend'); lres=k.label('res'); ldone=k.label('adone')
    k(f's_mov_b32 s{S_QT}, s{S_WAVE}')
    k(f's_lshr_b32 s92, s{S_WAVE}, 2')
    if opts.get('tq'): k.tc(0); k('s_mov_b32 s93, 0')
    if opts.get('priohi'):
        lab=k.label('ph'); k(f's_cmp_lt_u32 s{S_WAVE}, 4'); k(f's_cbranch_scc1 {lab}'); k('s_setprio 1'); k(f'{lab}:')
    k(f's_cbranch_vccz {lslow}')
    k('s_cmp_eq_u32 s91, 0'); k(f's_cbranch_scc1 {lres}')
    attn_pairs(k,1,loads=True)
    lab=k.label('c3'); k(f's_cmp_lg_u32 s{S_WAVE}, 3'); k(f's_cbranch_scc1 {lab}')
    consts_dma(); k('s_waitcnt vmcnt(0)'); lds_add(20)
    k(f'{lab}:')
    attn_pairs(k,3)
    k(f's_branch {ldone}')
    k(f'{lres}:')
    attn_pairs(k,4)
    k(f's_branch {ldone}')
    k(f'{lslow}:')
    lab=k.label('sl1'); k('s_cmp_eq_u32 s91, 0'); k(f's_cbranch_scc1 {lab}')
    for t in range(2,8): load_kv_tile(k,t)
    k(f'{lab}:')
    lab=k.label('sl3'); k(f's_cmp_lg_u32 s{S_WAVE}, 3'); k(f's_cbranch_scc1 {lab}')
    consts_dma(); k('s_waitcnt vmcnt(0)'); lds_add(20)
    k(f'{lab}:')
    k('s_waitcnt vmcnt(0)')
    slow_maxpass(k)
    k('s_barrier')
    k(f's_mov_b32 s{S_QT}, s{S_WAVE}')
    attn_pairs(k,4,slow=True)
    k('s_waitcnt lgkmcnt(0)'); k('s_barrier')
    k(f'{ldone}:')
    k('s_setprio 0')
    k.tc(11); k.ts(12)
    l3=k.label('w3'); l2=k.label('w2')
    k(f's_cmp_eq_u32 s{S_WAVE}, 3'); k(f's_cbranch_scc1 {l3}')
    k(f's_cmp_eq_u32 s{S_WAVE}, 2'); k(f's_cbranch_scc1 {l2}')
    k(f's_branch {lend}')
    k(f'{l3}:')
    lds_wait(4,2)
    k(f's_mov_b32 s62, s{S_WAVE}')
    k(f's_mov_b32 s{S_WAVE}, 0')
    dma_wo(k,range(0,85),85,step=1)
    k(f's_mov_b32 s{S_WAVE}, s62')
    k(f's_branch {lend}')
    k(f'{l2}:')
    lp=k.label('pyy'); dn=k.label('pyd')
    k('v_lshlrev_b32 v4, 4, v1'); k(f's_mov_b32 s53, {WS_FY}')
    k(f'{lp}:')
    k(f'buffer_load_dwordx4 v[6:9], v4, {WS}, s53 offen sc1'); k(f'buffer_load_dwordx4 v[10:13], v4, {WS}, s53 offen offset:1024 sc1'); k('s_waitcnt vmcnt(0)')
    for j in range(8): k(f'v_xor_b32 v{6+j}, s{S_TAG}, v{6+j}')
    for j in range(1,8): k(f'v_or_b32 v6, v6, v{6+j}')
    k('v_cmp_ne_u32 vcc, 0, v6'); k(f's_cbranch_vccz {dn}'); k('s_sleep 10'); k(f's_branch {lp}'); k(f'{dn}:')
    lds_wait(20,1)
    k.ts(13); F.row_ifft_duty(k,L_IST,L_IC); k.ts(14)
    k(f's_mov_b32 s62, s{S_WAVE}'); k(f's_mov_b32 s{S_WAVE}, 0')
    dma_wo(k,range(85,100),100,step=1)
    k(f's_mov_b32 s{S_WAVE}, s62')
    k(f'{lend}:')
    k('s_waitcnt vmcnt(0) lgkmcnt(0)'); k('s_barrier')
    k.ts(7)
    def norm_task(tau_sgpr):
        k('v_lshrrev_b32 v3, 5, v1'); k(f'v_mul_u32_u24 v3, {OT}, v3'); k('v_and_b32 v4, 31, v1'); k('v_lshl_add_u32 v3, v4, 3, v3'); k(f'v_add_u32 v3, {L_O}, v3')
        for a in range(2):
            k(f's_lshl_b32 s50, s{tau_sgpr}, 1'); k(f's_add_u32 s50, s50, {a}')
            k('s_mul_i32 s51, s50, 52'); k('s_lshr_b32 s51, s51, 8'); k('s_mul_i32 s52, s51, 5'); k('s_sub_u32 s52, s50, s52')
            k(f's_mul_i32 s51, s51, {2*OT}'); k('v_add_u32 v4, s51, v3')
            k(f'ds_read_b64 v[{32+2*a}:{33+2*a}], v4 offset:{20*256}')
            k('s_lshl_b32 s52, s52, 10'); k('v_add_u32 v4, s52, v4')
            for i in range(4): k(f'ds_read_b64 v[{40+8*a+2*i}:{41+8*a+2*i}], v4 offset:{256*i}')
        k('s_waitcnt lgkmcnt(0)')
        for a in range(2):
            k(f'v_cvt_f32_f64 v{28+a}, v[{32+2*a}:{33+2*a}]')
            for i in range(4): k(f'v_cvt_f32_f64 v{56+4*a+i}, v[{40+8*a+2*i}:{41+8*a+2*i}]')
        k('v_rcp_f32 v28, v28'); k('v_rcp_f32 v29, v29'); k('s_nop 0')
        for a in range(2):
            for i in range(4): k(f'v_mul_f32 v{56+4*a+i}, v{56+4*a+i}, v{28+a}')
        for j in range(4): k(f'v_cvt_pk_bf16_f32 v{64+j}, v{56+2*j}, v{57+2*j}')
        k(f's_mul_i32 s50, s{S_HG}, 10'); k(f's_add_u32 s50, s50, s{tau_sgpr}')
        k('s_lshr_b32 s51, s50, 2'); k('s_and_b32 s52, s50, 3'); k('s_lshl_b32 s51, s51, 10'); k('s_lshl_b32 s52, s52, 8'); k('s_add_u32 s51, s51, s52')
        k(f's_mul_i32 s52, s{S_RB}, {4*20*1024}'); k('s_add_u32 s51, s51, s52'); k(f's_add_u32 s51, s51, {WS_O}')
        k('v_lshrrev_b32 v5, 4, v1'); k(f'v_mul_u32_u24 v5, {20*1024}, v5'); k('v_and_b32 v6, 15, v1'); k('v_lshl_add_u32 v5, v6, 4, v5')
        k(f'buffer_store_dwordx4 v[64:67], v5, {WS}, s51 offen sc1')
    k(f's_mov_b32 s60, s{S_WAVE}'); norm_task(60)
    lab=k.label('n2'); k(f's_cmp_ge_u32 s{S_WAVE}, 2'); k(f's_cbranch_scc1 {lab}'); k(f's_add_u32 s60, s{S_WAVE}, 8'); norm_task(60); k(f'{lab}:')
    def setFO():
        k(f's_lshl_b32 s60, s{S_RB}, 5'); k(f's_add_u32 s60, s60, s{S_HG}'); set_flag(k,WS_FO,60)
    if opts.get('tt'): k.ts(1)
    k('s_waitcnt vmcnt(0)')
    if opts.get('tt'): k.ts(2)
    lds_count_last(k,8,8,setFO)
    if opts.get('tt'): k.ts(3)
    lab=k.label('nf'); lab2=k.label('nf2')
    k(f's_cmp_lg_u32 s{S_WAVE}, 0'); k(f's_cbranch_scc1 {lab}')
    lp=k.label('po'); dn=k.label('pod')
    k('s_mov_b64 exec, 0xff'); k('v_lshlrev_b32 v4, 2, v1'); k(f's_lshl_b32 s53, s{S_RB}, 7'); k(f's_add_u32 s53, s53, {WS_FO}')
    k(f'{lp}:'); k(f'buffer_load_dword v5, v4, {WS}, s53 offen sc1'); k('s_waitcnt vmcnt(0)'); k(f'v_cmp_ne_u32 vcc, s{S_TAG}, v5')
    k(f's_cbranch_vccz {dn}'); k('s_sleep 1'); k(f's_branch {lp}'); k(f'{dn}:'); k('s_mov_b64 exec, -1')
    k(f's_branch {lab2}')
    k(f'{lab}:')
    k(f's_cmp_lg_u32 s{S_WAVE}, 1'); k(f's_cbranch_scc1 {lab2}')
    k(f's_lshr_b32 s48, s{S_RB}, 4'); k('s_lshl_b32 s48, s48, 1'); k(f's_bfe_u32 s49, s{S_RB}, 0x10002'); k('s_add_u32 s48, s48, s49')
    k('s_lshl_b32 s53, s48, 8'); k(f's_add_u32 s53, s53, {WS_FB}'); poll_flags(k,'s53',64,sleep=3)
    k('s_mov_b32 s48, 0xCCCCCCCD'); k(f's_mul_i32 s49, s{S_RB}, {64*1280}'); k(f's_mul_i32 s50, s{S_HG}, 160'); k('s_add_u32 s49, s49, s50'); k(f's_add_u32 s49, s49, {WS_B}')
    for i in range(10):
        k(f'v_add_u32 v3, {64*i}, v1'); k('v_mul_hi_u32 v4, v3, s48'); k('v_lshrrev_b32 v4, 3, v4'); k('v_mul_u32_u24 v5, 10, v4'); k('v_sub_u32 v5, v3, v5')
        k('v_mul_u32_u24 v4, 1280, v4'); k('v_lshl_add_u32 v4, v5, 4, v4')
        k(f'buffer_load_dwordx4 v[{100+4*i}:{103+4*i}], v4, {WS}, s49 offen sc1')
    k('v_lshlrev_b32 v3, 4, v1')
    for i in range(10):
        k(f's_waitcnt vmcnt({9-i})'); k(f'ds_write_b128 v3, v[{100+4*i}:{103+4*i}] offset:{1024*i}')
    k('s_waitcnt lgkmcnt(0)')
    k(f'{lab2}:')
    if opts.get('tt'): k.ts(4)
    k('s_barrier')
    k.ts(8)
    OF=16; AC=64; AF=96
    k(f's_and_b32 s48, s{S_WAVE}, 3'); k(f's_lshr_b32 s49, s{S_WAVE}, 2')
    k(f's_lshl_b32 s50, s{S_RB}, 2'); k('s_add_u32 s50, s50, s48'); k('s_mul_i32 s50, s50, 20'); k('s_mul_i32 s51, s49, 10'); k('s_add_u32 s50, s50, s51'); k('s_lshl_b32 s50, s50, 10'); k(f's_add_u32 s50, s50, {WS_O}')
    k('v_lshlrev_b32 v3, 4, v1')
    for t in range(10):
        k(f'buffer_load_dwordx4 v[{OF+4*t}:{OF+4*t+3}], v3, {WS}, s50 offen sc1'); k('s_add_u32 s50, s50, 1024')
    k(f's_lshl_b32 s50, s{S_RB}, 6'); k('s_lshl_b32 s51, s48, 4'); k('s_add_u32 s50, s50, s51')
    k('v_and_b32 v4, 15, v1'); k('v_add_u32 v4, s50, v4')
    k('v_and_b32 v8, 15, v1'); k('s_lshl_b32 s52, s48, 6'); k('v_lshl_add_u32 v8, v8, 2, s52'); k(f'v_add_u32 v8, {L_Z}, v8')
    for hd in range(4): k(f'ds_read_b32 v{10+hd}, v8 offset:{256*hd}')
    k('v_and_b32 v7, 15, v1'); k('v_lshrrev_b32 v6, 2, v7'); k(f'v_mul_u32_u24 v9, {WOSUB}, v6'); k('v_and_b32 v14, 1, v6'); k('v_lshl_add_u32 v9, v14, 5, v9'); k('v_lshrrev_b32 v14, 1, v6'); k('v_lshl_add_u32 v9, v14, 7, v9')
    k('v_lshrrev_b32 v14, 4, v1'); k('v_mul_u32_u24 v14, 320, v14'); k('v_add_u32 v9, v9, v14'); k('v_and_b32 v7, 3, v7'); k('v_lshl_add_u32 v9, v7, 3, v9')
    k('s_mul_i32 s53, s49, 12800'); k(f's_add_u32 s53, s53, {L_WO}'); k('v_add_u32 v9, s53, v9')
    k('s_waitcnt lgkmcnt(0)')
    k('v_add_f32 v10, v10, v11'); k('v_add_f32 v12, v12, v13'); k('v_add_f32 v10, v10, v12')
    k(f'v_mul_f32 v10, {f2u(-1.4426950408889634):#x}, v10'); k('v_exp_f32 v10, v10'); k('s_nop 0'); k('v_add_f32 v10, 1.0, v10'); k('v_rcp_f32 v8, v10')
    def rdA(t):
        b=t&1
        for mu in range(5):
            k(f'ds_read_b64_tr_b16 v[{AF+20*b+4*mu}:{AF+20*b+4*mu+1}], v9 offset:{t*1280+mu*32}')
            k(f'ds_read_b64_tr_b16 v[{AF+20*b+4*mu+2}:{AF+20*b+4*mu+3}], v9 offset:{t*1280+mu*32+160}')
    if opts.get('tt'): k.ts(5)
    rdA(0)
    for t in range(10):
        if t==1 and opts.get('tt'): k.ts(6)
        if t+1<10:
            rdA(t+1); k(f's_waitcnt vmcnt({9-t}) lgkmcnt(10)')
        else: k('s_waitcnt vmcnt(0) lgkmcnt(0)')
        b=t&1
        for mu in range(5):
            c='0' if t==0 else f'v[{AC+4*mu}:{AC+4*mu+3}]'
            k(f'v_mfma_f32_16x16x32_bf16 v[{AC+4*mu}:{AC+4*mu+3}], v[{AF+20*b+4*mu}:{AF+20*b+4*mu+3}], v[{OF+4*t}:{OF+4*t+3}], {c}')
    if opts.get('tt'): k.ts(13)
    k('s_nop 9')
    k(f's_mul_i32 s52, s48, {5*1024}'); k('v_lshlrev_b32 v7, 4, v1'); k('v_add_u32 v7, s52, v7'); k(f'v_add_u32 v7, {L_O}, v7')
    labA=k.label('ra'); labB=k.label('rb')
    k('s_cmp_eq_u32 s49, 0'); k(f's_cbranch_scc1 {labA}')
    for mu in range(5): k(f'ds_write_b128 v7, v[{AC+4*mu}:{AC+4*mu+3}] offset:{1024*mu}')
    k('s_waitcnt lgkmcnt(0)'); k('s_barrier'); k(f's_branch {labB}')
    k(f'{labA}:')
    k('s_barrier')
    for mu in range(5): k(f'ds_read_b128 v[{AF+4*mu}:{AF+4*mu+3}], v7 offset:{1024*mu}')
    k('v_and_b32 v5, 15, v1'); k('s_lshl_b32 s52, s48, 4'); k('v_add_u32 v5, s52, v5'); k('v_mul_u32_u24 v5, 160, v5'); k('v_lshrrev_b32 v6, 4, v1'); k('v_lshl_add_u32 v5, v6, 3, v5')
    for mu in range(5): k(f'ds_read_b64 v[{AF+40+2*mu}:{AF+41+2*mu}], v5 offset:{32*mu}')
    k('s_waitcnt lgkmcnt(0)')
    for r in range(20): k(f'v_add_f32 v{AC+r}, v{AC+r}, v{AF+r}')
    k('v_sub_f32 v9, 1.0, v8')
    for mu in range(5):
        for jj in range(2):
            w=AF+40+2*mu+jj
            k(f'v_lshlrev_b32 v10, 16, v{w}'); k(f'v_and_b32 v11, 0xffff0000, v{w}')
            k(f'v_mul_f32 v10, v10, v9'); k('v_mul_f32 v11, v11, v9')
            k(f'v_fma_f32 v{AC+4*mu+2*jj}, v{AC+4*mu+2*jj}, v8, v10'); k(f'v_fma_f32 v{AC+4*mu+2*jj+1}, v{AC+4*mu+2*jj+1}, v8, v11')
    for j in range(10): k(f'v_cvt_pk_bf16_f32 v{AF+j}, v{AC+2*j}, v{AC+2*j+1}')
    for mu in range(5): k(f'ds_write_b64 v5, v[{AF+2*mu}:{AF+2*mu+1}] offset:{32*mu}')
    k('s_mul_i32 s52, s48, 2560'); k('v_lshlrev_b32 v6, 4, v1'); k('v_add_u32 v6, s52, v6')
    k('s_mov_b32 s53, 0xCCCCCCCD'); k(f's_lshl_b32 s54, s{S_RB}, 6'); k('s_lshl_b32 s55, s48, 4'); k('s_add_u32 s54, s54, s55'); k('s_mul_i32 s54, s54, 1280'); k(f's_mul_i32 s55, s{S_HG}, 160'); k('s_add_u32 s54, s54, s55')
    k('s_waitcnt lgkmcnt(0)')
    for i in range(3): k(f'ds_read_b128 v[{AF+16+4*i}:{AF+19+4*i}], v6 offset:{1024*i}')
    for i in range(3):
        k(f'v_add_u32 v3, {64*i}, v1'); k('v_mul_hi_u32 v4, v3, s53'); k('v_lshrrev_b32 v4, 3, v4'); k('v_mul_u32_u24 v10, 10, v4'); k('v_sub_u32 v10, v3, v10')
        k('v_mul_u32_u24 v4, 1280, v4'); k(f'v_lshl_add_u32 v{12+i}, v10, 4, v4')
    k('s_waitcnt lgkmcnt(0)')
    for i in range(3):
        if i==2: k('s_mov_b32 exec_hi, 0')
        k(f'buffer_store_dwordx4 v[{AF+16+4*i}:{AF+19+4*i}], v{12+i}, s[{S_OUT}:{S_OUT+3}], s54 offen')
    k('s_mov_b64 exec, -1')
    k(f'{labB}:')
    k.ts(9)
    k.ts_flush()
    k(f'{NAME}_end:')
    k('s_endpgm')
    k.L.append(T.table_text(f'{NAME}_tbl')+f'{NAME}_tblend:\n')
    return k

if __name__=='__main__':
    opts={a:True for a in sys.argv[2:]}
    emit([build(opts)],sys.argv[1],single=True)
```
